```python
import torch

def _softmax(x, axis=-1):
    return torch.softmax(x, dim=axis)

def _gelu(x):
    return torch.nn.functional.gelu(x, approximate='tanh')

def _silu(x):
    return torch.nn.functional.silu(x)

def _sigmoid(x):
    return torch.sigmoid(x)

def _layernorm(x, axis=-1, eps=1e-05):
    m = x.mean(dim=axis, keepdim=True)
    v = x.var(dim=axis, keepdim=True, unbiased=False)
    return (x - m) / torch.sqrt(v + eps)

def _scatter_add(tgt, idx, src, axis=0):
    return tgt.clone().index_add_(axis, idx, src)

def _segment_sum(src, seg, n):
    out = torch.zeros((n,) + src.shape[1:], dtype=src.dtype)
    return out.index_add_(0, seg, src)

def _pad(x, pw):
    flat = tuple((v for pair in reversed(pw) for v in pair))
    return torch.nn.functional.pad(x, flat)
kernel_name = 'parallel_sum__linear_attn_block__mixer_gmlp__prompt'

def setup_inputs():

    _w = lambda a: (lambda t: t.to(torch.bfloat16) if t.is_floating_point() else t)(torch.as_tensor(a))

    def _A_setup():
        B, S, D = (1, 2048, 448)
        return {'x': _w((lambda *s: torch.randn(*s, dtype=torch.bfloat16) * 0.05)(B, S, D)), 'wqkv': _w((lambda *s: torch.randn(*s, dtype=torch.bfloat16) * 1.6)(D, 3 * D)), 'wo': _w((lambda *s: torch.randn(*s, dtype=torch.bfloat16) * 0.2)(D, D))}
    _A_in = _A_setup()

    def _B_setup():
        B, S, D, F = (1, 2048, 448, 1792)
        Fh = F // 2
        return {'x': _w((lambda *s: torch.randn(*s, dtype=torch.bfloat16) * 0.05)(B, S, D)), 'w_in': _w((lambda *s: torch.randn(*s, dtype=torch.bfloat16) * 0.4)(D, 2 * Fh)), 'w_sp': _w(0.01 * (lambda *s: torch.randn(*s, dtype=torch.bfloat16) * 0.4)(S, S)), 'b_sp': _w(1.0 + 0.01 * (lambda *s: torch.randn(*s, dtype=torch.bfloat16) * 0.05)(S)), 'w_out': _w((lambda *s: torch.randn(*s, dtype=torch.bfloat16) * 0.05)(Fh, D))}
    _B_in = _B_setup()
    return {'A_x': _A_in['x'], 'A_wqkv': _A_in['wqkv'], 'A_wo': _A_in['wo'], 'B_x': _B_in['x'], 'B_w_in': _B_in['w_in'], 'B_w_sp': _B_in['w_sp'], 'B_b_sp': _B_in['b_sp'], 'B_w_out': _B_in['w_out']}

def reference(A_x, A_wqkv, A_wo, B_x, B_w_in, B_w_sp, B_b_sp, B_w_out):

    def _A_ref(x, wqkv, wo):
        B, S, D = x.shape
        H = 16
        Dh = D // H
        qkv = (lambda x, *d: x.permute(*d))((x @ wqkv).reshape(B, S, 3, H, Dh), 2, 0, 3, 1, 4)
        q, k, v = (qkv[0], qkv[1], qkv[2])
        phi = lambda t: torch.where(t > 0, t + 1, torch.exp(t)) + 1e-06
        pq, pk = (phi(q), phi(k))
        kv = torch.einsum('bhsd,bhse->bhde', pk, v)
        z = torch.einsum('bhsd->bhd', pk)
        num = torch.einsum('bhqd,bhde->bhqe', pq, kv)
        den = torch.einsum('bhqd,bhd->bhq', pq, z)[..., None] + 1e-06
        o = num / den
        return (lambda x, *d: x.permute(*d))(o, 0, 2, 1, 3).reshape(B, S, D) @ wo

    def _B_ref(x, w_in, w_sp, b_sp, w_out):
        B, S, D = x.shape
        F = w_in.shape[-1]
        Fh = F // 2
        z = _gelu(torch.einsum('bsd,df->bsf', x, w_in))
        z1 = z[..., :Fh].clone()
        z2 = _layernorm(z[..., Fh:], axis=-1)
        g = torch.einsum('ts,bsf->btf', w_sp, z2) + b_sp[None, :, None]
        return torch.einsum('bsf,fd->bsd', z1 * g, w_out)
    x = A_x
    xn = _layernorm(x, axis=-1)
    return x + _A_ref(xn, A_wqkv, A_wo) + _B_ref(xn, B_w_in, B_w_sp, B_b_sp, B_w_out)
```

```python
import re

TRANS = ('v_exp_f32', 'v_log_f32', 'v_rcp_f32', 'v_rsq_f32', 'v_sqrt_f32', 'v_sin_f32', 'v_cos_f32')

_reg_re = re.compile(r'^(-)?(\|)?(abs\()?([vas])(\d+|\[(\d+):(\d+)\])')

def regs_of(tok):
    tok = tok.strip()
    if tok in ('vcc',):
        return [('s', 'vcc')]
    if tok in ('exec',):
        return [('s', 'exec')]
    if tok == 'm0':
        return [('s', 'm0')]
    m = _reg_re.match(tok)
    if not m:
        return []
    kind = m.group(4)
    if m.group(6) is not None:
        return [(kind, i) for i in range(int(m.group(6)), int(m.group(7)) + 1)]
    return [(kind, int(m.group(5)))]

class Ins:
    __slots__ = ('text', 'op', 'cls', 'dst', 'src', 'srcC', 'passes', 'storedata', 'dpp', 'trans', 'nstates')

def split_ops(s):
    out = []; depth = 0; cur = ''
    for ch in s:
        if ch in '[(':
            depth += 1
        if ch in '])':
            depth -= 1
        if ch == ',' and depth == 0:
            out.append(cur.strip()); cur = ''
        else:
            cur += ch
    if cur.strip():
        out.append(cur.strip())
    return out

def parse(text):
    t = text.split(';')[0].strip()
    i = Ins(); i.text = text; i.dst = []; i.src = []; i.srcC = []; i.passes = 0
    i.storedata = []; i.dpp = False; i.trans = False; i.nstates = 1
    parts = t.split(None, 1)
    op = parts[0]; i.op = op
    rest = parts[1] if len(parts) > 1 else ''
    ops = split_ops(rest)
    cleaned = []
    for o in ops:
        cleaned.append(o.split()[0] if o.split() else o)
    R = [regs_of(o) for o in cleaned]
    base = re.sub(r'_(e32|e64|dpp|sdwa)$', '', op)
    if op == 's_nop':
        i.cls = 'nop'; i.nstates = int(rest.strip(), 0) + 1
    elif op.startswith('v_mfma'):
        i.cls = 'mfma'
        i.dst = R[0]; i.src = R[1] + R[2]; i.srcC = R[3] if len(R) > 3 else []
        i.passes = 8 if '32x32x16' in op else (4 if '16x16x32' in op else (8 if '16x16x4_f32' in op else 16))
    elif op.startswith('v_readfirstlane') or op.startswith('v_readlane'):
        i.cls = 'readlane'; i.dst = R[0]; i.src = sum(R[1:], [])
    elif op.startswith('v_permlane'):
        i.cls = 'permlane'; i.dst = R[0] + R[1]; i.src = R[0] + R[1]
    elif op.startswith('v_cmp'):
        i.cls = 'valu'; i.dst = R[0]; i.src = sum(R[1:], [])
        if op.startswith('v_cmpx'):
            i.dst = i.dst + [('s', 'exec')]
    elif op.startswith('v_'):
        i.cls = 'valu'
        i.dst = R[0]; i.src = sum(R[1:], [])
        if base in ('v_add_co_u32', 'v_sub_co_u32', 'v_addc_co_u32', 'v_subb_co_u32', 'v_div_scale_f32', 'v_mad_u64_u32'):
            i.dst = R[0] + R[1]; i.src = sum(R[2:], [])
        if base in ('v_fmac_f32', 'v_dot2c_f32_bf16', 'v_pk_fmac_f16') :
            i.src = i.src + R[0]
        if op.endswith('_dpp') or ' row_' in rest or 'quad_perm' in rest:
            i.dpp = True
            i.src = i.src + R[0]
        if base in TRANS:
            i.trans = True
        if base.startswith('v_dot'):
            i.cls = 'dot'
    elif op.startswith('buffer_') or op.startswith('global_'):
        lds = re.search(r'\blds\b', rest) is not None or '_lds_' in op
        if 'load' in op:
            i.cls = 'vmem'
            if lds:
                i.src = sum(R, []) + [('s', 'm0')]; i.cls = 'dma'
            else:
                i.dst = R[0]; i.src = sum(R[1:], [])
        elif 'store' in op or 'atomic' in op:
            i.cls = 'vmem'
            i.src = sum(R, [])
            data = R[0] if op.startswith('buffer_') else R[1]
            if 'x3' in op or 'x4' in op:
                i.storedata = data
            if 'atomic' in op and 'sc0' in rest:
                i.dst = R[0]
        else:
            i.cls = 'other'
    elif op.startswith('ds_'):
        i.cls = 'ds'
        if 'read' in op or 'bpermute' in op or 'permute' in op or 'swizzle' in op or '_rtn' in op:
            i.dst = R[0]; i.src = sum(R[1:], [])
        else:
            i.src = sum(R, [])
    elif op.startswith('s_'):
        i.cls = 'salu'
        if op.startswith('s_cmp') or op.startswith('s_cbranch') or op in ('s_branch', 's_waitcnt', 's_barrier', 's_endpgm', 's_setprio', 's_sleep'):
            i.src = sum(R, [])
        else:
            i.dst = R[0] if R else []; i.src = sum(R[1:], [])
            if 'saveexec' in op:
                i.dst = i.dst + [('s', 'exec')]
    else:
        i.cls = 'other'
    return i

MF_VALU = {2: 5, 4: 8, 8: 12, 16: 20}
MF_SRCC_OVL = {2: 4, 4: 6, 8: 10, 16: 18}
MF_WAR = {2: 1, 4: 3, 8: 7, 16: 15}
VALUISH = ('valu', 'dot', 'permlane', 'readlane')

def need(p, c):
    n = 0
    pd = set(p.dst); cs = set(c.src); cd = set(c.dst); cC = set(c.srcC)
    if p.cls in ('valu', 'permlane', 'dot'):
        vd = {r for r in pd if r[0] in 'va'}
        sd = {r for r in pd if r[0] == 's'}
        if c.cls == 'mfma' and vd & (cs | cC):
            n = max(n, 2)
        if c.dpp and vd & cs:
            n = max(n, 2)
        if c.cls == 'permlane' and vd & cs:
            n = max(n, 2)
        if c.cls == 'readlane' and vd & cs:
            n = max(n, 1)
        if p.trans and c.cls in VALUISH + ('mfma',) and not c.trans and vd & cs:
            n = max(n, 1)
        if p.cls == 'dot' and (vd & (cs | cd | cC)):
            if not (c.op == p.op and not (vd & set(c.src[:-1])) ):
                n = max(n, 3)
        if sd:
            if c.cls in VALUISH and sd & cs:
                n = max(n, 4 if c.cls == 'readlane' else 2)
            if c.cls in ('vmem', 'dma') and sd & cs:
                n = max(n, 5)
            if ('s', 'exec') in sd:
                if c.dpp: n = max(n, 5)
                if c.cls in ('mfma', 'permlane', 'readlane'): n = max(n, 4)
    if p.cls == 'readlane':
        sd = pd
        if c.cls in VALUISH and sd & cs:
            n = max(n, 4 if c.cls == 'readlane' else 2)
        if c.cls in ('vmem', 'dma') and sd & cs:
            n = max(n, 5)
        if c.cls == 'salu' and sd & cs:
            n = max(n, 1)
    if p.cls == 'salu' and ('s', 'm0') in pd and c.cls == 'dma':
        n = max(n, 1)
    if p.cls == 'mfma':
        if c.cls == 'mfma':
            if pd & cs:
                n = max(n, MF_VALU[p.passes])
            if pd & cC:
                if not (list(p.dst) == list(c.srcC) and p.passes == c.passes):
                    n = max(n, MF_SRCC_OVL[p.passes])
                elif p.passes == 2:
                    n = max(n, 2)
            elif pd & cd:
                n = max(n, MF_SRCC_OVL[p.passes])
        elif c.cls in VALUISH + ('vmem', 'ds', 'dma'):
            if pd & (cs | cd):
                n = max(n, MF_VALU[p.passes])
        if c.cls in VALUISH and set(p.srcC) & cd:
            n = max(n, MF_WAR[p.passes])
    if p.storedata and set(p.storedata) & cd:
        n = max(n, 2)
    return n

class Asm:
    def __init__(self):
        self.lines = []
        self.hist = []
        self.nins = 0
    def raw(self, text):
        self.lines.append(text)
    def label(self, name):
        self.lines.append(name + ':')
    def fence(self, n=0):
        if n: self.e(f's_nop {n-1}')
    def e(self, text):
        for ln in text.strip().split('\n'):
            ln = ln.strip()
            if not ln or ln.startswith(';'):
                continue
            if ln.endswith(':'):
                self.label(ln[:-1]); continue
            self._emit(ln)
    def _emit(self, ln):
        c = parse(ln)
        dist = 0; req = 0
        for p in reversed(self.hist):
            k = need(p, c) - dist
            if k > req: req = k
            dist += p.nstates
            if dist >= 20: break
        while req > 0:
            k = min(req, 16)
            nop = parse(f's_nop {k-1}')
            self.lines.append(f'  s_nop {k-1}')
            self.hist.append(nop)
            req -= k
        self.lines.append('  ' + ln)
        self.hist.append(c)
        if len(self.hist) > 64:
            self.hist = self.hist[-32:]
        self.nins += 1
    def text(self):
        return '\n'.join(self.lines) + '\n'

def vr(b, n=1):
    return f'v{b}' if n == 1 else f'v[{b}:{b+n-1}]'
def ar(b, n=1):
    return f'a{b}' if n == 1 else f'a[{b}:{b+n-1}]'
def sr(b, n=1):
    return f's{b}' if n == 1 else f's[{b}:{b+n-1}]'

import struct
def f32(x):
    return '0x%08x' % struct.unpack('<I', struct.pack('<f', x))[0]
```

```python
import sys, math
from asmlib import *

PQ_OFF   = 0x000000
PK_OFF   = 0x200000
V_OFF    = 0x400000
Z1_OFF   = 0x600000
ZZ_OFF   = 0xA00000
ACT_OFF  = 0xE00000
ST_OFF   = 0x1400000
DBG_OFF  = 0x1500000
WS_SIZE  = 0x1600000

LOG2E = 1.4426950408889634
GC0 = -2.0 * math.sqrt(2.0 / math.pi) * LOG2E
GC1 = GC0 * 0.044715

STAMP = False

def srd(a, d, base, size):
    a.e(f'''
    s_mov_b32 s{d}, s{base}
    s_mov_b32 s{d+1}, s{base+1}
    s_mov_b32 s{d+2}, {size}
    s_mov_b32 s{d+3}, 0x20000
    ''')

def stamp_begin(a):
    if STAMP:
        a.e('s_memrealtime s[90:91]')

def stamp_end(a, kidx, ws_srd, wave_s):
    if STAMP:
        a.e(f'''
        s_waitcnt vmcnt(0)
        s_memrealtime s[92:93]
        s_waitcnt lgkmcnt(0)
        s_lshl_b32 s94, s2, 3
        s_add_u32 s94, s94, s{wave_s}
        s_lshl_b32 s94, s94, 3
        s_add_u32 s94, s94, {DBG_OFF + kidx * 0x10000}
        v_mov_b32 v2, s90
        v_mov_b32 v3, s92
        v_mov_b32 v4, 0
        s_mov_b64 exec, 1
        buffer_store_dwordx2 v[2:3], v4, s[{ws_srd}:{ws_srd+3}], s94 offen
        ''')

def kernel_head(a, name):
    a.raw(f'.globl {name}\n.p2align 8\n.type {name},@function\n{name}:')
    a.hist = []

def gen_k1(a):
    kernel_head(a, 'k1_kernel')
    XN = 0
    RING0 = 57344
    RING = 12288
    stamp_begin(a)
    a.e(f'''
    s_cmp_ge_u32 s2, 224
    s_cbranch_scc1 K1_EXIT
    s_load_dwordx4 s[4:7], s[0:1], 0
    s_load_dwordx2 s[8:9], s[0:1], 32
    s_load_dwordx2 s[10:11], s[0:1], 80
    v_lshrrev_b32 v1, 6, v0
    v_and_b32 v0, 63, v0
    v_readfirstlane_b32 s24, v1
    s_and_b32 s25, s2, 7
    s_lshl_b32 s25, s25, 2
    s_lshr_b32 s26, s2, 3
    s_and_b32 s27, s26, 3
    s_add_u32 s25, s25, s27
    s_lshr_b32 s26, s26, 2
    ''')
    a.e(f'''
    v_lshrrev_b32 v2, 3, v0
    v_and_b32 v3, 7, v0
    v_mul_u32_u24 v4, 896, v2
    v_lshl_add_u32 v4, v3, 4, v4
    s_lshl_b32 s28, s25, 3
    s_add_u32 s28, s28, s24
    s_mul_i32 s28, s28, {8*896}
    ''')
    a.e(f'''
    s_movk_i32 s27, 2688
    s_cmp_lt_u32 s26, 3
    s_cselect_b32 s27, s27, 3584
    s_cselect_b32 s29, 0, 3
    s_sub_u32 s29, s26, s29
    s_mul_i32 s29, s29, 896
    s_lshl_b32 s30, s24, 7
    s_add_u32 s29, s29, s30
    s_lshl_b32 s30, s27, 2
    s_mul_i32 s31, s27, 12
    s_mul_i32 s32, s24, {RING}
    s_add_u32 s32, s32, {RING0}
    ''')
    a.e(f'''
    v_and_b32 v5, 3, v2
    v_lshrrev_b32 v6, 2, v2
    v_lshl_add_u32 v5, v6, 3, v5
    v_mul_lo_u32 v5, v5, s27
    v_and_b32 v6, 6, v2
    v_xor_b32 v6, v6, v3
    v_lshl_add_u32 v5, v6, 4, v5
    ''')
    a.e('s_waitcnt lgkmcnt(0)')
    srd(a, 12, 4, 2048 * 896)
    a.e(f'''
    s_mul_i32 s18, s27, 448
    s_cmp_lt_u32 s26, 3
    s_cselect_b32 s16, s6, s8
    s_cselect_b32 s17, s7, s9
    s_mov_b32 s19, 0x20000
    ''')
    srd(a, 20, 10, WS_SIZE)
    XR = 8
    for i in range(7):
        a.e(f'buffer_load_dwordx4 {vr(XR+4*i,4)}, v4, s[12:15], s28 offen offset:{i*128}')
    def dma(ks):
        for b in range(4):
            a.e(f's_add_u32 m0, s32, {(ks % 3) * 4096 + b * 1024}')
            a.e(f'buffer_load_dwordx4 v5, s[16:19], s29 offen lds')
            a.e(f's_add_u32 s29, s29, s{30 if b % 2 == 0 else 31}')
    a.e('''
    s_cmp_eq_u32 s24, 7
    s_cbranch_scc1 K1_W7
    ''')
    for ks in range(3):
        dma(ks)
    a.e('''
    s_waitcnt vmcnt(12)
    s_branch K1_LN
    K1_W7:
    s_waitcnt vmcnt(0)
    K1_LN:
    ''')
    XF = 40
    for i in range(28):
        a.e(f'v_lshlrev_b32 v{XF+2*i}, 16, v{XR+i}')
        a.e(f'v_and_b32 v{XF+2*i+1}, 0xffff0000, v{XR+i}')
    AC = 96
    for j in range(4):
        a.e(f'v_pk_add_f32 {vr(AC+2*j,2)}, {vr(XF+2*j,2)}, {vr(XF+8+2*j,2)}')
    for i in range(8, 28):
        j = i % 4
        a.e(f'v_pk_add_f32 {vr(AC+2*j,2)}, {vr(AC+2*j,2)}, {vr(XF+2*i,2)}')
    def red8(dst):
        a.e(f'''
        v_pk_add_f32 {vr(AC,2)}, {vr(AC,2)}, {vr(AC+2,2)}
        v_pk_add_f32 {vr(AC+4,2)}, {vr(AC+4,2)}, {vr(AC+6,2)}
        v_pk_add_f32 {vr(AC,2)}, {vr(AC,2)}, {vr(AC+4,2)}
        v_add_f32 v{dst}, v{AC}, v{AC+1}
        v_add_f32_dpp v{dst}, v{dst}, v{dst} quad_perm:[1,0,3,2] row_mask:0xf bank_mask:0xf
        v_add_f32_dpp v{dst}, v{dst}, v{dst} quad_perm:[2,3,0,1] row_mask:0xf bank_mask:0xf
        v_add_f32_dpp v{dst}, v{dst}, v{dst} row_half_mirror row_mask:0xf bank_mask:0xf
        ''')
    red8(104)
    a.e(f'''
    v_mul_f32 v104, {f32(-1.0/448)}, v104
    v_mov_b32 v105, v104
    ''')
    for i in range(28):
        a.e(f'v_pk_add_f32 {vr(XF+2*i,2)}, {vr(XF+2*i,2)}, v[104:105]')
    for j in range(4):
        a.e(f'v_pk_mul_f32 {vr(AC+2*j,2)}, {vr(XF+2*j,2)}, {vr(XF+2*j,2)}')
    for i in range(4, 28):
        j = i % 4
        a.e(f'v_pk_fma_f32 {vr(AC+2*j,2)}, {vr(XF+2*i,2)}, {vr(XF+2*i,2)}, {vr(AC+2*j,2)}')
    red8(104)
    a.e(f'''
    v_mov_b32 v106, {f32(1e-5)}
    v_fmac_f32 v106, {f32(1.0/448)}, v104
    v_rsq_f32 v104, v106
    v_mov_b32 v105, v104
    ''')
    a.e(f'''
    s_mov_b32 s34, 0x66
    s_lshr_b32 s33, s34, s26
    s_and_b32 s33, s33, 1
    s_lshl_b32 s34, s24, 3
    s_lshr_b32 s35, s24, 2
    s_lshl_b32 s35, s35, 5
    s_and_b32 s36, s24, 3
    s_lshl_b32 s36, s36, 2
    s_add_u32 s35, s35, s36
    s_cmp_eq_u32 s33, 1
    s_cselect_b32 s34, s35, s34
    s_cselect_b32 s35, 4, 2
    v_lshrrev_b32 v6, 5, v0
    v_lshlrev_b32 v6, s35, v6
    v_and_b32 v7, 3, v2
    v_add3_u32 v6, v6, v7, s34
    ''')
    a.e(f'''
    v_lshlrev_b32 v7, 7, v6
    v_bfe_u32 v6, v6, 1, 3
    v_xor_b32 v6, v6, v3
    v_lshl_add_u32 v7, v6, 4, v7
    ''')
    for i in range(7):
        for j in range(4):
            k = 4 * i + j
            a.e(f'v_pk_mul_f32 {vr(XF+2*k,2)}, {vr(XF+2*k,2)}, v[104:105]')
        for j in range(4):
            k = 4 * i + j
            a.e(f'v_cvt_pk_bf16_f32 v{XR+k}, v{XF+2*k}, v{XF+2*k+1}')
        a.e(f'ds_write_b128 v7, {vr(XR+4*i,4)} offset:{XN + i*8192}')
    a.e(f'''
    v_and_b32 v2, 15, v0
    v_lshrrev_b32 v3, 4, v0
    v_lshrrev_b32 v6, 1, v2
    v_xor_b32 v6, v6, v3
    v_lshlrev_b32 v6, 4, v6
    v_lshl_add_u32 v110, v2, 7, v6
    v_xor_b32 v111, 64, v110
    ''')
    a.e(f'''
    v_bfe_u32 v6, v0, 2, 3
    v_lshrrev_b32 v7, 5, v0
    v_lshlrev_b32 v7, 11, v7
    v_lshl_add_u32 v7, v6, 7, v7
    v_and_b32 v8, 3, v0
    v_lshl_add_u32 v7, v8, 3, v7
    v_add_u32 v7, s32, v7
    v_lshrrev_b32 v6, 1, v6
    v_lshlrev_b32 v6, 5, v6
    ''')
    for t in range(4):
        a.e(f'v_xor_b32 v8, {t*32}, v6')
        a.e(f'v_add_u32 v{112+t}, v7, v8')
    a.e('''
    s_waitcnt lgkmcnt(0)
    s_barrier
    s_cmp_eq_u32 s24, 7
    s_cbranch_scc1 K1_EXIT
    ''')
    ACC = 128
    FR = 8
    def acc(T, nt): return ACC + (T * 4 + nt) * 4
    def reads(ks):
        s = ks & 1
        for T in range(4):
            a.e(f'ds_read_b128 {vr(FR+32*s+4*T,4)}, v{110 + (ks & 1)} offset:{XN + (ks>>1)*8192 + T*2048}')
        for t in range(4):
            for h in range(2):
                a.e(f'ds_read_b64_tr_b16 {vr(FR+32*s+16+4*t+2*h,2)}, v{112+t} offset:{(ks % 3)*4096 + h*1024}')
    def mainloop(orientD):
        a.e('s_waitcnt vmcnt(8)')
        reads(0)
        for ks in range(14):
            if ks + 1 < 14:
                a.e(f's_waitcnt vmcnt({4 if ks + 2 < 14 else 0})')
                reads(ks + 1)
                a.e('s_waitcnt lgkmcnt(12)')
            else:
                a.e('s_waitcnt lgkmcnt(0)')
            if ks + 3 < 14:
                dma(ks + 3)
            s = ks & 1
            for T in range(4):
                for nt in range(4):
                    xa = vr(FR+32*s+4*T, 4); wb = vr(FR+32*s+16+4*nt, 4)
                    d = vr(acc(T, nt), 4)
                    c = '0' if ks == 0 else d
                    if orientD:
                        a.e(f'v_mfma_f32_16x16x32_bf16 {d}, {xa}, {wb}, {c}')
                    else:
                        a.e(f'v_mfma_f32_16x16x32_bf16 {d}, {wb}, {xa}, {c}')
    TMP = 72
    CON = 104
    def gelu_consts():
        a.e(f'''
        v_mov_b32 v{CON}, {f32(GC0)}
        v_mov_b32 v{CON+1}, {f32(GC0)}
        v_mov_b32 v{CON+2}, {f32(GC1)}
        v_mov_b32 v{CON+3}, {f32(GC1)}
        v_mov_b32 v{CON+4}, 1.0
        v_mov_b32 v{CON+5}, 1.0
        ''')
    def gelu(regs):
        T = [TMP + 2 * i for i in range(len(regs))]
        for x, t in zip(regs, T): a.e(f'v_pk_mul_f32 {vr(t,2)}, {vr(x,2)}, {vr(x,2)}')
        for x, t in zip(regs, T): a.e(f'v_pk_fma_f32 {vr(t,2)}, {vr(t,2)}, {vr(CON+2,2)}, {vr(CON,2)}')
        for x, t in zip(regs, T): a.e(f'v_pk_mul_f32 {vr(t,2)}, {vr(t,2)}, {vr(x,2)}')
        for x, t in zip(regs, T):
            a.e(f'v_exp_f32 v{t}, v{t}'); a.e(f'v_exp_f32 v{t+1}, v{t+1}')
        for x, t in zip(regs, T): a.e(f'v_pk_add_f32 {vr(t,2)}, {vr(t,2)}, {vr(CON+4,2)}')
        for x, t in zip(regs, T):
            a.e(f'v_rcp_f32 v{t}, v{t}'); a.e(f'v_rcp_f32 v{t+1}, v{t+1}')
        for x, t in zip(regs, T): a.e(f'v_pk_mul_f32 {vr(x,2)}, {vr(x,2)}, {vr(t,2)}')
    def phi_consts():
        a.e(f'''
        v_mov_b32 v{CON}, {f32(LOG2E)}
        v_mov_b32 v{CON+1}, {f32(LOG2E)}
        v_mov_b32 v{CON+2}, {f32(1e-6)}
        v_mov_b32 v{CON+3}, {f32(1e-6)}
        ''')
    def phi(regs):
        T = [TMP + 2 * i for i in range(len(regs))]
        for x, t in zip(regs, T): a.e(f'v_pk_mul_f32 {vr(t,2)}, {vr(x,2)}, {vr(CON,2)}')
        for x, t in zip(regs, T):
            a.e(f'v_exp_f32_e64 v{t}, v{t} clamp'); a.e(f'v_exp_f32_e64 v{t+1}, v{t+1} clamp')
        for x, t in zip(regs, T):
            a.e(f'v_max_f32 v{x}, 0, v{x}'); a.e(f'v_max_f32 v{x+1}, 0, v{x+1}')
        for x, t in zip(regs, T): a.e(f'v_pk_add_f32 {vr(x,2)}, {vr(x,2)}, {vr(t,2)}')
        for x, t in zip(regs, T): a.e(f'v_pk_add_f32 {vr(x,2)}, {vr(x,2)}, {vr(CON+2,2)}')
    PKD = 8
    def pack(dst, r0, r1):
        a.e(f'''
        v_cvt_pk_bf16_f32 v{dst}, v{r0}, v{r0+1}
        v_cvt_pk_bf16_f32 v{dst+1}, v{r0+2}, v{r0+3}
        v_cvt_pk_bf16_f32 v{dst+2}, v{r1}, v{r1+1}
        v_cvt_pk_bf16_f32 v{dst+3}, v{r1+2}, v{r1+3}
        ''')
    a.e('''
    s_cmp_eq_u32 s33, 1
    s_cbranch_scc1 K1_D
    ''')
    mainloop(False)
    a.e('''
    s_cmp_eq_u32 s26, 0
    s_cbranch_scc1 K1_Q
    ''')
    gelu_consts()
    a.e(f'''
    s_mul_i32 s34, s25, {4*28}
    s_sub_u32 s35, s26, 3
    s_mul_i32 s35, s35, 14
    s_add_u32 s34, s34, s35
    s_lshl_b32 s35, s24, 1
    s_add_u32 s34, s34, s35
    s_lshl_b32 s34, s34, 10
    s_add_u32 s34, s34, {Z1_OFF}
    v_lshlrev_b32 v4, 4, v0
    ''')
    for T in range(4):
        gelu([acc(T, 0) + 2 * i for i in range(8)])
        for u in range(2):
            d = PKD + (T * 2 + u) * 4
            pack(d, acc(T, 2*u), acc(T, 2*u+1))
            a.e(f'buffer_store_dwordx4 {vr(d,4)}, v4, s[20:23], s34 offen offset:{u*1024}')
        if T < 3:
            a.e(f's_add_u32 s34, s34, {28*1024}')
    a.e('s_branch K1_END')
    a.label('K1_Q'); a.fence(8)
    phi_consts()
    a.e(f'''
    s_lshl_b32 s34, s24, 4
    v_lshrrev_b32 v2, 4, v0
    v_add_u32 v2, s34, v2
    v_and_b32 v3, 15, v0
    v_lshlrev_b32 v3, 4, v3
    s_lshl_b32 s34, s25, 12
    s_add_u32 s34, s34, {PQ_OFF}
    ''')
    for nt in range(4):
        a.e(f'''
        v_add_u32 v4, {4*nt}, v2
        v_mul_u32_u24 v5, 147, v4
        v_lshrrev_b32 v5, 10, v5
        v_mul_u32_u24 v6, 7, v5
        v_sub_u32 v6, v4, v6
        v_lshl_add_u32 v5, v5, 17, v3
        v_and_b32 v7, 3, v6
        v_lshl_add_u32 v5, v7, 8, v5
        v_lshrrev_b32 v6, 2, v6
        v_lshl_add_u32 v{112+nt}, v6, 3, v5
        ''')
    for T in range(4):
        phi([acc(T, 0) + 2 * i for i in range(8)])
        for nt in range(4):
            d = PKD + (T * 4 + nt) * 2
            r = acc(T, nt)
            a.e(f'''
            v_cvt_pk_bf16_f32 v{d}, v{r}, v{r+1}
            v_cvt_pk_bf16_f32 v{d+1}, v{r+2}, v{r+3}
            buffer_store_dwordx2 {vr(d,2)}, v{112+nt}, s[20:23], s34 offen offset:{T*1024}
            ''')
    a.e('s_branch K1_END')
    a.label('K1_D')
    mainloop(True)
    a.e('''
    s_cmp_ge_u32 s26, 5
    s_cbranch_scc1 K1_Z2
    ''')
    phi_consts()
    a.e(f'''
    s_lshl_b32 s34, s24, 6
    v_and_b32 v2, 15, v0
    v_add_u32 v2, s34, v2
    v_lshrrev_b32 v3, 4, v0
    v_lshlrev_b32 v3, 8, v3
    s_lshl_b32 s34, s25, 12
    s_lshl_b32 s35, s26, 21
    s_add_u32 s34, s34, s35
    ''')
    for nt in range(4):
        a.e(f'''
        v_add_u32 v4, {16*nt}, v2
        v_lshrrev_b32 v5, 2, v4
        v_mul_u32_u24 v5, 147, v5
        v_lshrrev_b32 v5, 10, v5
        v_mul_u32_u24 v6, 28, v5
        v_sub_u32 v6, v4, v6
        v_lshl_add_u32 v5, v5, 17, v3
        v_and_b32 v7, 15, v6
        v_lshl_add_u32 v5, v7, 4, v5
        v_lshrrev_b32 v6, 4, v6
        v_lshl_add_u32 v{112+nt}, v6, 10, v5
        ''')
    a.e('''
    s_cmp_eq_u32 s26, 2
    s_cbranch_scc1 K1_KVST
    ''')
    for T in range(4):
        phi([acc(T, 0) + 2 * i for i in range(8)])
    a.label('K1_KVST')
    for u in range(2):
        for nt in range(4):
            d = PKD + (u * 4 + nt) * 4
            pack(d, acc(2*u, nt), acc(2*u+1, nt))
            a.e(f'buffer_store_dwordx4 {vr(d,4)}, v{112+nt}, s[20:23], s34 offen offset:{u*2048}')
    a.e('s_branch K1_END')
    a.label('K1_Z2'); a.fence(8)
    gelu_consts()
    a.e(f'''
    s_sub_u32 s34, s26, 5
    s_mul_i32 s34, s34, 14
    s_lshl_b32 s35, s24, 1
    s_add_u32 s34, s34, s35
    s_lshl_b32 s34, s34, 17
    s_lshl_b32 s35, s25, 12
    s_add_u32 s34, s34, s35
    s_add_u32 s34, s34, {ZZ_OFF}
    s_add_u32 s35, s34, 0x20000
    v_lshlrev_b32 v4, 4, v0
    ''')
    SS = 192
    QQ = 208
    for T in range(4):
        gelu([acc(T, 0) + 2 * i for i in range(8)])
        for pr in range(2):
            s = SS + 4 * T + 2 * pr; q = QQ + 4 * T + 2 * pr
            y = [acc(T, nt) + 2 * pr for nt in range(4)]
            a.e(f'''
            v_pk_add_f32 {vr(s,2)}, {vr(y[0],2)}, {vr(y[1],2)}
            v_pk_mul_f32 {vr(q,2)}, {vr(y[0],2)}, {vr(y[0],2)}
            v_pk_add_f32 {vr(s,2)}, {vr(s,2)}, {vr(y[2],2)}
            v_pk_fma_f32 {vr(q,2)}, {vr(y[1],2)}, {vr(y[1],2)}, {vr(q,2)}
            v_pk_add_f32 {vr(s,2)}, {vr(s,2)}, {vr(y[3],2)}
            v_pk_fma_f32 {vr(q,2)}, {vr(y[2],2)}, {vr(y[2],2)}, {vr(q,2)}
            v_pk_fma_f32 {vr(q,2)}, {vr(y[3],2)}, {vr(y[3],2)}, {vr(q,2)}
            ''')
        if T & 1:
            u = T >> 1
            for nt in range(4):
                d = PKD + (u * 4 + nt) * 4
                pack(d, acc(2*u, nt), acc(2*u+1, nt))
                a.e(f'buffer_store_dwordx4 {vr(d,4)}, v4, s[20:23], s{34 + (nt>>1)} offen offset:{u*2048 + (nt&1)*1024}')
    O1 = 224
    O2 = 240
    for k, base in enumerate((SS, QQ)):
        for i in range(8):
            a.e(f'v_add_f32_dpp v{O1+8*k+i}, v{base+i}, v{base+i} row_ror:8 row_mask:0xf bank_mask:0x3')
        for i in range(8):
            a.e(f'v_add_f32_dpp v{O1+8*k+i}, v{base+8+i}, v{base+8+i} row_ror:8 row_mask:0xf bank_mask:0xc')
    for k in range(2):
        for i in range(4):
            a.e(f'v_add_f32_dpp v{O2+2*i+k}, v{O1+8*k+i}, v{O1+8*k+i} row_ror:12 row_mask:0xf bank_mask:0x5')
        for i in range(4):
            a.e(f'v_add_f32_dpp v{O2+2*i+k}, v{O1+8*k+4+i}, v{O1+8*k+4+i} row_ror:4 row_mask:0xf bank_mask:0xa')
    for i in range(8):
        a.e(f'v_add_f32_dpp v{O2+i}, v{O2+i}, v{O2+i} quad_perm:[1,0,3,2] row_mask:0xf bank_mask:0xf')
    for i in range(8):
        a.e(f'v_add_f32_dpp v{O2+i}, v{O2+i}, v{O2+i} quad_perm:[2,3,0,1] row_mask:0xf bank_mask:0xf')
    a.e(f'''
    v_bfe_u32 v2, v0, 3, 1
    v_lshlrev_b32 v2, 8, v2
    v_lshrrev_b32 v3, 4, v0
    v_lshl_add_u32 v2, v3, 6, v2
    v_bfe_u32 v3, v0, 2, 1
    v_lshl_add_u32 v2, v3, 5, v2
    v_add_u32 v2, s32, v2
    s_mov_b32 s36, 0x11111111
    s_mov_b32 s37, 0x11111111
    s_mov_b64 exec, s[36:37]
    ds_write_b128 v2, {vr(O2,4)}
    ds_write_b128 v2, {vr(O2+4,4)} offset:16
    s_mov_b64 exec, -1
    s_waitcnt lgkmcnt(0)
    s_barrier
    s_cmp_lg_u32 s24, 0
    s_cbranch_scc1 K1_END
    v_lshlrev_b32 v2, 3, v0
    v_add_u32 v3, {RING0 + 3*RING}, v2
    v_add_u32 v5, {RING0}, v2
    ''')
    for w in range(7):
        base = 5 if w < 3 else 3
        off = (w if w < 3 else w - 3) * RING
        a.e(f'ds_read_b64 {vr(40+2*w,2)}, v{base} offset:{off}')
    a.e(f'''
    s_sub_u32 s34, s26, 5
    s_lshl_b32 s34, s34, 14
    s_lshl_b32 s35, s25, 9
    s_add_u32 s34, s34, s35
    s_add_u32 s34, s34, {ST_OFF}
    s_waitcnt lgkmcnt(0)
    v_pk_add_f32 v[40:41], v[40:41], v[42:43]
    v_pk_add_f32 v[44:45], v[44:45], v[46:47]
    v_pk_add_f32 v[48:49], v[48:49], v[50:51]
    v_pk_add_f32 v[40:41], v[40:41], v[52:53]
    v_pk_add_f32 v[44:45], v[44:45], v[48:49]
    v_pk_add_f32 v[40:41], v[40:41], v[44:45]
    buffer_store_dwordx2 v[40:41], v2, s[20:23], s34 offen
    ''')
    a.label('K1_END')
    stamp_end(a, 0, 20, 24)
    a.label('K1_EXIT')
    a.e('s_endpgm')
    return dict(name='k1_kernel', grid=224, block=512, lds=RING0 + 7 * RING, vgpr=256, sgpr=96)

def gen_k2(a):
    kernel_head(a, 'k2_kernel')
    AB = 0; RO = 32768; MO = 40960; CO = 45056
    stamp_begin(a)
    a.e(f'''
    s_cmp_ge_u32 s2, 240
    s_cbranch_scc1 K2_EXIT
    s_load_dwordx4 s[4:7], s[0:1], 40
    s_load_dwordx2 s[10:11], s[0:1], 80
    v_lshrrev_b32 v1, 6, v0
    v_mov_b32 v9, v0
    v_and_b32 v0, 63, v0
    v_readfirstlane_b32 s24, v1
    s_and_b32 s25, s2, 7
    s_lshl_b32 s25, s25, 2
    s_lshr_b32 s26, s2, 3
    s_and_b32 s27, s26, 3
    s_add_u32 s25, s25, s27
    s_lshr_b32 s26, s26, 2
    s_waitcnt lgkmcnt(0)
    ''')
    srd(a, 12, 4, 2048 * 4096)
    srd(a, 16, 6, 4096)
    srd(a, 20, 10, WS_SIZE)
    a.e('''
    s_cmp_ge_u32 s2, 224
    s_cbranch_scc1 K2_ATT
    ''')
    a.e(f'''
    v_lshlrev_b32 v2, 5, v9
    s_mov_b32 s28, {ST_OFF}
    s_mov_b32 s29, {ST_OFF + 16384}
    buffer_load_dwordx4 v[12:15], v2, s[20:23], s28 offen
    buffer_load_dwordx4 v[16:19], v2, s[20:23], s28 offen offset:16
    buffer_load_dwordx4 v[20:23], v2, s[20:23], s29 offen
    buffer_load_dwordx4 v[24:27], v2, s[20:23], s29 offen offset:16
    s_cmp_ge_u32 s24, 4
    s_cbranch_scc1 K2_PROD
    ''')
    def stats_compute():
        a.e(f'''
        v_pk_add_f32 v[12:13], v[12:13], v[20:21]
        v_pk_add_f32 v[14:15], v[14:15], v[22:23]
        v_pk_add_f32 v[16:17], v[16:17], v[24:25]
        v_pk_add_f32 v[18:19], v[18:19], v[26:27]
        ''')
        for i in range(4):
            s = 12 + 2 * i
            a.e(f'''
            v_mul_f32 v{s}, {f32(1.0/896)}, v{s}
            v_mul_f32 v{s+1}, {f32(1.0/896)}, v{s+1}
            v_fma_f32 v{s+1}, -v{s}, v{s}, v{s+1}
            v_max_f32 v{s+1}, 0, v{s+1}
            v_add_f32 v{s+1}, {f32(1e-5)}, v{s+1}
            v_rsq_f32 v{20+i}, v{s+1}
            ''')
        a.e(f'''
        v_cvt_pk_bf16_f32 v24, v12, v14
        v_cvt_pk_bf16_f32 v25, v16, v18
        v_lshlrev_b32 v2, 4, v9
        v_lshlrev_b32 v3, 3, v9
        ds_write_b128 v2, v[20:23] offset:{RO}
        ds_write_b64 v3, v[24:25] offset:{MO}
        s_waitcnt lgkmcnt(0)
        s_barrier
        ''')
    NST = 16
    CD = 5
    ZB = 96
    a.e(f'''
    s_lshl_b32 s30, s26, 2
    s_add_u32 s30, s30, s24
    s_lshl_b32 s31, s30, 17
    s_add_u32 s31, s31, {ZZ_OFF}
    v_lshlrev_b32 v4, 4, v0
    v_add_u32 v5, 0x1000, v4
    ''')
    def zload(st):
        r = ZB + (st % CD) * 32
        for j in range(8):
            a.e(f'buffer_load_dwordx4 {vr(r+4*j,4)}, v{4 + j//4}, s[20:23], s31 offen offset:{(j%4)*1024}')
        a.e('s_add_u32 s31, s31, 8192')
    for st in range(CD):
        zload(st)
    a.e(f's_waitcnt vmcnt({CD*8})')
    stats_compute()
    a.e(f'''
    v_and_b32 v2, 15, v0
    v_lshrrev_b32 v3, 4, v0
    v_lshrrev_b32 v6, 1, v2
    v_xor_b32 v6, v6, v3
    v_lshlrev_b32 v6, 4, v6
    v_lshl_add_u32 v6, v2, 7, v6
    v_lshlrev_b32 v36, 4, v3
    ''')
    for i in range(4):
        a.e(f'''
        s_add_u32 s{40+i}, s24, {i}
        s_and_b32 s{40+i}, s{40+i}, 3
        s_lshl_b32 s32, s{40+i}, 11
        v_add_u32 v{28+2*i}, s32, v6
        v_xor_b32 v{29+2*i}, 64, v{28+2*i}
        ''')
    ACC = 40
    CAC = 72
    AF = [8, 76]
    def creads(st, kk):
        s = AF[kk & 1]
        for i in range(4):
            a.e(f'ds_read_b128 {vr(s+4*i,4)}, v{28+2*i+(kk&1)} offset:{AB + (st&1)*16384 + (kk>>1)*8192}')
        a.e(f'ds_read_b128 {vr(s+16,4)}, v36 offset:{MO + (128*st + 32*kk)*2}')
    for st in range(NST):
        a.e('s_barrier')
        creads(st, 0)
        rem = min(CD - 1, NST - 1 - st)
        extra = 0
        if st >= NST - CD + 1:
            extra = 8
        a.e(f's_waitcnt vmcnt({rem*8 + extra})')
        zr = ZB + (st % CD) * 32
        for kk in range(4):
            if kk < 3:
                creads(st, kk + 1)
                a.e('s_waitcnt lgkmcnt(5)')
            else:
                a.e('s_waitcnt lgkmcnt(0)')
            s = AF[kk & 1]
            first = (st == 0 and kk == 0)
            for i in range(4):
                for ft in range(2):
                    d = vr(ACC + (ft * 4 + i) * 4, 4)
                    a.e(f'v_mfma_f32_16x16x32_bf16 {d}, {vr(zr + (kk*2+ft)*4, 4)}, {vr(s+4*i,4)}, {"0" if first else d}')
            a.e(f'v_mfma_f32_16x16x32_bf16 {vr(CAC,4)}, {vr(s+16,4)}, {vr(s,4)}, {"0" if first else vr(CAC,4)}')
        if st + CD < NST:
            zload(st + CD)
        if st == NST - CD:
            er = ZB + (st % CD) * 32
            a.e('v_and_b32 v2, 15, v0')
            a.e('v_lshlrev_b32 v2, 1, v2')
            for i in range(4):
                a.e(f'''
                s_lshl_b32 s32, s25, 2
                s_add_u32 s32, s32, s{40+i}
                s_lshl_b32 s33, s32, 5
                s_mul_i32 s32, s32, 28
                s_add_u32 s32, s32, s30
                s_lshl_b32 s32, s32, 10
                s_add_u32 s32, s32, {Z1_OFF}
                buffer_load_dwordx4 {vr(er+4*i,4)}, v4, s[20:23], s32 offen
                buffer_load_ushort v{er+16+i}, v2, s[16:19], s33 offen
                ''')
            ER = er
    a.e(f'''
    v_and_b32 v2, 15, v0
    v_lshlrev_b32 v2, 2, v2
    s_lshl_b32 s32, s24, 6
    v_add_u32 v3, s32, v2
    ds_write_b32 v3, v{CAC} offset:{CO}
    s_waitcnt lgkmcnt(0)
    s_barrier
    ''')
    for i in range(4):
        a.e(f'''
        s_lshl_b32 s32, s{40+i}, 6
        v_add_u32 v3, s32, v2
        ds_read_b32 v{8+2*i}, v3 offset:{CO}
        ''')
    a.e('s_waitcnt vmcnt(0) lgkmcnt(0)')
    for i in range(4):
        a.e(f'''
        v_lshlrev_b32 v{ER+16+i}, 16, v{ER+16+i}
        v_sub_f32 v{8+2*i}, v{ER+16+i}, v{8+2*i}
        v_mov_b32 v{9+2*i}, v{8+2*i}
        ''')
    for i in range(4):
        z = ER + 4 * i
        t = 76
        for j in range(4):
            a.e(f'v_lshlrev_b32 v{t+2*j}, 16, v{z+j}')
            a.e(f'v_and_b32 v{t+2*j+1}, 0xffff0000, v{z+j}')
        for j in range(4):
            r = ACC + ((j >> 1) * 4 + i) * 4 + (j & 1) * 2
            a.e(f'v_pk_add_f32 {vr(r,2)}, {vr(r,2)}, {vr(8+2*i,2)}')
        for j in range(4):
            r = ACC + ((j >> 1) * 4 + i) * 4 + (j & 1) * 2
            a.e(f'v_pk_mul_f32 {vr(r,2)}, {vr(r,2)}, {vr(t+2*j,2)}')
        for j in range(4):
            r = ACC + ((j >> 1) * 4 + i) * 4 + (j & 1) * 2
            a.e(f'v_cvt_pk_bf16_f32 v{z+j}, v{r}, v{r+1}')
        a.e(f'''
        s_lshl_b32 s32, s25, 2
        s_add_u32 s32, s32, s{40+i}
        s_mul_i32 s32, s32, 42
        s_add_u32 s32, s32, s30
        s_lshl_b32 s32, s32, 10
        s_add_u32 s32, s32, {ACT_OFF + 14*1024}
        buffer_store_dwordx4 {vr(z,4)}, v4, s[20:23], s32 offen
        ''')
    a.e('s_branch K2_END')
    a.label('K2_PROD')
    PD = 8
    PB = 64
    a.e(f'''
    s_sub_u32 s30, s24, 4
    s_lshl_b32 s31, s25, 2
    s_add_u32 s31, s31, s30
    s_lshl_b32 s40, s31, 16
    s_add_u32 s41, s40, 0x4000
    s_add_u32 s42, s40, 0x8000
    s_add_u32 s43, s40, 0xc000
    v_lshrrev_b32 v3, 4, v0
    v_and_b32 v6, 15, v0
    v_lshlrev_b32 v4, 12, v3
    v_lshl_add_u32 v4, v6, 4, v4
    ''')
    def aload(st):
        r = PB + (st % PD) * 16
        for q in range(4):
            a.e(f'buffer_load_dwordx4 {vr(r+4*q,4)}, v4, s[12:15], s{40+q} offen offset:{st*256}')
    for st in range(PD):
        aload(st)
    a.e(f's_waitcnt vmcnt({PD*4})')
    stats_compute()
    a.e(f'''
    v_lshrrev_b32 v3, 4, v0
    v_and_b32 v6, 15, v0
    v_lshrrev_b32 v7, 3, v6
    v_lshlrev_b32 v7, 13, v7
    v_lshl_add_u32 v7, v3, 7, v7
    s_lshl_b32 s32, s30, 11
    v_add_u32 v7, s32, v7
    v_and_b32 v8, 7, v0
    v_lshrrev_b32 v10, 5, v0
    v_xor_b32 v8, v8, v10
    v_lshlrev_b32 v36, 5, v6
    ''')
    for q in range(4):
        a.e(f'''
        v_xor_b32 v10, {2*q}, v8
        v_lshl_add_u32 v10, v10, 4, v7
        v_add_u32 v{28+q}, {q*512}, v10
        ''')
    RR = 40
    UT = 48
    for st in range(NST):
        a.e(f'ds_read_b128 {vr(RR,4)}, v36 offset:{RO + st*512}')
        a.e(f'ds_read_b128 {vr(RR+4,4)}, v36 offset:{RO + st*512 + 16}')
        rem = min(PD - 1, NST - 1 - st)
        a.e(f's_waitcnt vmcnt({rem*4}) lgkmcnt(0)')
        r = PB + (st % PD) * 16
        for q in range(4):
            t = UT + (q & 1) * 8
            for j in range(4):
                a.e(f'v_lshlrev_b32 v{t+2*j}, 16, v{r+4*q+j}')
                a.e(f'v_and_b32 v{t+2*j+1}, 0xffff0000, v{r+4*q+j}')
            for j in range(8):
                a.e(f'v_mul_f32 v{t+j}, v{t+j}, v{RR+j}')
            o = 12 + (q & 1) * 4
            for j in range(4):
                a.e(f'v_cvt_pk_bf16_f32 v{o+j}, v{t+2*j}, v{t+2*j+1}')
            a.e(f'ds_write_b128 v{28+q}, {vr(o,4)} offset:{AB + (st&1)*16384}')
            if q == 1:
                a.e('s_waitcnt lgkmcnt(0)')
        if st + PD < NST:
            aload(st + PD)
        a.e('s_waitcnt lgkmcnt(0)')
        a.e('s_barrier')
    a.e('s_branch K2_END')
    a.label('K2_ATT')
    a.e(f'''
    s_sub_u32 s26, s2, 224
    s_lshl_b32 s28, s26, 17
    s_lshl_b32 s29, s24, 14
    s_add_u32 s28, s28, s29
    s_add_u32 s29, s28, {PK_OFF}
    s_add_u32 s30, s28, {V_OFF}
    s_add_u32 s31, s28, {PQ_OFF}
    v_lshlrev_b32 v4, 4, v0
    ''')
    KB = 32
    VB = 96; QB = 160
    for kk in range(0, 8, 2):
        for j in range(4):
            a.e(f'buffer_load_dwordx4 {vr(KB+(kk*2+j)*4,4)}, v4, s[20:23], s29 offen offset:{j*1024}')
        for j in range(4):
            a.e(f'buffer_load_dwordx4 {vr(VB+(kk*2+j)*4,4)}, v4, s[20:23], s30 offen offset:{j*1024}')
        a.e('s_add_u32 s29, s29, 4096')
        a.e('s_add_u32 s30, s30, 4096')
    for j in range(16):
        a.e(f'buffer_load_dwordx4 {vr(QB+j*4,4)}, v4, s[20:23], s31 offen offset:{(j%4)*1024}')
        if j % 4 == 3: a.e('s_add_u32 s31, s31, 4096')
    a.e(f'''
    v_and_b32 v2, 15, v0
    v_cmp_eq_u32 vcc, 12, v2
    v_mov_b32 v3, 0x3f803f80
    ''')
    KA = 8
    for kk in range(8):
        if kk % 2 == 0:
            a.e(f's_waitcnt vmcnt({16 + (6-kk)*4})')
        v1 = VB + (kk * 2 + 1) * 4
        for j in range(4):
            a.e(f'v_cndmask_b32 v{v1+j}, v{v1+j}, v3, vcc')
        for dt in range(2):
            for et in range(2):
                d = vr(KA + (dt * 2 + et) * 4, 4)
                a.e(f'v_mfma_f32_16x16x32_bf16 {d}, {vr(KB+(kk*2+dt)*4,4)}, {vr(VB+(kk*2+et)*4,4)}, {"0" if kk == 0 else d}')
    a.e(f'''
    s_lshl_b32 s32, s24, 12
    v_add_u32 v5, s32, v4
    ''')
    for j in range(4):
        a.e(f'ds_write_b128 v5, {vr(KA+4*j,4)} offset:{j*1024}')
    a.e('s_waitcnt lgkmcnt(0)\ns_barrier')
    for w in range(8):
        for j in range(4):
            a.e(f'ds_read_b128 {vr(KB+(w*4+j)*4,4)}, v4 offset:{w*4096 + j*1024}')
        if w % 2 == 1:
            a.e('s_waitcnt lgkmcnt(0)')
    for step in (4, 2, 1):
        for w in range(step):
            for j in range(8):
                x = KB + w * 16 + 2 * j; y = KB + (w + step) * 16 + 2 * j
                a.e(f'v_pk_add_f32 {vr(x,2)}, {vr(x,2)}, {vr(y,2)}')
    KF = 8
    for et in range(2):
        for dt in range(2):
            r = KB + (dt * 2 + et) * 4
            a.e(f'v_cvt_pk_bf16_f32 v{KF+4*et+2*dt}, v{r}, v{r+1}')
            a.e(f'v_cvt_pk_bf16_f32 v{KF+4*et+2*dt+1}, v{r+2}, v{r+3}')
    a.e('v_cmp_lt_u32 vcc, 47, v0')
    for et in range(2):
        for j in (2, 3):
            a.e(f'v_cndmask_b32_e64 v{KF+4*et+j}, v{KF+4*et+j}, 0, vcc')
    for j in range(4):
        a.e(f'v_mov_b32_dpp v{KF+8+j}, v{KF+4+j} row_newbcast:12 row_mask:0xf bank_mask:0xf')
    a.e(f'''
    s_mul_i32 s32, s26, 7
    v_lshrrev_b32 v2, 4, v0
    v_add_u32 v2, s32, v2
    v_and_b32 v3, 15, v0
    v_lshlrev_b32 v3, 4, v3
    ''')
    for et in range(2):
        a.e(f'''
        v_add_u32 v5, {4*et}, v2
        v_lshrrev_b32 v6, 3, v5
        v_lshl_add_u32 v6, v6, 10, v3
        v_and_b32 v7, 3, v5
        v_lshl_add_u32 v6, v7, 8, v6
        v_bfe_u32 v7, v5, 2, 1
        v_lshl_add_u32 v{24+et}, v7, 3, v6
        ''')
    a.e(f'''
    v_mov_b32 v5, 0x7fffff00
    v_cndmask_b32 v25, v25, v5, vcc
    s_mul_i32 s32, s24, {16*42*1024}
    s_add_u32 s32, s32, {ACT_OFF}
    s_waitcnt vmcnt(0)
    ''')
    OB = 32
    for j0 in range(0, 16, 4):
        for j in range(j0, j0 + 4):
            q = QB + j * 4
            a.e(f'v_cndmask_b32_e64 v{q+2}, v{q+2}, 0, vcc')
            a.e(f'v_cndmask_b32_e64 v{q+3}, v{q+3}, 0, vcc')
        for j in range(j0, j0 + 4):
            q = QB + j * 4; o = OB + (j - j0 + (4 if (j0 // 4) % 2 else 0)) * 12
            for e in range(3):
                a.e(f'v_mfma_f32_16x16x32_bf16 {vr(o+4*e,4)}, {vr(KF+4*e,4)}, {vr(q,4)}, 0')
        for j in range(j0, j0 + 4):
            o = OB + (j - j0 + (4 if (j0 // 4) % 2 else 0)) * 12
            a.e(f'v_add_f32 v{o+8}, {f32(1e-6)}, v{o+8}')
            a.e(f'v_rcp_f32 v{o+8}, v{o+8}')
            a.e(f'v_mov_b32 v{o+9}, v{o+8}')
            for p in range(4):
                a.e(f'v_pk_mul_f32 {vr(o+2*p,2)}, {vr(o+2*p,2)}, {vr(o+8,2)}')
            q = QB + j * 4
            for p in range(4):
                a.e(f'v_cvt_pk_bf16_f32 v{q+p}, v{o+2*p}, v{o+2*p+1}')
            a.e(f'buffer_store_dwordx2 {vr(q,2)}, v24, s[20:23], s32 offen')
            a.e(f'buffer_store_dwordx2 {vr(q+2,2)}, v25, s[20:23], s32 offen')
            a.e(f's_add_u32 s32, s32, {42*1024}')
    a.label('K2_END')
    stamp_end(a, 1, 20, 24)
    a.label('K2_EXIT')
    a.e('s_endpgm')
    return dict(name='k2_kernel', grid=240, block=512, lds=45312, vgpr=256, sgpr=96)

def gen_k3(a):
    kernel_head(a, 'k3_kernel')
    stamp_begin(a)
    a.e(f'''
    s_cmp_ge_u32 s2, 224
    s_cbranch_scc1 K3_EXIT
    s_load_dwordx2 s[4:5], s[0:1], 0
    s_load_dwordx2 s[6:7], s[0:1], 16
    s_load_dwordx4 s[8:11], s[0:1], 56
    s_load_dwordx2 s[36:37], s[0:1], 80
    v_lshrrev_b32 v1, 6, v0
    v_and_b32 v0, 63, v0
    v_readfirstlane_b32 s24, v1
    s_and_b32 s25, s2, 7
    s_lshl_b32 s25, s25, 2
    s_lshr_b32 s26, s2, 3
    s_and_b32 s27, s26, 3
    s_add_u32 s25, s25, s27
    s_lshr_b32 s26, s26, 2
    ''')
    a.e(f'''
    v_lshrrev_b32 v2, 3, v0
    v_and_b32 v3, 7, v0
    v_and_b32 v6, 6, v2
    v_xor_b32 v6, v6, v3
    v_mul_u32_u24 v5, 896, v2
    v_lshl_add_u32 v5, v6, 4, v5
    v_lshlrev_b32 v4, 4, v0
    s_mul_i32 s28, s24, {8*896}
    s_lshl_b32 s29, s26, 7
    s_add_u32 s28, s28, s29
    s_lshl_b32 s30, s25, 2
    s_add_u32 s30, s30, s24
    s_mul_i32 s31, s30, {42*1024}
    s_add_u32 s31, s31, {ACT_OFF}
    s_lshl_b32 s32, s24, 10
    s_waitcnt lgkmcnt(0)
    ''')
    srd(a, 12, 4, 2048 * 896)
    srd(a, 16, 6, 448 * 896)
    srd(a, 40, 8, 896 * 896)
    srd(a, 44, 10, 2048 * 896)
    srd(a, 20, 36, WS_SIZE)
    AB = 64
    NSL = 36
    def issue(p):
        a.e(f's_add_u32 m0, s32, {(p % NSL) * 4096}')
        if p < 14:
            a.e(f's_add_u32 s33, s28, {p*32*896}')
            a.e(f'buffer_load_dwordx4 v5, s[16:19], s33 offen lds')
        else:
            a.e(f's_add_u32 s33, s28, {(p-14)*32*896}')
            a.e(f'buffer_load_dwordx4 v5, s[40:43], s33 offen lds')
        if p % 4 == 0 and p > 0:
            a.e('s_add_u32 s31, s31, 4096')
        a.e(f'buffer_load_dwordx4 {vr(AB+4*p,4)}, v4, s[20:23], s31 offen offset:{(p%4)*1024}')
    a.e(f'''
    v_and_b32 v2, 15, v0
    v_lshrrev_b32 v3, 4, v0
    v_mul_u32_u24 v6, 896, v2
    v_lshl_add_u32 v6, v3, 3, v6
    s_mul_i32 s34, s30, {16*896}
    s_add_u32 s34, s34, s29
    ''')
    XB = 232
    for nt in range(4):
        a.e(f'buffer_load_dwordx2 {vr(XB+2*nt,2)}, v6, s[12:15], s34 offen offset:{nt*32}')
    SG = 6
    PRE = 4
    for p in range(PRE * SG):
        issue(p)
    a.e(f'''
    v_bfe_u32 v8, v0, 2, 3
    v_lshrrev_b32 v7, 5, v0
    v_lshlrev_b32 v7, 10, v7
    v_lshl_add_u32 v7, v8, 7, v7
    v_and_b32 v9, 3, v0
    v_lshl_add_u32 v7, v9, 3, v7
    v_lshrrev_b32 v8, 1, v8
    v_lshlrev_b32 v8, 5, v8
    ''')
    for gI in range(3):
        for t in range(4):
            a.e(f'v_xor_b32 v9, {t*32}, v8')
            a.e(f'v_add3_u32 v{240+gI*4+t}, v7, v9, s35' if False else f'v_add_u32 v{240+gI*4+t}, v7, v9')
            if gI:
                a.e(f'v_add_u32 v{240+gI*4+t}, {gI*61440}, v{240+gI*4+t}')
    ACC = 8
    WF = [24, 40]
    def wreads(p):
        sl = p % NSL
        gI = sl // 15; off = (sl % 15) * 4096
        s = WF[p & 1]
        for t in range(4):
            for h in range(2):
                a.e(f'ds_read_b64_tr_b16 {vr(s+4*t+2*h,2)}, v{240+gI*4+t} offset:{off + h*2048}')
    NSTG = 7
    for sg in range(NSTG):
        rem = min(NSTG - sg - 1, PRE - 1)
        a.e(f's_waitcnt vmcnt({rem*SG*2})')
        a.e('s_barrier')
        wreads(sg * SG)
        for p in range(sg * SG, (sg + 1) * SG):
            if p + 1 < (sg + 1) * SG:
                wreads(p + 1)
                a.e('s_waitcnt lgkmcnt(8)')
            else:
                a.e('s_waitcnt lgkmcnt(0)')
            if p + PRE * SG < NSTG * SG:
                issue(p + PRE * SG)
            s = WF[p & 1]
            for nt in range(4):
                d = vr(ACC + 4 * nt, 4)
                a.e(f'v_mfma_f32_16x16x32_bf16 {d}, {vr(s+4*nt,4)}, {vr(AB+4*p,4)}, {"0" if p == 0 else d}')
    for nt in range(4):
        x = XB + 2 * nt; t = 24 + 4 * nt; r = ACC + 4 * nt
        a.e(f'''
        v_lshlrev_b32 v{t}, 16, v{x}
        v_and_b32 v{t+1}, 0xffff0000, v{x}
        v_lshlrev_b32 v{t+2}, 16, v{x+1}
        v_and_b32 v{t+3}, 0xffff0000, v{x+1}
        ''')
    for nt in range(4):
        x = XB + 2 * nt; t = 24 + 4 * nt; r = ACC + 4 * nt
        a.e(f'''
        v_pk_add_f32 {vr(t,2)}, {vr(t,2)}, {vr(r,2)}
        v_pk_add_f32 {vr(t+2,2)}, {vr(t+2,2)}, {vr(r+2,2)}
        v_cvt_pk_bf16_f32 v{x}, v{t}, v{t+1}
        v_cvt_pk_bf16_f32 v{x+1}, v{t+2}, v{t+3}
        buffer_store_dwordx2 {vr(x,2)}, v6, s[44:47], s34 offen offset:{nt*32}
        ''')
    stamp_end(a, 2, 20, 24)
    a.label('K3_EXIT')
    a.e('s_endpgm')
    return dict(name='k3_kernel', grid=224, block=256, lds=NSL * 4096, vgpr=256, sgpr=96)

def main(path, stamp=False):
    global STAMP
    STAMP = stamp
    a = Asm()
    ks = []
    a.raw('.amdgcn_target "amdgcn-amd-amdhsa--gfx950"\n.text')
    for g in (gen_k1, gen_k2, gen_k3):
        ks.append(g(a))
    head = ''
    for k in ks:
        head += f"; @launch kernel={k['name']} grid=({k['grid']},1,1) block=({k['block']},1,1) lds={k['lds']}\n"
    tail = '.section .rodata,"a"\n'
    for k in ks:
        tail += f'''.p2align 6
.amdhsa_kernel {k['name']}
  .amdhsa_next_free_vgpr {k['vgpr']}
  .amdhsa_next_free_sgpr {k['sgpr']}
  .amdhsa_accum_offset {min(256, k['vgpr'])}
  .amdhsa_group_segment_fixed_size 0
  .amdhsa_kernarg_size 88
  .amdhsa_user_sgpr_count 2
  .amdhsa_user_sgpr_kernarg_segment_ptr 1
  .amdhsa_system_sgpr_workgroup_id_x 1
.end_amdhsa_kernel
'''
    open(path, 'w').write(head + a.text() + tail)

if __name__ == '__main__':
    main(sys.argv[1] if len(sys.argv) > 1 else 'v1.s', stamp=(len(sys.argv) > 2))
```

```python
import sys, math
from asmlib import *

PQ_OFF   = 0x000000
PK_OFF   = 0x200000
V_OFF    = 0x400000
Z1_OFF   = 0x600000
ZZ_OFF   = 0xA00000
ACT_OFF  = 0xE00000
ST_OFF   = 0x1400000
DBG_OFF  = 0x1500000
WS_SIZE  = 0x1600000

LOG2E = 1.4426950408889634
GC0 = -2.0 * math.sqrt(2.0 / math.pi) * LOG2E
GC1 = GC0 * 0.044715

STAMP = False

def srd(a, d, base, size):
    a.e(f'''
    s_mov_b32 s{d}, s{base}
    s_mov_b32 s{d+1}, s{base+1}
    s_mov_b32 s{d+2}, {size}
    s_mov_b32 s{d+3}, 0x20000
    ''')

TS0 = 48
class TS:
    n = 0
def stamp_begin(a):
    if STAMP:
        a.e('s_memrealtime s[92:93]')
        for i in range(22):
            a.e(f's_mov_b32 s{TS0+2*i}, 0')
        TS.n = 0
        TM(a)

def TM(a, idx=None):
    if STAMP:
        if idx is not None: TS.n = idx
        assert TS.n < 22
        a.e(f's_memtime s[{TS0+2*TS.n}:{TS0+2*TS.n+1}]')
        TS.n += 1

def stamp_end(a, kidx, ws_srd, wave_s):
    if STAMP:
        TM(a, 20)
        a.e('s_waitcnt vmcnt(0)')
        TM(a, 21)
        a.e(f'''
        s_memrealtime s[94:95]
        s_waitcnt lgkmcnt(0)
        s_lshl_b32 s96, s2, 3
        s_add_u32 s96, s96, s{wave_s}
        s_lshl_b32 s96, s96, 7
        s_add_u32 s96, s96, {DBG_OFF + kidx * 0x40000}
        s_mov_b64 exec, -1
        v_mov_b32 v2, 0
        v_writelane_b32 v2, s92, 0
        v_writelane_b32 v2, s94, 1
        ''')
        for i in range(22):
            a.e(f'v_writelane_b32 v2, s{TS0+2*i}, {2+i}')
        a.e(f'''
        v_mbcnt_lo_u32_b32 v4, -1, 0
        v_lshlrev_b32 v4, 2, v4
        s_mov_b64 exec, 0xffffffff
        buffer_store_dword v2, v4, s[{ws_srd}:{ws_srd+3}], s96 offen
        ''')

def kernel_head(a, name):
    a.raw(f'.globl {name}\n.p2align 8\n.type {name},@function\n{name}:')
    a.hist = []

def gen_k1(a):
    kernel_head(a, 'k1_kernel')
    XN = 0
    RING0 = 57344
    RING = 12288
    stamp_begin(a)
    a.e(f'''
    s_cmp_ge_u32 s2, 224
    s_cbranch_scc1 K1_EXIT
    s_load_dwordx4 s[4:7], s[0:1], 0
    s_load_dwordx2 s[8:9], s[0:1], 32
    s_load_dwordx2 s[10:11], s[0:1], 80
    v_lshrrev_b32 v1, 6, v0
    v_and_b32 v0, 63, v0
    v_readfirstlane_b32 s24, v1
    s_and_b32 s25, s2, 7
    s_lshl_b32 s25, s25, 2
    s_lshr_b32 s26, s2, 3
    s_and_b32 s27, s26, 3
    s_add_u32 s25, s25, s27
    s_lshr_b32 s26, s26, 2
    ''')
    a.e(f'''
    v_lshrrev_b32 v2, 3, v0
    v_and_b32 v3, 7, v0
    v_mul_u32_u24 v4, 896, v2
    v_lshl_add_u32 v4, v3, 4, v4
    s_lshl_b32 s28, s25, 3
    s_add_u32 s28, s28, s24
    s_mul_i32 s28, s28, {8*896}
    ''')
    a.e(f'''
    s_movk_i32 s27, 2688
    s_cmp_lt_u32 s26, 3
    s_cselect_b32 s27, s27, 3584
    s_cselect_b32 s29, 0, 3
    s_sub_u32 s29, s26, s29
    s_mul_i32 s29, s29, 896
    s_lshl_b32 s30, s24, 7
    s_add_u32 s29, s29, s30
    s_lshl_b32 s30, s27, 2
    s_mul_i32 s31, s27, 12
    s_mul_i32 s32, s24, {RING}
    s_add_u32 s32, s32, {RING0}
    ''')
    a.e(f'''
    v_and_b32 v5, 3, v2
    v_lshrrev_b32 v6, 2, v2
    v_lshl_add_u32 v5, v6, 3, v5
    v_mul_lo_u32 v5, v5, s27
    v_and_b32 v6, 6, v2
    v_xor_b32 v6, v6, v3
    v_lshl_add_u32 v5, v6, 4, v5
    ''')
    a.e('s_waitcnt lgkmcnt(0)')
    srd(a, 12, 4, 2048 * 896)
    a.e(f'''
    s_mul_i32 s18, s27, 448
    s_cmp_lt_u32 s26, 3
    s_cselect_b32 s16, s6, s8
    s_cselect_b32 s17, s7, s9
    s_mov_b32 s19, 0x20000
    ''')
    srd(a, 20, 10, WS_SIZE)
    XR = 8
    for i in range(7):
        a.e(f'buffer_load_dwordx4 {vr(XR+4*i,4)}, v4, s[12:15], s28 offen offset:{i*128}')
    def dma(ks):
        for b in range(4):
            a.e(f's_add_u32 m0, s32, {(ks % 3) * 4096 + b * 1024}')
            a.e(f'buffer_load_dwordx4 v5, s[16:19], s29 offen lds')
            a.e(f's_add_u32 s29, s29, s{30 if b % 2 == 0 else 31}')
    a.e('''
    s_cmp_eq_u32 s24, 7
    s_cbranch_scc1 K1_W7
    ''')
    for ks in range(3):
        dma(ks)
    a.e('''
    s_waitcnt vmcnt(12)
    s_branch K1_LN
    K1_W7:
    s_waitcnt vmcnt(0)
    K1_LN:
    ''')
    TM(a)
    XF = 40
    for i in range(28):
        a.e(f'v_lshlrev_b32 v{XF+2*i}, 16, v{XR+i}')
        a.e(f'v_and_b32 v{XF+2*i+1}, 0xffff0000, v{XR+i}')
    AC = 96
    for j in range(4):
        a.e(f'v_pk_add_f32 {vr(AC+2*j,2)}, {vr(XF+2*j,2)}, {vr(XF+8+2*j,2)}')
    for i in range(8, 28):
        j = i % 4
        a.e(f'v_pk_add_f32 {vr(AC+2*j,2)}, {vr(AC+2*j,2)}, {vr(XF+2*i,2)}')
    def red8(dst):
        a.e(f'''
        v_pk_add_f32 {vr(AC,2)}, {vr(AC,2)}, {vr(AC+2,2)}
        v_pk_add_f32 {vr(AC+4,2)}, {vr(AC+4,2)}, {vr(AC+6,2)}
        v_pk_add_f32 {vr(AC,2)}, {vr(AC,2)}, {vr(AC+4,2)}
        v_add_f32 v{dst}, v{AC}, v{AC+1}
        v_add_f32_dpp v{dst}, v{dst}, v{dst} quad_perm:[1,0,3,2] row_mask:0xf bank_mask:0xf
        v_add_f32_dpp v{dst}, v{dst}, v{dst} quad_perm:[2,3,0,1] row_mask:0xf bank_mask:0xf
        v_add_f32_dpp v{dst}, v{dst}, v{dst} row_half_mirror row_mask:0xf bank_mask:0xf
        ''')
    red8(104)
    a.e(f'''
    v_mul_f32 v104, {f32(-1.0/448)}, v104
    v_mov_b32 v105, v104
    ''')
    for i in range(28):
        a.e(f'v_pk_add_f32 {vr(XF+2*i,2)}, {vr(XF+2*i,2)}, v[104:105]')
    for j in range(4):
        a.e(f'v_pk_mul_f32 {vr(AC+2*j,2)}, {vr(XF+2*j,2)}, {vr(XF+2*j,2)}')
    for i in range(4, 28):
        j = i % 4
        a.e(f'v_pk_fma_f32 {vr(AC+2*j,2)}, {vr(XF+2*i,2)}, {vr(XF+2*i,2)}, {vr(AC+2*j,2)}')
    red8(104)
    a.e(f'''
    v_mov_b32 v106, {f32(1e-5)}
    v_fmac_f32 v106, {f32(1.0/448)}, v104
    v_rsq_f32 v104, v106
    v_mov_b32 v105, v104
    ''')
    a.e(f'''
    s_mov_b32 s34, 0x66
    s_lshr_b32 s33, s34, s26
    s_and_b32 s33, s33, 1
    s_lshl_b32 s34, s24, 3
    s_lshr_b32 s35, s24, 2
    s_lshl_b32 s35, s35, 5
    s_and_b32 s36, s24, 3
    s_lshl_b32 s36, s36, 2
    s_add_u32 s35, s35, s36
    s_cmp_eq_u32 s33, 1
    s_cselect_b32 s34, s35, s34
    s_cselect_b32 s35, 4, 2
    v_lshrrev_b32 v6, 5, v0
    v_lshlrev_b32 v6, s35, v6
    v_and_b32 v7, 3, v2
    v_add3_u32 v6, v6, v7, s34
    ''')
    a.e(f'''
    v_lshlrev_b32 v7, 7, v6
    v_bfe_u32 v6, v6, 1, 3
    v_xor_b32 v6, v6, v3
    v_lshl_add_u32 v7, v6, 4, v7
    ''')
    for i in range(7):
        for j in range(4):
            k = 4 * i + j
            a.e(f'v_pk_mul_f32 {vr(XF+2*k,2)}, {vr(XF+2*k,2)}, v[104:105]')
        for j in range(4):
            k = 4 * i + j
            a.e(f'v_cvt_pk_bf16_f32 v{XR+k}, v{XF+2*k}, v{XF+2*k+1}')
        a.e(f'ds_write_b128 v7, {vr(XR+4*i,4)} offset:{XN + i*8192}')
    a.e(f'''
    v_and_b32 v2, 15, v0
    v_lshrrev_b32 v3, 4, v0
    v_lshrrev_b32 v6, 1, v2
    v_xor_b32 v6, v6, v3
    v_lshlrev_b32 v6, 4, v6
    v_lshl_add_u32 v110, v2, 7, v6
    v_xor_b32 v111, 64, v110
    ''')
    a.e(f'''
    v_bfe_u32 v6, v0, 2, 3
    v_lshrrev_b32 v7, 5, v0
    v_lshlrev_b32 v7, 11, v7
    v_lshl_add_u32 v7, v6, 7, v7
    v_and_b32 v8, 3, v0
    v_lshl_add_u32 v7, v8, 3, v7
    v_add_u32 v7, s32, v7
    v_lshrrev_b32 v6, 1, v6
    v_lshlrev_b32 v6, 5, v6
    ''')
    for t in range(4):
        a.e(f'v_xor_b32 v8, {t*32}, v6')
        a.e(f'v_add_u32 v{112+t}, v7, v8')
    TM(a)
    a.e('''
    s_waitcnt lgkmcnt(0)
    s_barrier
    s_cmp_eq_u32 s24, 7
    s_cbranch_scc1 K1_EXIT
    ''')
    TM(a)
    ACC = 128
    FR = 8
    def acc(T, nt): return ACC + (T * 4 + nt) * 4
    def reads(ks):
        s = ks & 1
        for T in range(4):
            a.e(f'ds_read_b128 {vr(FR+32*s+4*T,4)}, v{110 + (ks & 1)} offset:{XN + (ks>>1)*8192 + T*2048}')
        for t in range(4):
            for h in range(2):
                a.e(f'ds_read_b64_tr_b16 {vr(FR+32*s+16+4*t+2*h,2)}, v{112+t} offset:{(ks % 3)*4096 + h*1024}')
    def mainloop(orientD):
        a.e('s_waitcnt vmcnt(8)')
        reads(0)
        for ks in range(14):
            TM(a, 4 + ks)
            if ks + 1 < 14:
                a.e(f's_waitcnt vmcnt({4 if ks + 2 < 14 else 0})')
                reads(ks + 1)
                a.e('s_waitcnt lgkmcnt(12)')
            else:
                a.e('s_waitcnt lgkmcnt(0)')
            if ks + 3 < 14:
                dma(ks + 3)
            s = ks & 1
            for T in range(4):
                for nt in range(4):
                    xa = vr(FR+32*s+4*T, 4); wb = vr(FR+32*s+16+4*nt, 4)
                    d = vr(acc(T, nt), 4)
                    c = '0' if ks == 0 else d
                    if orientD:
                        a.e(f'v_mfma_f32_16x16x32_bf16 {d}, {xa}, {wb}, {c}')
                    else:
                        a.e(f'v_mfma_f32_16x16x32_bf16 {d}, {wb}, {xa}, {c}')
        TM(a, 18)
    TMP = 72
    CON = 104
    def gelu_consts():
        a.e(f'''
        v_mov_b32 v{CON}, {f32(GC0)}
        v_mov_b32 v{CON+1}, {f32(GC0)}
        v_mov_b32 v{CON+2}, {f32(GC1)}
        v_mov_b32 v{CON+3}, {f32(GC1)}
        v_mov_b32 v{CON+4}, 1.0
        v_mov_b32 v{CON+5}, 1.0
        ''')
    def gelu(regs):
        T = [TMP + 2 * i for i in range(len(regs))]
        for x, t in zip(regs, T): a.e(f'v_pk_mul_f32 {vr(t,2)}, {vr(x,2)}, {vr(x,2)}')
        for x, t in zip(regs, T): a.e(f'v_pk_fma_f32 {vr(t,2)}, {vr(t,2)}, {vr(CON+2,2)}, {vr(CON,2)}')
        for x, t in zip(regs, T): a.e(f'v_pk_mul_f32 {vr(t,2)}, {vr(t,2)}, {vr(x,2)}')
        for x, t in zip(regs, T):
            a.e(f'v_exp_f32 v{t}, v{t}'); a.e(f'v_exp_f32 v{t+1}, v{t+1}')
        for x, t in zip(regs, T): a.e(f'v_pk_add_f32 {vr(t,2)}, {vr(t,2)}, {vr(CON+4,2)}')
        for x, t in zip(regs, T):
            a.e(f'v_rcp_f32 v{t}, v{t}'); a.e(f'v_rcp_f32 v{t+1}, v{t+1}')
        for x, t in zip(regs, T): a.e(f'v_pk_mul_f32 {vr(x,2)}, {vr(x,2)}, {vr(t,2)}')
    def phi_consts():
        a.e(f'''
        v_mov_b32 v{CON}, {f32(LOG2E)}
        v_mov_b32 v{CON+1}, {f32(LOG2E)}
        v_mov_b32 v{CON+2}, {f32(1e-6)}
        v_mov_b32 v{CON+3}, {f32(1e-6)}
        ''')
    def phi(regs):
        T = [TMP + 2 * i for i in range(len(regs))]
        for x, t in zip(regs, T): a.e(f'v_pk_mul_f32 {vr(t,2)}, {vr(x,2)}, {vr(CON,2)}')
        for x, t in zip(regs, T):
            a.e(f'v_exp_f32_e64 v{t}, v{t} clamp'); a.e(f'v_exp_f32_e64 v{t+1}, v{t+1} clamp')
        for x, t in zip(regs, T):
            a.e(f'v_max_f32 v{x}, 0, v{x}'); a.e(f'v_max_f32 v{x+1}, 0, v{x+1}')
        for x, t in zip(regs, T): a.e(f'v_pk_add_f32 {vr(x,2)}, {vr(x,2)}, {vr(t,2)}')
        for x, t in zip(regs, T): a.e(f'v_pk_add_f32 {vr(x,2)}, {vr(x,2)}, {vr(CON+2,2)}')
    PKD = 8
    def pack(dst, r0, r1):
        a.e(f'''
        v_cvt_pk_bf16_f32 v{dst}, v{r0}, v{r0+1}
        v_cvt_pk_bf16_f32 v{dst+1}, v{r0+2}, v{r0+3}
        v_cvt_pk_bf16_f32 v{dst+2}, v{r1}, v{r1+1}
        v_cvt_pk_bf16_f32 v{dst+3}, v{r1+2}, v{r1+3}
        ''')
    a.e('''
    s_cmp_eq_u32 s33, 1
    s_cbranch_scc1 K1_D
    ''')
    mainloop(False)
    a.e('''
    s_cmp_eq_u32 s26, 0
    s_cbranch_scc1 K1_Q
    ''')
    gelu_consts()
    a.e(f'''
    s_mul_i32 s34, s25, {4*28}
    s_sub_u32 s35, s26, 3
    s_mul_i32 s35, s35, 14
    s_add_u32 s34, s34, s35
    s_lshl_b32 s35, s24, 1
    s_add_u32 s34, s34, s35
    s_lshl_b32 s34, s34, 10
    s_add_u32 s34, s34, {Z1_OFF}
    v_lshlrev_b32 v4, 4, v0
    ''')
    for T in range(4):
        gelu([acc(T, 0) + 2 * i for i in range(8)])
        for u in range(2):
            d = PKD + (T * 2 + u) * 4
            pack(d, acc(T, 2*u), acc(T, 2*u+1))
            a.e(f'buffer_store_dwordx4 {vr(d,4)}, v4, s[20:23], s34 offen offset:{u*1024}')
        if T < 3:
            a.e(f's_add_u32 s34, s34, {28*1024}')
    a.e('s_branch K1_END')
    a.label('K1_Q'); a.fence(8)
    phi_consts()
    a.e(f'''
    s_lshl_b32 s34, s24, 4
    v_lshrrev_b32 v2, 4, v0
    v_add_u32 v2, s34, v2
    v_and_b32 v3, 15, v0
    v_lshlrev_b32 v3, 4, v3
    s_lshl_b32 s34, s25, 12
    s_add_u32 s34, s34, {PQ_OFF}
    ''')
    for nt in range(4):
        a.e(f'''
        v_add_u32 v4, {4*nt}, v2
        v_mul_u32_u24 v5, 147, v4
        v_lshrrev_b32 v5, 10, v5
        v_mul_u32_u24 v6, 7, v5
        v_sub_u32 v6, v4, v6
        v_lshl_add_u32 v5, v5, 17, v3
        v_and_b32 v7, 3, v6
        v_lshl_add_u32 v5, v7, 8, v5
        v_lshrrev_b32 v6, 2, v6
        v_lshl_add_u32 v{112+nt}, v6, 3, v5
        ''')
    for T in range(4):
        phi([acc(T, 0) + 2 * i for i in range(8)])
        for nt in range(4):
            d = PKD + (T * 4 + nt) * 2
            r = acc(T, nt)
            a.e(f'''
            v_cvt_pk_bf16_f32 v{d}, v{r}, v{r+1}
            v_cvt_pk_bf16_f32 v{d+1}, v{r+2}, v{r+3}
            buffer_store_dwordx2 {vr(d,2)}, v{112+nt}, s[20:23], s34 offen offset:{T*1024}
            ''')
    a.e('s_branch K1_END')
    a.label('K1_D')
    mainloop(True)
    a.e('''
    s_cmp_ge_u32 s26, 5
    s_cbranch_scc1 K1_Z2
    ''')
    phi_consts()
    a.e(f'''
    s_lshl_b32 s34, s24, 6
    v_and_b32 v2, 15, v0
    v_add_u32 v2, s34, v2
    v_lshrrev_b32 v3, 4, v0
    v_lshlrev_b32 v3, 8, v3
    s_lshl_b32 s34, s25, 12
    s_lshl_b32 s35, s26, 21
    s_add_u32 s34, s34, s35
    ''')
    for nt in range(4):
        a.e(f'''
        v_add_u32 v4, {16*nt}, v2
        v_lshrrev_b32 v5, 2, v4
        v_mul_u32_u24 v5, 147, v5
        v_lshrrev_b32 v5, 10, v5
        v_mul_u32_u24 v6, 28, v5
        v_sub_u32 v6, v4, v6
        v_lshl_add_u32 v5, v5, 17, v3
        v_and_b32 v7, 15, v6
        v_lshl_add_u32 v5, v7, 4, v5
        v_lshrrev_b32 v6, 4, v6
        v_lshl_add_u32 v{112+nt}, v6, 10, v5
        ''')
    a.e('''
    s_cmp_eq_u32 s26, 2
    s_cbranch_scc1 K1_KVST
    ''')
    for T in range(4):
        phi([acc(T, 0) + 2 * i for i in range(8)])
    a.label('K1_KVST')
    for u in range(2):
        for nt in range(4):
            d = PKD + (u * 4 + nt) * 4
            pack(d, acc(2*u, nt), acc(2*u+1, nt))
            a.e(f'buffer_store_dwordx4 {vr(d,4)}, v{112+nt}, s[20:23], s34 offen offset:{u*2048}')
    a.e('s_branch K1_END')
    a.label('K1_Z2'); a.fence(8)
    gelu_consts()
    a.e(f'''
    s_sub_u32 s34, s26, 5
    s_mul_i32 s34, s34, 14
    s_lshl_b32 s35, s24, 1
    s_add_u32 s34, s34, s35
    s_lshl_b32 s34, s34, 17
    s_lshl_b32 s35, s25, 12
    s_add_u32 s34, s34, s35
    s_add_u32 s34, s34, {ZZ_OFF}
    s_add_u32 s35, s34, 0x20000
    v_lshlrev_b32 v4, 4, v0
    ''')
    SS = 192
    QQ = 208
    for T in range(4):
        gelu([acc(T, 0) + 2 * i for i in range(8)])
        for pr in range(2):
            s = SS + 4 * T + 2 * pr; q = QQ + 4 * T + 2 * pr
            y = [acc(T, nt) + 2 * pr for nt in range(4)]
            a.e(f'''
            v_pk_add_f32 {vr(s,2)}, {vr(y[0],2)}, {vr(y[1],2)}
            v_pk_mul_f32 {vr(q,2)}, {vr(y[0],2)}, {vr(y[0],2)}
            v_pk_add_f32 {vr(s,2)}, {vr(s,2)}, {vr(y[2],2)}
            v_pk_fma_f32 {vr(q,2)}, {vr(y[1],2)}, {vr(y[1],2)}, {vr(q,2)}
            v_pk_add_f32 {vr(s,2)}, {vr(s,2)}, {vr(y[3],2)}
            v_pk_fma_f32 {vr(q,2)}, {vr(y[2],2)}, {vr(y[2],2)}, {vr(q,2)}
            v_pk_fma_f32 {vr(q,2)}, {vr(y[3],2)}, {vr(y[3],2)}, {vr(q,2)}
            ''')
        if T & 1:
            u = T >> 1
            for nt in range(4):
                d = PKD + (u * 4 + nt) * 4
                pack(d, acc(2*u, nt), acc(2*u+1, nt))
                a.e(f'buffer_store_dwordx4 {vr(d,4)}, v4, s[20:23], s{34 + (nt>>1)} offen offset:{u*2048 + (nt&1)*1024}')
    O1 = 224
    O2 = 240
    for k, base in enumerate((SS, QQ)):
        for i in range(8):
            a.e(f'v_add_f32_dpp v{O1+8*k+i}, v{base+i}, v{base+i} row_ror:8 row_mask:0xf bank_mask:0x3')
        for i in range(8):
            a.e(f'v_add_f32_dpp v{O1+8*k+i}, v{base+8+i}, v{base+8+i} row_ror:8 row_mask:0xf bank_mask:0xc')
    for k in range(2):
        for i in range(4):
            a.e(f'v_add_f32_dpp v{O2+2*i+k}, v{O1+8*k+i}, v{O1+8*k+i} row_ror:12 row_mask:0xf bank_mask:0x5')
        for i in range(4):
            a.e(f'v_add_f32_dpp v{O2+2*i+k}, v{O1+8*k+4+i}, v{O1+8*k+4+i} row_ror:4 row_mask:0xf bank_mask:0xa')
    for i in range(8):
        a.e(f'v_add_f32_dpp v{O2+i}, v{O2+i}, v{O2+i} quad_perm:[1,0,3,2] row_mask:0xf bank_mask:0xf')
    for i in range(8):
        a.e(f'v_add_f32_dpp v{O2+i}, v{O2+i}, v{O2+i} quad_perm:[2,3,0,1] row_mask:0xf bank_mask:0xf')
    a.e(f'''
    v_bfe_u32 v2, v0, 3, 1
    v_lshlrev_b32 v2, 8, v2
    v_lshrrev_b32 v3, 4, v0
    v_lshl_add_u32 v2, v3, 6, v2
    v_bfe_u32 v3, v0, 2, 1
    v_lshl_add_u32 v2, v3, 5, v2
    v_add_u32 v2, s32, v2
    s_mov_b32 s36, 0x11111111
    s_mov_b32 s37, 0x11111111
    s_mov_b64 exec, s[36:37]
    ds_write_b128 v2, {vr(O2,4)}
    ds_write_b128 v2, {vr(O2+4,4)} offset:16
    s_mov_b64 exec, -1
    s_waitcnt lgkmcnt(0)
    s_barrier
    s_cmp_lg_u32 s24, 0
    s_cbranch_scc1 K1_END
    v_lshlrev_b32 v2, 3, v0
    v_add_u32 v3, {RING0 + 3*RING}, v2
    v_add_u32 v5, {RING0}, v2
    ''')
    for w in range(7):
        base = 5 if w < 3 else 3
        off = (w if w < 3 else w - 3) * RING
        a.e(f'ds_read_b64 {vr(40+2*w,2)}, v{base} offset:{off}')
    a.e(f'''
    s_sub_u32 s34, s26, 5
    s_lshl_b32 s34, s34, 14
    s_lshl_b32 s35, s25, 9
    s_add_u32 s34, s34, s35
    s_add_u32 s34, s34, {ST_OFF}
    s_waitcnt lgkmcnt(0)
    v_pk_add_f32 v[40:41], v[40:41], v[42:43]
    v_pk_add_f32 v[44:45], v[44:45], v[46:47]
    v_pk_add_f32 v[48:49], v[48:49], v[50:51]
    v_pk_add_f32 v[40:41], v[40:41], v[52:53]
    v_pk_add_f32 v[44:45], v[44:45], v[48:49]
    v_pk_add_f32 v[40:41], v[40:41], v[44:45]
    buffer_store_dwordx2 v[40:41], v2, s[20:23], s34 offen
    ''')
    a.label('K1_END')
    stamp_end(a, 0, 20, 24)
    a.label('K1_EXIT')
    a.e('s_endpgm')
    return dict(name='k1_kernel', grid=224, block=512, lds=RING0 + 7 * RING, vgpr=256, sgpr=100)

def gen_k2(a):
    kernel_head(a, 'k2_kernel')
    AB = 0; RO = 32768; MO = 40960; CO = 45056
    stamp_begin(a)
    a.e(f'''
    s_cmp_ge_u32 s2, 240
    s_cbranch_scc1 K2_EXIT
    s_load_dwordx4 s[4:7], s[0:1], 40
    s_load_dwordx2 s[10:11], s[0:1], 80
    v_lshrrev_b32 v1, 6, v0
    v_mov_b32 v9, v0
    v_and_b32 v0, 63, v0
    v_readfirstlane_b32 s24, v1
    s_and_b32 s25, s2, 7
    s_lshl_b32 s25, s25, 2
    s_lshr_b32 s26, s2, 3
    s_and_b32 s27, s26, 3
    s_add_u32 s25, s25, s27
    s_lshr_b32 s26, s26, 2
    s_waitcnt lgkmcnt(0)
    ''')
    srd(a, 12, 4, 2048 * 4096)
    srd(a, 16, 6, 4096)
    srd(a, 20, 10, WS_SIZE)
    a.e('''
    s_cmp_ge_u32 s2, 224
    s_cbranch_scc1 K2_ATT
    ''')
    a.e(f'''
    v_lshlrev_b32 v2, 5, v9
    s_mov_b32 s28, {ST_OFF}
    s_mov_b32 s29, {ST_OFF + 16384}
    buffer_load_dwordx4 v[12:15], v2, s[20:23], s28 offen
    buffer_load_dwordx4 v[16:19], v2, s[20:23], s28 offen offset:16
    buffer_load_dwordx4 v[20:23], v2, s[20:23], s29 offen
    buffer_load_dwordx4 v[24:27], v2, s[20:23], s29 offen offset:16
    s_cmp_ge_u32 s24, 4
    s_cbranch_scc1 K2_PROD
    ''')
    def stats_compute():
        a.e(f'''
        v_pk_add_f32 v[12:13], v[12:13], v[20:21]
        v_pk_add_f32 v[14:15], v[14:15], v[22:23]
        v_pk_add_f32 v[16:17], v[16:17], v[24:25]
        v_pk_add_f32 v[18:19], v[18:19], v[26:27]
        ''')
        for i in range(4):
            s = 12 + 2 * i
            a.e(f'''
            v_mul_f32 v{s}, {f32(1.0/896)}, v{s}
            v_mul_f32 v{s+1}, {f32(1.0/896)}, v{s+1}
            v_fma_f32 v{s+1}, -v{s}, v{s}, v{s+1}
            v_max_f32 v{s+1}, 0, v{s+1}
            v_add_f32 v{s+1}, {f32(1e-5)}, v{s+1}
            v_rsq_f32 v{20+i}, v{s+1}
            ''')
        a.e(f'''
        v_cvt_pk_bf16_f32 v24, v12, v14
        v_cvt_pk_bf16_f32 v25, v16, v18
        v_lshlrev_b32 v2, 4, v9
        v_lshlrev_b32 v3, 3, v9
        ds_write_b128 v2, v[20:23] offset:{RO}
        ds_write_b64 v3, v[24:25] offset:{MO}
        s_waitcnt lgkmcnt(0)
        s_barrier
        ''')
    NST = 16
    CD = 5
    ZB = 96
    a.e(f'''
    s_lshl_b32 s30, s26, 2
    s_add_u32 s30, s30, s24
    s_lshl_b32 s31, s30, 17
    s_add_u32 s31, s31, {ZZ_OFF}
    v_lshlrev_b32 v4, 4, v0
    v_add_u32 v5, 0x1000, v4
    ''')
    def zload(st):
        r = ZB + (st % CD) * 32
        for j in range(8):
            a.e(f'buffer_load_dwordx4 {vr(r+4*j,4)}, v{4 + j//4}, s[20:23], s31 offen offset:{(j%4)*1024}')
        a.e('s_add_u32 s31, s31, 8192')
    for st in range(CD):
        zload(st)
    a.e(f's_waitcnt vmcnt({CD*8})')
    TM(a, 1)
    stats_compute()
    a.e(f'''
    v_and_b32 v2, 15, v0
    v_lshrrev_b32 v3, 4, v0
    v_lshrrev_b32 v6, 1, v2
    v_xor_b32 v6, v6, v3
    v_lshlrev_b32 v6, 4, v6
    v_lshl_add_u32 v6, v2, 7, v6
    v_lshlrev_b32 v36, 4, v3
    ''')
    for i in range(4):
        a.e(f'''
        s_add_u32 s{40+i}, s24, {i}
        s_and_b32 s{40+i}, s{40+i}, 3
        s_lshl_b32 s32, s{40+i}, 11
        v_add_u32 v{28+2*i}, s32, v6
        v_xor_b32 v{29+2*i}, 64, v{28+2*i}
        ''')
    ACC = 40
    CAC = 72
    AF = [8, 76]
    def creads(st, kk):
        s = AF[kk & 1]
        for i in range(4):
            a.e(f'ds_read_b128 {vr(s+4*i,4)}, v{28+2*i+(kk&1)} offset:{AB + (st&1)*16384 + (kk>>1)*8192}')
        a.e(f'ds_read_b128 {vr(s+16,4)}, v36 offset:{MO + (128*st + 32*kk)*2}')
    for st in range(NST):
        a.e('s_barrier')
        TM(a, 2 + st)
        creads(st, 0)
        rem = min(CD - 1, NST - 1 - st)
        extra = 0
        if st >= NST - CD + 1:
            extra = 8
        a.e(f's_waitcnt vmcnt({rem*8 + extra})')
        zr = ZB + (st % CD) * 32
        for kk in range(4):
            if kk < 3:
                creads(st, kk + 1)
                a.e('s_waitcnt lgkmcnt(5)')
            else:
                a.e('s_waitcnt lgkmcnt(0)')
            s = AF[kk & 1]
            first = (st == 0 and kk == 0)
            for i in range(4):
                for ft in range(2):
                    d = vr(ACC + (ft * 4 + i) * 4, 4)
                    a.e(f'v_mfma_f32_16x16x32_bf16 {d}, {vr(zr + (kk*2+ft)*4, 4)}, {vr(s+4*i,4)}, {"0" if first else d}')
            a.e(f'v_mfma_f32_16x16x32_bf16 {vr(CAC,4)}, {vr(s+16,4)}, {vr(s,4)}, {"0" if first else vr(CAC,4)}')
        if st + CD < NST:
            zload(st + CD)
        if st == NST - CD:
            er = ZB + (st % CD) * 32
            a.e('v_and_b32 v2, 15, v0')
            a.e('v_lshlrev_b32 v2, 1, v2')
            for i in range(4):
                a.e(f'''
                s_lshl_b32 s32, s25, 2
                s_add_u32 s32, s32, s{40+i}
                s_lshl_b32 s33, s32, 5
                s_mul_i32 s32, s32, 28
                s_add_u32 s32, s32, s30
                s_lshl_b32 s32, s32, 10
                s_add_u32 s32, s32, {Z1_OFF}
                buffer_load_dwordx4 {vr(er+4*i,4)}, v4, s[20:23], s32 offen
                buffer_load_ushort v{er+16+i}, v2, s[16:19], s33 offen
                ''')
            ER = er
    TM(a, 18)
    a.e(f'''
    v_and_b32 v2, 15, v0
    v_lshlrev_b32 v2, 2, v2
    s_lshl_b32 s32, s24, 6
    v_add_u32 v3, s32, v2
    ds_write_b32 v3, v{CAC} offset:{CO}
    s_waitcnt lgkmcnt(0)
    s_barrier
    ''')
    for i in range(4):
        a.e(f'''
        s_lshl_b32 s32, s{40+i}, 6
        v_add_u32 v3, s32, v2
        ds_read_b32 v{8+2*i}, v3 offset:{CO}
        ''')
    a.e('s_waitcnt vmcnt(0) lgkmcnt(0)')
    for i in range(4):
        a.e(f'''
        v_lshlrev_b32 v{ER+16+i}, 16, v{ER+16+i}
        v_sub_f32 v{8+2*i}, v{ER+16+i}, v{8+2*i}
        v_mov_b32 v{9+2*i}, v{8+2*i}
        ''')
    for i in range(4):
        z = ER + 4 * i
        t = 76
        for j in range(4):
            a.e(f'v_lshlrev_b32 v{t+2*j}, 16, v{z+j}')
            a.e(f'v_and_b32 v{t+2*j+1}, 0xffff0000, v{z+j}')
        for j in range(4):
            r = ACC + ((j >> 1) * 4 + i) * 4 + (j & 1) * 2
            a.e(f'v_pk_add_f32 {vr(r,2)}, {vr(r,2)}, {vr(8+2*i,2)}')
        for j in range(4):
            r = ACC + ((j >> 1) * 4 + i) * 4 + (j & 1) * 2
            a.e(f'v_pk_mul_f32 {vr(r,2)}, {vr(r,2)}, {vr(t+2*j,2)}')
        for j in range(4):
            r = ACC + ((j >> 1) * 4 + i) * 4 + (j & 1) * 2
            a.e(f'v_cvt_pk_bf16_f32 v{z+j}, v{r}, v{r+1}')
        a.e(f'''
        s_lshl_b32 s32, s25, 2
        s_add_u32 s32, s32, s{40+i}
        s_mul_i32 s32, s32, 42
        s_add_u32 s32, s32, s30
        s_lshl_b32 s32, s32, 10
        s_add_u32 s32, s32, {ACT_OFF + 14*1024}
        buffer_store_dwordx4 {vr(z,4)}, v4, s[20:23], s32 offen
        ''')
    a.e('s_branch K2_END')
    a.label('K2_PROD')
    PD = 8
    PB = 64
    a.e(f'''
    s_sub_u32 s30, s24, 4
    s_lshl_b32 s31, s25, 2
    s_add_u32 s31, s31, s30
    s_lshl_b32 s40, s31, 16
    s_add_u32 s41, s40, 0x4000
    s_add_u32 s42, s40, 0x8000
    s_add_u32 s43, s40, 0xc000
    v_lshrrev_b32 v3, 4, v0
    v_and_b32 v6, 15, v0
    v_lshlrev_b32 v4, 12, v3
    v_lshl_add_u32 v4, v6, 4, v4
    ''')
    def aload(st):
        r = PB + (st % PD) * 16
        for q in range(4):
            a.e(f'buffer_load_dwordx4 {vr(r+4*q,4)}, v4, s[12:15], s{40+q} offen offset:{st*256}')
    for st in range(PD):
        aload(st)
    a.e(f's_waitcnt vmcnt({PD*4})')
    TM(a, 1)
    stats_compute()
    a.e(f'''
    v_lshrrev_b32 v3, 4, v0
    v_and_b32 v6, 15, v0
    v_lshrrev_b32 v7, 3, v6
    v_lshlrev_b32 v7, 13, v7
    v_lshl_add_u32 v7, v3, 7, v7
    s_lshl_b32 s32, s30, 11
    v_add_u32 v7, s32, v7
    v_and_b32 v8, 7, v0
    v_lshrrev_b32 v10, 5, v0
    v_xor_b32 v8, v8, v10
    v_lshlrev_b32 v36, 5, v6
    ''')
    for q in range(4):
        a.e(f'''
        v_xor_b32 v10, {2*q}, v8
        v_lshl_add_u32 v10, v10, 4, v7
        v_add_u32 v{28+q}, {q*512}, v10
        ''')
    RR = 40
    UT = 48
    for st in range(NST):
        a.e(f'ds_read_b128 {vr(RR,4)}, v36 offset:{RO + st*512}')
        a.e(f'ds_read_b128 {vr(RR+4,4)}, v36 offset:{RO + st*512 + 16}')
        rem = min(PD - 1, NST - 1 - st)
        a.e(f's_waitcnt vmcnt({rem*4}) lgkmcnt(0)')
        TM(a, 2 + st)
        r = PB + (st % PD) * 16
        for q in range(4):
            t = UT + (q & 1) * 8
            for j in range(4):
                a.e(f'v_lshlrev_b32 v{t+2*j}, 16, v{r+4*q+j}')
                a.e(f'v_and_b32 v{t+2*j+1}, 0xffff0000, v{r+4*q+j}')
            for j in range(8):
                a.e(f'v_mul_f32 v{t+j}, v{t+j}, v{RR+j}')
            o = 12 + (q & 1) * 4
            for j in range(4):
                a.e(f'v_cvt_pk_bf16_f32 v{o+j}, v{t+2*j}, v{t+2*j+1}')
            a.e(f'ds_write_b128 v{28+q}, {vr(o,4)} offset:{AB + (st&1)*16384}')
            if q == 1:
                a.e('s_waitcnt lgkmcnt(0)')
        if st + PD < NST:
            aload(st + PD)
        a.e('s_waitcnt lgkmcnt(0)')
        a.e('s_barrier')
    a.e('s_branch K2_END')
    a.label('K2_ATT')
    a.e(f'''
    s_sub_u32 s26, s2, 224
    s_lshl_b32 s28, s26, 17
    s_lshl_b32 s29, s24, 14
    s_add_u32 s28, s28, s29
    s_add_u32 s29, s28, {PK_OFF}
    s_add_u32 s30, s28, {V_OFF}
    s_add_u32 s31, s28, {PQ_OFF}
    v_lshlrev_b32 v4, 4, v0
    ''')
    KB = 32
    VB = 96; QB = 160
    for kk in range(0, 8, 2):
        for j in range(4):
            a.e(f'buffer_load_dwordx4 {vr(KB+(kk*2+j)*4,4)}, v4, s[20:23], s29 offen offset:{j*1024}')
        for j in range(4):
            a.e(f'buffer_load_dwordx4 {vr(VB+(kk*2+j)*4,4)}, v4, s[20:23], s30 offen offset:{j*1024}')
        a.e('s_add_u32 s29, s29, 4096')
        a.e('s_add_u32 s30, s30, 4096')
    for j in range(16):
        a.e(f'buffer_load_dwordx4 {vr(QB+j*4,4)}, v4, s[20:23], s31 offen offset:{(j%4)*1024}')
        if j % 4 == 3: a.e('s_add_u32 s31, s31, 4096')
    a.e(f'''
    v_and_b32 v2, 15, v0
    v_cmp_eq_u32 vcc, 12, v2
    v_mov_b32 v3, 0x3f803f80
    ''')
    KA = 8
    for kk in range(8):
        if kk % 2 == 0:
            a.e(f's_waitcnt vmcnt({16 + (6-kk)*4})')
        v1 = VB + (kk * 2 + 1) * 4
        for j in range(4):
            a.e(f'v_cndmask_b32 v{v1+j}, v{v1+j}, v3, vcc')
        for dt in range(2):
            for et in range(2):
                d = vr(KA + (dt * 2 + et) * 4, 4)
                a.e(f'v_mfma_f32_16x16x32_bf16 {d}, {vr(KB+(kk*2+dt)*4,4)}, {vr(VB+(kk*2+et)*4,4)}, {"0" if kk == 0 else d}')
    TM(a, 1)
    a.e(f'''
    s_lshl_b32 s32, s24, 12
    v_add_u32 v5, s32, v4
    ''')
    for j in range(4):
        a.e(f'ds_write_b128 v5, {vr(KA+4*j,4)} offset:{j*1024}')
    a.e('s_waitcnt lgkmcnt(0)\ns_barrier')
    for w in range(8):
        for j in range(4):
            a.e(f'ds_read_b128 {vr(KB+(w*4+j)*4,4)}, v4 offset:{w*4096 + j*1024}')
        if w % 2 == 1:
            a.e('s_waitcnt lgkmcnt(0)')
    for step in (4, 2, 1):
        for w in range(step):
            for j in range(8):
                x = KB + w * 16 + 2 * j; y = KB + (w + step) * 16 + 2 * j
                a.e(f'v_pk_add_f32 {vr(x,2)}, {vr(x,2)}, {vr(y,2)}')
    KF = 8
    for et in range(2):
        for dt in range(2):
            r = KB + (dt * 2 + et) * 4
            a.e(f'v_cvt_pk_bf16_f32 v{KF+4*et+2*dt}, v{r}, v{r+1}')
            a.e(f'v_cvt_pk_bf16_f32 v{KF+4*et+2*dt+1}, v{r+2}, v{r+3}')
    a.e('v_cmp_lt_u32 vcc, 47, v0')
    for et in range(2):
        for j in (2, 3):
            a.e(f'v_cndmask_b32_e64 v{KF+4*et+j}, v{KF+4*et+j}, 0, vcc')
    for j in range(4):
        a.e(f'v_mov_b32_dpp v{KF+8+j}, v{KF+4+j} row_newbcast:12 row_mask:0xf bank_mask:0xf')
    a.e(f'''
    s_mul_i32 s32, s26, 7
    v_lshrrev_b32 v2, 4, v0
    v_add_u32 v2, s32, v2
    v_and_b32 v3, 15, v0
    v_lshlrev_b32 v3, 4, v3
    ''')
    for et in range(2):
        a.e(f'''
        v_add_u32 v5, {4*et}, v2
        v_lshrrev_b32 v6, 3, v5
        v_lshl_add_u32 v6, v6, 10, v3
        v_and_b32 v7, 3, v5
        v_lshl_add_u32 v6, v7, 8, v6
        v_bfe_u32 v7, v5, 2, 1
        v_lshl_add_u32 v{24+et}, v7, 3, v6
        ''')
    a.e(f'''
    v_mov_b32 v5, 0x7fffff00
    v_cndmask_b32 v25, v25, v5, vcc
    s_mul_i32 s32, s24, {16*42*1024}
    s_add_u32 s32, s32, {ACT_OFF}
    s_waitcnt vmcnt(0)
    ''')
    TM(a, 2)
    OB = 32
    for j0 in range(0, 16, 4):
        for j in range(j0, j0 + 4):
            q = QB + j * 4
            a.e(f'v_cndmask_b32_e64 v{q+2}, v{q+2}, 0, vcc')
            a.e(f'v_cndmask_b32_e64 v{q+3}, v{q+3}, 0, vcc')
        for j in range(j0, j0 + 4):
            q = QB + j * 4; o = OB + (j - j0 + (4 if (j0 // 4) % 2 else 0)) * 12
            for e in range(3):
                a.e(f'v_mfma_f32_16x16x32_bf16 {vr(o+4*e,4)}, {vr(KF+4*e,4)}, {vr(q,4)}, 0')
        for j in range(j0, j0 + 4):
            o = OB + (j - j0 + (4 if (j0 // 4) % 2 else 0)) * 12
            a.e(f'v_add_f32 v{o+8}, {f32(1e-6)}, v{o+8}')
            a.e(f'v_rcp_f32 v{o+8}, v{o+8}')
            a.e(f'v_mov_b32 v{o+9}, v{o+8}')
            for p in range(4):
                a.e(f'v_pk_mul_f32 {vr(o+2*p,2)}, {vr(o+2*p,2)}, {vr(o+8,2)}')
            q = QB + j * 4
            for p in range(4):
                a.e(f'v_cvt_pk_bf16_f32 v{q+p}, v{o+2*p}, v{o+2*p+1}')
            a.e(f'buffer_store_dwordx2 {vr(q,2)}, v24, s[20:23], s32 offen')
            a.e(f'buffer_store_dwordx2 {vr(q+2,2)}, v25, s[20:23], s32 offen')
            a.e(f's_add_u32 s32, s32, {42*1024}')
    a.label('K2_END')
    stamp_end(a, 1, 20, 24)
    a.label('K2_EXIT')
    a.e('s_endpgm')
    return dict(name='k2_kernel', grid=240, block=512, lds=45312, vgpr=256, sgpr=100)

def gen_k3(a):
    kernel_head(a, 'k3_kernel')
    stamp_begin(a)
    a.e(f'''
    s_cmp_ge_u32 s2, 224
    s_cbranch_scc1 K3_EXIT
    s_load_dwordx2 s[4:5], s[0:1], 0
    s_load_dwordx2 s[6:7], s[0:1], 16
    s_load_dwordx4 s[8:11], s[0:1], 56
    s_load_dwordx2 s[36:37], s[0:1], 80
    v_lshrrev_b32 v1, 6, v0
    v_and_b32 v0, 63, v0
    v_readfirstlane_b32 s24, v1
    s_and_b32 s25, s2, 7
    s_lshl_b32 s25, s25, 2
    s_lshr_b32 s26, s2, 3
    s_and_b32 s27, s26, 3
    s_add_u32 s25, s25, s27
    s_lshr_b32 s26, s26, 2
    ''')
    a.e(f'''
    v_lshrrev_b32 v2, 3, v0
    v_and_b32 v3, 7, v0
    v_and_b32 v6, 6, v2
    v_xor_b32 v6, v6, v3
    v_mul_u32_u24 v5, 896, v2
    v_lshl_add_u32 v5, v6, 4, v5
    v_lshlrev_b32 v4, 4, v0
    s_mul_i32 s28, s24, {8*896}
    s_lshl_b32 s29, s26, 7
    s_add_u32 s28, s28, s29
    s_lshl_b32 s30, s25, 2
    s_add_u32 s30, s30, s24
    s_mul_i32 s31, s30, {42*1024}
    s_add_u32 s31, s31, {ACT_OFF}
    s_lshl_b32 s32, s24, 10
    s_waitcnt lgkmcnt(0)
    ''')
    srd(a, 12, 4, 2048 * 896)
    srd(a, 16, 6, 448 * 896)
    srd(a, 40, 8, 896 * 896)
    srd(a, 44, 10, 2048 * 896)
    srd(a, 20, 36, WS_SIZE)
    AB = 64
    NSL = 36
    def issue(p):
        a.e(f's_add_u32 m0, s32, {(p % NSL) * 4096}')
        if p < 14:
            a.e(f's_add_u32 s33, s28, {p*32*896}')
            a.e(f'buffer_load_dwordx4 v5, s[16:19], s33 offen lds')
        else:
            a.e(f's_add_u32 s33, s28, {(p-14)*32*896}')
            a.e(f'buffer_load_dwordx4 v5, s[40:43], s33 offen lds')
        if p % 4 == 0 and p > 0:
            a.e('s_add_u32 s31, s31, 4096')
        a.e(f'buffer_load_dwordx4 {vr(AB+4*p,4)}, v4, s[20:23], s31 offen offset:{(p%4)*1024}')
    a.e(f'''
    v_and_b32 v2, 15, v0
    v_lshrrev_b32 v3, 4, v0
    v_mul_u32_u24 v6, 896, v2
    v_lshl_add_u32 v6, v3, 3, v6
    s_mul_i32 s34, s30, {16*896}
    s_add_u32 s34, s34, s29
    ''')
    XB = 232
    for nt in range(4):
        a.e(f'buffer_load_dwordx2 {vr(XB+2*nt,2)}, v6, s[12:15], s34 offen offset:{nt*32}')
    SG = 6
    PRE = 4
    for p in range(PRE * SG):
        issue(p)
    a.e(f'''
    v_bfe_u32 v8, v0, 2, 3
    v_lshrrev_b32 v7, 5, v0
    v_lshlrev_b32 v7, 10, v7
    v_lshl_add_u32 v7, v8, 7, v7
    v_and_b32 v9, 3, v0
    v_lshl_add_u32 v7, v9, 3, v7
    v_lshrrev_b32 v8, 1, v8
    v_lshlrev_b32 v8, 5, v8
    ''')
    for gI in range(3):
        for t in range(4):
            a.e(f'v_xor_b32 v9, {t*32}, v8')
            a.e(f'v_add3_u32 v{240+gI*4+t}, v7, v9, s35' if False else f'v_add_u32 v{240+gI*4+t}, v7, v9')
            if gI:
                a.e(f'v_add_u32 v{240+gI*4+t}, {gI*61440}, v{240+gI*4+t}')
    ACC = 8
    WF = [24, 40]
    def wreads(p):
        sl = p % NSL
        gI = sl // 15; off = (sl % 15) * 4096
        s = WF[p & 1]
        for t in range(4):
            for h in range(2):
                a.e(f'ds_read_b64_tr_b16 {vr(s+4*t+2*h,2)}, v{240+gI*4+t} offset:{off + h*2048}')
    NSTG = 7
    for sg in range(NSTG):
        rem = min(NSTG - sg - 1, PRE - 1)
        TM(a, 1 + 2 * sg)
        a.e(f's_waitcnt vmcnt({rem*SG*2})')
        a.e('s_barrier')
        TM(a, 2 + 2 * sg)
        wreads(sg * SG)
        for p in range(sg * SG, (sg + 1) * SG):
            if p + 1 < (sg + 1) * SG:
                wreads(p + 1)
                a.e('s_waitcnt lgkmcnt(8)')
            else:
                a.e('s_waitcnt lgkmcnt(0)')
            if p + PRE * SG < NSTG * SG:
                issue(p + PRE * SG)
            s = WF[p & 1]
            for nt in range(4):
                d = vr(ACC + 4 * nt, 4)
                a.e(f'v_mfma_f32_16x16x32_bf16 {d}, {vr(s+4*nt,4)}, {vr(AB+4*p,4)}, {"0" if p == 0 else d}')
    for nt in range(4):
        x = XB + 2 * nt; t = 24 + 4 * nt; r = ACC + 4 * nt
        a.e(f'''
        v_lshlrev_b32 v{t}, 16, v{x}
        v_and_b32 v{t+1}, 0xffff0000, v{x}
        v_lshlrev_b32 v{t+2}, 16, v{x+1}
        v_and_b32 v{t+3}, 0xffff0000, v{x+1}
        ''')
    for nt in range(4):
        x = XB + 2 * nt; t = 24 + 4 * nt; r = ACC + 4 * nt
        a.e(f'''
        v_pk_add_f32 {vr(t,2)}, {vr(t,2)}, {vr(r,2)}
        v_pk_add_f32 {vr(t+2,2)}, {vr(t+2,2)}, {vr(r+2,2)}
        v_cvt_pk_bf16_f32 v{x}, v{t}, v{t+1}
        v_cvt_pk_bf16_f32 v{x+1}, v{t+2}, v{t+3}
        buffer_store_dwordx2 {vr(x,2)}, v6, s[44:47], s34 offen offset:{nt*32}
        ''')
    stamp_end(a, 2, 20, 24)
    a.label('K3_EXIT')
    a.e('s_endpgm')
    return dict(name='k3_kernel', grid=224, block=256, lds=NSL * 4096, vgpr=256, sgpr=100)

def main(path, stamp=False):
    global STAMP
    STAMP = stamp
    a = Asm()
    ks = []
    a.raw('.amdgcn_target "amdgcn-amd-amdhsa--gfx950"\n.text')
    for g in (gen_k1, gen_k2, gen_k3):
        ks.append(g(a))
    head = ''
    for k in ks:
        head += f"; @launch kernel={k['name']} grid=({k['grid']},1,1) block=({k['block']},1,1) lds={k['lds']}\n"
    tail = '.section .rodata,"a"\n'
    for k in ks:
        tail += f'''.p2align 6
.amdhsa_kernel {k['name']}
  .amdhsa_next_free_vgpr {k['vgpr']}
  .amdhsa_next_free_sgpr {k['sgpr']}
  .amdhsa_accum_offset {min(256, k['vgpr'])}
  .amdhsa_group_segment_fixed_size 0
  .amdhsa_kernarg_size 88
  .amdhsa_user_sgpr_count 2
  .amdhsa_user_sgpr_kernarg_segment_ptr 1
  .amdhsa_system_sgpr_workgroup_id_x 1
.end_amdhsa_kernel
'''
    open(path, 'w').write(head + a.text() + tail)

if __name__ == '__main__':
    main(sys.argv[1] if len(sys.argv) > 1 else 'v1.s', stamp=(len(sys.argv) > 2))
```

```python
import sys, math
from asmlib import *

KNAME = 'parallel_sum__linear_attn_block__mixer_gmlp__prompt_kernel'
FS = 4
FZ_OFF = 0 * FS; FK_OFF = 1024 * FS; FQ_OFF = 2048 * FS; FO_OFF = 3072 * FS; FU_OFF = 4096 * FS
EPOCH_OFF = 0x40000
ST_OFF  = 0x80000
Z2_OFF  = 0x100000
KD_OFF  = 0x480000
VD_OFF  = 0x640000
PQ_OFF  = 0x800000
ACT_OFF = 0x9C0000
DBG_OFF = 0x1000000
WS_SIZE = 0x1100000
REG = 20480
XN0 = 4 * REG + 4096
LF  = 7 * REG + 16384
TAGC = 0x9E3779B9

LOG2E = 1.4426950408889634
GC0 = -2.0 * math.sqrt(2.0 / math.pi) * LOG2E
GC1 = GC0 * 0.044715

SX, SQ, SI, SWS, SSP, SBS, SWO, SWT, SOUT = 4, 8, 12, 16, 20, 24, 28, 32, 36
def S(b): return f's[{b}:{b+3}]'
sW, sRB, sJ, sTAG, sCB, sKH, sREG = 40, 41, 42, 43, 44, 45, 46

class Opt:
    stamp = False
    pk = True
    prio = True
    rot = True
    pf = True

class G:
    def __init__(self):
        self.a = Asm(); self.vm = []; self.nl = 0
    def e(self, t): self.a.e(t)
    def v(self, text, tag=None):
        self.a.e(text); self.vm.append(tag)
    def wait(self, tag, extra=''):
        idx = max(i for i, t in enumerate(self.vm) if t == tag)
        n = len(self.vm) - 1 - idx
        assert n <= 63, n
        self.a.e(f's_waitcnt vmcnt({n}) {extra}')
        self.vm = self.vm[idx + 1:]
    def has(self, tag): return tag in self.vm
    def item(self, it):
        if callable(it): it()
        elif isinstance(it, tuple): self.v(it[0], it[1])
        else: self.e(it)
    def lab(self, p):
        self.nl += 1; return f'{p}_{self.nl}'
    def stamp(self, idx):
        if Opt.stamp:
            self.e(f's_memtime s[96:97]\ns_waitcnt lgkmcnt(0)\nv_writelane_b32 v15, s96, {idx}')

def weave(g, prim, sec, start=0, per=1):
    sec = list(sec)
    for i, p in enumerate(prim):
        g.item(p)
        if i >= start:
            for _ in range(per):
                if sec: g.item(sec.pop(0))
    for s in sec: g.item(s)

def lds_flag(g, val):
    g.e(f'v_mov_b32 v14, {val}\nds_write_b32 v6, v14')

def lds_spin(g, val, four=False):
    L = g.lab('SP'); D = g.lab('SD')
    g.e(f's_movk_i32 s62, 0x7fff')
    g.a.label(L)
    if four:
        g.e(f'''
        ds_read_b128 v[220:223], v7
        s_waitcnt lgkmcnt(0)
        v_min3_u32 v220, v220, v221, v222
        v_min_u32 v14, v220, v223
        ''')
    else:
        g.e('ds_read_b32 v14, v7\ns_waitcnt lgkmcnt(0)')
    g.e(f'''
    v_readfirstlane_b32 s63, v14
    s_cmp_ge_u32 s63, {val}
    s_cbranch_scc1 {D}
    s_sub_u32 s62, s62, 1
    s_cbranch_scc0 {L}
    ''')
    g.a.label(D)

def gflag(g, soff):
    g.e(f's_mov_b64 exec, 1\nv_mov_b32 v14, s{sTAG}')
    g.v(f'buffer_store_dword v14, off, {S(SWS)}, s{soff} sc1', 'flag')
    g.e('s_mov_b64 exec, -1')

def gpoll(g, voff, soff, x4=False):
    L = g.lab('PL'); D = g.lab('PD')
    g.e('s_movk_i32 s62, 0x1000')
    g.a.label(L)
    if x4:
        g.e(f'''
        buffer_load_dwordx4 v[220:223], v{voff}, {S(SWS)}, s{soff} offen sc1
        s_waitcnt vmcnt(0)
        v_xor_b32 v220, s{sTAG}, v220
        v_xor_b32 v221, s{sTAG}, v221
        v_xor_b32 v222, s{sTAG}, v222
        v_xor_b32 v223, s{sTAG}, v223
        v_or3_b32 v220, v220, v221, v222
        v_or_b32 v14, v220, v223
        v_cmp_ne_u32 vcc, 0, v14
        ''')
    else:
        g.e(f'''
        buffer_load_dword v14, v{voff}, {S(SWS)}, s{soff} offen sc1
        s_waitcnt vmcnt(0)
        v_cmp_ne_u32 vcc, s{sTAG}, v14
        ''')
    g.e(f'''
    s_nop 1
    s_cbranch_vccz {D}
    s_sleep 2
    s_sub_u32 s62, s62, 1
    s_cbranch_scc0 {L}
    ''')
    g.a.label(D)
    g.vm = []

def gelu(g, regs, T, CON):
    Ts = [T + 2 * i for i in range(len(regs))]
    z = list(zip(regs, Ts))
    if Opt.pk:
        for x, t in z: g.e(f'v_pk_mul_f32 {vr(t,2)}, {vr(x,2)}, {vr(x,2)}')
        for x, t in z: g.e(f'v_pk_fma_f32 {vr(t,2)}, {vr(t,2)}, {vr(CON+2,2)}, {vr(CON,2)}')
        for x, t in z: g.e(f'v_pk_mul_f32 {vr(t,2)}, {vr(t,2)}, {vr(x,2)}')
    else:
        for x, t in z:
            for d in (0, 1): g.e(f'v_mul_f32 v{t+d}, v{x+d}, v{x+d}')
        for x, t in z:
            for d in (0, 1): g.e(f'v_fma_f32 v{t+d}, v{t+d}, v{CON+2}, v{CON}')
        for x, t in z:
            for d in (0, 1): g.e(f'v_mul_f32 v{t+d}, v{t+d}, v{x+d}')
    for x, t in z:
        for d in (0, 1): g.e(f'v_exp_f32 v{t+d}, v{t+d}')
    if Opt.pk:
        for x, t in z: g.e(f'v_pk_add_f32 {vr(t,2)}, {vr(t,2)}, 1.0 op_sel_hi:[1,0]')
    else:
        for x, t in z:
            for d in (0, 1): g.e(f'v_add_f32 v{t+d}, 1.0, v{t+d}')
    for x, t in z:
        for d in (0, 1): g.e(f'v_rcp_f32 v{t+d}, v{t+d}')
    if Opt.pk:
        for x, t in z: g.e(f'v_pk_mul_f32 {vr(x,2)}, {vr(x,2)}, {vr(t,2)}')
    else:
        for x, t in z:
            for d in (0, 1): g.e(f'v_mul_f32 v{x+d}, v{x+d}, v{t+d}')

def gelu_consts(g, CON):
    g.e(f'''
    v_mov_b32 v{CON}, {f32(GC0)}
    v_mov_b32 v{CON+1}, {f32(GC0)}
    v_mov_b32 v{CON+2}, {f32(GC1)}
    v_mov_b32 v{CON+3}, {f32(GC1)}
    ''')

def phi(g, regs, T, CON):
    Ts = [T + 2 * i for i in range(len(regs))]
    z = list(zip(regs, Ts))
    if Opt.pk:
        for x, t in z: g.e(f'v_pk_mul_f32 {vr(t,2)}, {vr(x,2)}, {vr(CON,2)}')
    else:
        for x, t in z:
            for d in (0, 1): g.e(f'v_mul_f32 v{t+d}, v{x+d}, v{CON}')
    for x, t in z:
        for d in (0, 1): g.e(f'v_exp_f32_e64 v{t+d}, v{t+d} clamp')
    for x, t in z:
        for d in (0, 1): g.e(f'v_max_f32 v{x+d}, 0, v{x+d}')
    if Opt.pk:
        for x, t in z: g.e(f'v_pk_add_f32 {vr(x,2)}, {vr(x,2)}, {vr(t,2)}')
        for x, t in z: g.e(f'v_pk_add_f32 {vr(x,2)}, {vr(x,2)}, {vr(CON+2,2)}')
    else:
        for x, t in z:
            for d in (0, 1): g.e(f'v_add_f32 v{x+d}, v{x+d}, v{t+d}')
        for x, t in z:
            for d in (0, 1): g.e(f'v_add_f32 v{x+d}, v{x+d}, v{CON+2}')

def phi_consts(g, CON):
    g.e(f'''
    v_mov_b32 v{CON}, {f32(LOG2E)}
    v_mov_b32 v{CON+1}, {f32(LOG2E)}
    v_mov_b32 v{CON+2}, {f32(1e-6)}
    v_mov_b32 v{CON+3}, {f32(1e-6)}
    ''')

def addv(g, dst, x, y, n):
    if Opt.pk:
        for i in range(0, n, 2): g.e(f'v_pk_add_f32 {vr(dst+i,2)}, {vr(x+i,2)}, {vr(y+i,2)}')
    else:
        for i in range(n): g.e(f'v_add_f32 v{dst+i}, v{x+i}, v{y+i}')

def pack(g, dst, r0, r1):
    g.e(f'''
    v_cvt_pk_bf16_f32 v{dst}, v{r0}, v{r0+1}
    v_cvt_pk_bf16_f32 v{dst+1}, v{r0+2}, v{r0+3}
    v_cvt_pk_bf16_f32 v{dst+2}, v{r1}, v{r1+1}
    v_cvt_pk_bf16_f32 v{dst+3}, v{r1+2}, v{r1+3}
    ''')

MF = 'v_mfma_f32_16x16x32_bf16'

def gen():
    g = G(); a = g.a; e = g.e
    a.raw('.amdgcn_target "amdgcn-amd-amdhsa--gfx950"\n.text')
    a.raw(f'.globl {KNAME}\n.p2align 8\n.type {KNAME},@function\n{KNAME}:')
    if Opt.stamp:
        e('s_memrealtime s[98:99]\ns_memtime s[94:95]')
    e(f'''
    s_cmp_ge_u32 s2, 256
    s_cbranch_scc1 L_EXIT
    s_load_dwordx2 s[{SX}:{SX+1}], s[0:1], 0
    s_load_dwordx2 s[{SQ}:{SQ+1}], s[0:1], 8
    s_load_dwordx2 s[{SI}:{SI+1}], s[0:1], 32
    s_load_dwordx2 s[{SWS}:{SWS+1}], s[0:1], 80
    s_load_dwordx2 s[{SSP}:{SSP+1}], s[0:1], 40
    s_load_dwordx2 s[{SBS}:{SBS+1}], s[0:1], 48
    s_load_dwordx2 s[{SWO}:{SWO+1}], s[0:1], 16
    s_load_dwordx2 s[{SWT}:{SWT+1}], s[0:1], 56
    s_load_dwordx2 s[{SOUT}:{SOUT+1}], s[0:1], 64
    v_lshrrev_b32 v1, 6, v0
    v_and_b32 v0, 63, v0
    v_readfirstlane_b32 s{sW}, v1
    ''')
    for b, sz in ((SX, 2048*896), (SQ, 448*2688), (SI, 448*3584), (SWS, WS_SIZE), (SSP, 2048*4096), (SBS, 4096),
                  (SWO, 448*896), (SWT, 896*896), (SOUT, 2048*896)):
        e(f's_mov_b32 s{b+2}, {sz}\ns_mov_b32 s{b+3}, 0x20000')
    e(f'''
    s_and_b32 s47, s2, 3
    s_lshl_b32 s47, s47, 3
    s_bfe_u32 s48, s2, 0x30003
    s_add_u32 s{sRB}, s47, s48
    s_and_b32 s47, s2, 4
    s_lshr_b32 s48, s2, 6
    s_add_u32 s{sJ}, s47, s48
    s_mul_i32 s{sREG}, s{sW}, {REG}
    v_lshrrev_b32 v2, 3, v0
    v_and_b32 v3, 7, v0
    ''')
    if Opt.stamp:
        e('v_mov_b32 v15, 0')
    e(f'''
    s_cmp_eq_u32 s{sJ}, 7
    s_cbranch_scc1 L_ATT
    v_mul_u32_u24 v4, 896, v2
    v_lshl_add_u32 v4, v3, 4, v4
    s_lshl_b32 s47, s{sRB}, 3
    s_add_u32 s47, s47, s{sW}
    s_mul_i32 s47, s47, {8*896}
    s_bfe_u32 s{sCB}, s{sW}, 0x10001
    s_and_b32 s{sKH}, s{sW}, 1
    s_movk_i32 s48, 3584
    s_cmp_lt_u32 s{sW}, 4
    s_cselect_b32 s48, s48, 2688
    s_waitcnt lgkmcnt(0)
    ''')
    XR = 16
    for i in range(7):
        g.v(f'buffer_load_dwordx4 {vr(XR+4*i,4)}, v4, {S(SX)}, s47 offen offset:{i*128}', 'x')
    e(f's_load_dword s{sTAG}, s[{SWS}:{SWS+1}], {EPOCH_OFF}')
    e(f'''
    v_and_b32 v5, 3, v2
    v_lshrrev_b32 v6, 2, v2
    v_lshl_add_u32 v5, v6, 3, v5
    v_mul_lo_u32 v5, v5, s48
    v_and_b32 v6, 6, v2
    v_xor_b32 v6, v6, v3
    v_lshl_add_u32 v1, v6, 4, v5
    v_mov_b32 v12, v2
    v_mov_b32 v13, v3
    s_lshl_b32 s49, s48, 2
    s_sub_u32 s49, s49, 1024
    s_lshl_b32 s50, s48, 4
    s_sub_u32 s50, s50, 2048
    v_add_u32 v2, s49, v1
    v_add_u32 v3, s50, v1
    v_add_u32 v4, s49, v3
    s_mul_i32 s49, s48, 32
    s_mul_i32 s49, s49, s{sKH}
    s_barrier
    s_cmp_ge_u32 s{sW}, 4
    s_cbranch_scc1 L_G1PRE
    ''')
    def unit_dma(srd, sbase, c, slot, stride, tag):
        its = [f's_add_u32 s61, s{sbase}, {c*64*stride}\ns_add_u32 m0, s{sREG}, {slot*4096}']
        L = []
        for b in range(4):
            pre = its[0] + '\n' if b == 0 else ''
            L.append((pre + f'buffer_load_dwordx4 v{1+b}, {S(srd)}, s61 offen offset:{b*1024} lds', tag))
        return L
    vmx = list(g.vm)
    e(f'''
    s_lshl_b32 s51, s{sJ}, 8
    s_lshl_b32 s52, s{sCB}, 7
    s_add_u32 s51, s51, s52
    s_add_u32 s51, s51, s49
    s_add_u32 s50, s51, 1792
    ''')
    for c in range(4):
        for it in unit_dma(SI, 50, c, c, 3584, f'u{c}'): g.item(it)
    g.wait('x')
    vm_g0 = list(g.vm)
    e('s_branch L_LN')
    a.label('L_G1PRE')
    g.vm = list(vmx)
    e(f'''
    s_lshl_b32 s51, s{sJ}, 7
    s_add_u32 s51, s51, s49
    s_mul_i32 s52, s{sCB}, 896
    s_add_u32 s50, s51, s52
    s_add_u32 s50, s50, 896
    s_mul_i32 s52, s{sCB}, {256*2688}
    s_add_u32 s51, s51, s52
    v_mov_b32 v14, 0
    v_lshlrev_b32 v5, 2, v13
    v_add_u32 v5, {LF}, v5
    ds_write_b32 v5, v14
    ''')
    for it in unit_dma(SQ, 50, 0, 0, 2688, 'u0'): g.item(it)
    g.wait('x')
    vm_g1 = list(g.vm)
    a.label('L_LN')
    g.stamp(1)
    XF = 48
    for i in range(28):
        e(f'v_lshlrev_b32 v{XF+2*i}, 16, v{XR+i}')
        e(f'v_and_b32 v{XF+2*i+1}, 0xffff0000, v{XR+i}')
    AC = 104
    M = 112
    for jx in range(4):
        e(f'v_pk_add_f32 {vr(AC+2*jx,2)}, {vr(XF+2*jx,2)}, {vr(XF+8+2*jx,2)}')
    for i in range(8, 28):
        jx = i % 4
        e(f'v_pk_add_f32 {vr(AC+2*jx,2)}, {vr(AC+2*jx,2)}, {vr(XF+2*i,2)}')
    def red8(dst):
        e(f'''
        v_pk_add_f32 {vr(AC,2)}, {vr(AC,2)}, {vr(AC+2,2)}
        v_pk_add_f32 {vr(AC+4,2)}, {vr(AC+4,2)}, {vr(AC+6,2)}
        v_pk_add_f32 {vr(AC,2)}, {vr(AC,2)}, {vr(AC+4,2)}
        v_add_f32 v{dst}, v{AC}, v{AC+1}
        v_add_f32_dpp v{dst}, v{dst}, v{dst} quad_perm:[1,0,3,2] row_mask:0xf bank_mask:0xf
        v_add_f32_dpp v{dst}, v{dst}, v{dst} quad_perm:[2,3,0,1] row_mask:0xf bank_mask:0xf
        v_add_f32_dpp v{dst}, v{dst}, v{dst} row_half_mirror row_mask:0xf bank_mask:0xf
        ''')
    red8(M)
    e(f'v_mul_f32 v{M}, {f32(-1.0/448)}, v{M}\nv_mov_b32 v{M+1}, v{M}')
    for i in range(28):
        e(f'v_pk_add_f32 {vr(XF+2*i,2)}, {vr(XF+2*i,2)}, {vr(M,2)}')
    for jx in range(4):
        e(f'v_pk_mul_f32 {vr(AC+2*jx,2)}, {vr(XF+2*jx,2)}, {vr(XF+2*jx,2)}')
    for i in range(4, 28):
        jx = i % 4
        e(f'v_pk_fma_f32 {vr(AC+2*jx,2)}, {vr(XF+2*i,2)}, {vr(XF+2*i,2)}, {vr(AC+2*jx,2)}')
    red8(M)
    e(f'''
    v_mov_b32 v{M+2}, {f32(1e-5)}
    v_fmac_f32 v{M+2}, {f32(1.0/448)}, v{M}
    v_rsq_f32 v{M}, v{M+2}
    ''')
    e(f'''
    s_lshr_b32 s52, s{sW}, 2
    s_lshl_b32 s52, s52, 5
    s_and_b32 s53, s{sW}, 3
    s_lshl_b32 s53, s53, 2
    s_add_u32 s52, s52, s53
    v_lshrrev_b32 v6, 5, v0
    v_lshlrev_b32 v6, 4, v6
    v_and_b32 v7, 3, v12
    v_add3_u32 v6, v6, v7, s52
    v_lshlrev_b32 v7, 7, v6
    v_bfe_u32 v6, v6, 1, 3
    v_xor_b32 v6, v6, v13
    v_lshl_add_u32 v7, v6, 4, v7
    v_add_u32 v7, {XN0}, v7
    v_mov_b32 v{M+1}, v{M}
    ''')
    def slab_off(c): return (c >> 1) * REG + (c & 1) * 8192
    for i in range(7):
        for jx in range(4):
            k = 4 * i + jx
            e(f'v_pk_mul_f32 {vr(XF+2*k,2)}, {vr(XF+2*k,2)}, {vr(M,2)}')
        for jx in range(4):
            k = 4 * i + jx
            e(f'v_cvt_pk_bf16_f32 v{XR+k}, v{XF+2*k}, v{XF+2*k+1}')
        e(f'ds_write_b128 v7, {vr(XR+4*i,4)} offset:{slab_off(i)}')
    AA = 224
    e(f'''
    v_and_b32 v5, 15, v0
    v_lshrrev_b32 v6, 4, v0
    s_lshl_b32 s52, s{sKH}, 2
    v_add_u32 v6, s52, v6
    v_lshrrev_b32 v7, 1, v5
    v_xor_b32 v6, v6, v7
    v_lshlrev_b32 v6, 4, v6
    v_lshl_add_u32 v6, v5, 7, v6
    s_lshl_b32 s52, s{sKH}, 12
    s_add_u32 s53, s52, {XN0}
    s_sub_u32 s54, {XN0 + 4096}, s52
    v_add_u32 v{AA}, s53, v6
    v_add_u32 v{AA+1}, s54, v6
    v_add_u32 v{AA+2}, {2*REG}, v{AA}
    v_add_u32 v{AA+3}, {2*REG}, v{AA+1}
    ''')
    e(f'''
    v_bfe_u32 v6, v0, 2, 3
    v_lshrrev_b32 v7, 5, v0
    v_lshlrev_b32 v7, 11, v7
    v_lshl_add_u32 v7, v6, 7, v7
    v_and_b32 v5, 3, v0
    v_lshl_add_u32 v7, v5, 3, v7
    v_add_u32 v7, s{sREG}, v7
    v_lshrrev_b32 v6, 1, v6
    v_lshlrev_b32 v6, 5, v6
    ''')
    for t in range(4):
        e(f'v_xor_b32 v5, {t*32}, v6\nv_add_u32 v{8+t}, v7, v5')
    e(f'''
    v_lshlrev_b32 v5, 4, v0
    s_lshl_b32 s52, s{sW}, 2
    s_add_u32 s52, s52, {LF}
    v_mov_b32 v6, s52
    s_xor_b32 s52, s52, 4
    v_mov_b32 v7, s52
    s_add_u32 s52, s{sREG}, 8192
    v_add_u32 v12, s52, v5
    s_xor_b32 s53, s{sW}, 1
    s_mul_i32 s53, s53, {REG}
    s_add_u32 s53, s53, 8192
    v_add_u32 v13, s53, v5
    s_waitcnt lgkmcnt(0)
    s_add_u32 s{sTAG}, s{sTAG}, {TAGC}
    ''')
    g.stamp(2)
    e('s_barrier')
    g.stamp(3)
    AF = 16; ACC = 128; BF = 192; Y = 224
    def af(c, Tl): return AF + (c * 4 + Tl) * 4
    def acc(Tl, nt): return ACC + (Tl * 4 + nt) * 4
    def a_reads(c):
        return [f'ds_read_b128 {vr(af(c,Tl),4)}, v{AA + (2 if c >= 4 else 0) + (Tl>>1)} offset:{slab_off(c - (4 if c >= 4 else 0)) + (Tl&1)*2048}' for Tl in range(4)]
    def b_reads(k, slot):
        s = BF + 16 * (k & 1)
        return [f'ds_read_b64_tr_b16 {vr(s+4*t+2*h,2)}, v{8+t} offset:{slot*4096 + h*1024}' for t in range(4) for h in range(2)]
    def mfmas(k, c, orientD, first, order=(0, 1, 2, 3)):
        L = []
        s = BF + 16 * (k & 1)
        for Tl in order:
            for nt in range(4):
                xa = vr(af(c, Tl), 4); wb = vr(s + 4 * nt, 4); d = vr(acc(Tl, nt), 4)
                cc = '0' if first else d
                L.append(f'{MF} {d}, {xa}, {wb}, {cc}' if orientD else f'{MF} {d}, {wb}, {xa}, {cc}')
        return L
    def run_pass(units, orientD, dma_at, extra_reads={}, lgk={}, after={}, lastorder=(2, 3, 0, 1), pre_done=False):
        n = len(units)
        if not pre_done:
            g.wait('u0')
            for r in b_reads(0, 0): e(r)
        for k, c in enumerate(units):
            e(f's_waitcnt lgkmcnt({lgk.get(k, 0)})')
            M_ = mfmas(k, c, orientD, k == 0, lastorder if k == n - 1 else (0, 1, 2, 3))
            weave(g, M_[:4], dma_at.get(k, []))
            rd = []
            if k + 1 < n:
                if g.has(f'u{k+1}'): g.wait(f'u{k+1}')
                rd = b_reads(k + 1, (k + 1) % 4)
            pre, post = extra_reads.get(k, ([], []))
            rd = pre + rd + post
            weave(g, M_[4:], rd, per=(2 if len(rd) > 12 else 1))
            for it in after.get(k, []): g.item(it)
    def exchange2(dst, f0):
        for i in range(8):
            e(f'ds_write_b128 v12, {vr(ACC+32+4*i,4)} offset:{i*1024}')
        e('s_waitcnt lgkmcnt(0)')
        lds_flag(g, f0)
        lds_spin(g, f0)
        for i in range(8):
            e(f'ds_read_b128 {vr(ACC+32+4*i,4)}, v13 offset:{i*1024}')
        e('s_waitcnt lgkmcnt(4)')
        addv(g, dst, ACC, ACC + 32, 16)
        e('s_waitcnt lgkmcnt(0)')
        lds_flag(g, f0 + 1)
        addv(g, dst + 16, ACC + 16, ACC + 48, 16)
    def wsp_setup():
        e(f'''
        s_lshl_b32 s55, s{sRB}, 6
        s_lshr_b32 s57, s{sW}, 2
        s_lshl_b32 s57, s57, 5
        s_add_u32 s55, s55, s57
        s_bfe_u32 s57, s{sW}, 0x10001
        s_lshl_b32 s57, s57, 2
        s_add_u32 s55, s55, s57
        s_and_b32 s57, s{sW}, 1
        s_lshl_b32 s58, s57, 4
        s_add_u32 s55, s55, s58
        s_lshl_b32 s55, s55, 12
        s_lshl_b32 s57, s57, 2
        v_lshrrev_b32 v14, 4, v0
        v_add_u32 v14, s57, v14
        v_xor_b32 v14, v14, v0
        v_and_b32 v14, 7, v14
        v_lshlrev_b32 v14, 4, v14
        v_lshrrev_b32 v1, 5, v0
        v_lshl_add_u32 v14, v1, 15, v14
        v_bfe_u32 v1, v0, 3, 2
        v_lshl_add_u32 v1, v1, 12, v14
        ''')
        if Opt.rot:
            e(f's_and_b32 s56, s{sRB}, 7\ns_lshl_b32 s56, s56, 9')
        else:
            e('s_mov_b32 s56, 0')
    def wsp_dma(n):
        L = []
        for k in range(4):
            pre = f's_add_u32 s61, s56, {n*512}\ns_and_b32 s61, s61, 0xfff\ns_add_u32 s61, s61, s55\n' if k == 0 else ''
            L.append((pre + f's_add_u32 m0, s{sREG}, {((4*n+k) % 16)*1024 - 128*k}\n'
                      f'buffer_load_dwordx4 v1, {S(SSP)}, s61 offen offset:{128*k} lds', f'w{n}'))
        return L
    e(f's_cmp_ge_u32 s{sW}, 4\ns_cbranch_scc1 L_G1')
    g.vm = list(vm_g0)
    if Opt.prio: e('s_setprio 2')
    for r in a_reads(0): e(r)
    dz = {k: unit_dma(SI, 50, k + 4, k, 3584, f'u{k+4}') for k in range(3)}
    dz[4] = unit_dma(SI, 51, 0, 0, 3584, 'n0'); dz[5] = unit_dma(SI, 51, 1, 1, 3584, 'n1')
    run_pass(list(range(7)), True, dz,
             extra_reads={0: (a_reads(1), a_reads(2) + a_reads(3)), 1: ([], a_reads(4) + a_reads(5) + a_reads(6))},
             lgk={1: 8}, after={1: ['s_waitcnt lgkmcnt(0)', 's_barrier']})
    g.stamp(4)
    exchange2(Y, 1)
    g.stamp(5)
    CON = 176
    gelu_consts(g, CON)
    gelu(g, [Y + 2 * i for i in range(8)], BF, CON)
    lds_spin(g, 2)
    for c in (2, 3):
        for it in unit_dma(SI, 51, c, c, 3584, f'n{c}'): g.item(it)
    gelu(g, [Y + 16 + 2 * i for i in range(8)], BF, CON)
    SS = 160; QQ = 168
    def y(Tl, nt): return Y + (Tl * 4 + nt) * 4
    for Tl in range(2):
        for pr in range(2):
            s = SS + 4 * Tl + 2 * pr; q = QQ + 4 * Tl + 2 * pr
            yy = [y(Tl, nt) + 2 * pr for nt in range(4)]
            if Opt.pk:
                e(f'''
                v_pk_add_f32 {vr(s,2)}, {vr(yy[0],2)}, {vr(yy[1],2)}
                v_pk_mul_f32 {vr(q,2)}, {vr(yy[0],2)}, {vr(yy[0],2)}
                v_pk_add_f32 {vr(s,2)}, {vr(s,2)}, {vr(yy[2],2)}
                v_pk_fma_f32 {vr(q,2)}, {vr(yy[1],2)}, {vr(yy[1],2)}, {vr(q,2)}
                v_pk_add_f32 {vr(s,2)}, {vr(s,2)}, {vr(yy[3],2)}
                v_pk_fma_f32 {vr(q,2)}, {vr(yy[2],2)}, {vr(yy[2],2)}, {vr(q,2)}
                v_pk_fma_f32 {vr(q,2)}, {vr(yy[3],2)}, {vr(yy[3],2)}, {vr(q,2)}
                ''')
            else:
                for d in (0, 1):
                    e(f'''
                    v_add_f32 v{s+d}, v{yy[0]+d}, v{yy[1]+d}
                    v_mul_f32 v{q+d}, v{yy[0]+d}, v{yy[0]+d}
                    v_add_f32 v{s+d}, v{s+d}, v{yy[2]+d}
                    v_fmac_f32 v{q+d}, v{yy[1]+d}, v{yy[1]+d}
                    v_add_f32 v{s+d}, v{s+d}, v{yy[3]+d}
                    v_fmac_f32 v{q+d}, v{yy[2]+d}, v{yy[2]+d}
                    v_fmac_f32 v{q+d}, v{yy[3]+d}, v{yy[3]+d}
                    ''')
    O1 = BF; O2 = BF + 8
    for k, base in enumerate((SS, QQ)):
        for i in range(4):
            e(f'v_add_f32_dpp v{O1+4*k+i}, v{base+i}, v{base+i} row_ror:8 row_mask:0xf bank_mask:0x3')
        for i in range(4):
            e(f'v_add_f32_dpp v{O1+4*k+i}, v{base+4+i}, v{base+4+i} row_ror:8 row_mask:0xf bank_mask:0xc')
    for k in range(2):
        for i in range(2):
            e(f'v_add_f32_dpp v{O2+2*k+i}, v{O1+4*k+i}, v{O1+4*k+i} row_ror:12 row_mask:0xf bank_mask:0x5')
        for i in range(2):
            e(f'v_add_f32_dpp v{O2+2*k+i}, v{O1+4*k+2+i}, v{O1+4*k+2+i} row_ror:4 row_mask:0xf bank_mask:0xa')
    for i in range(4):
        e(f'v_add_f32_dpp v{O2+i}, v{O2+i}, v{O2+i} quad_perm:[1,0,3,2] row_mask:0xf bank_mask:0xf')
    for i in range(4):
        e(f'v_add_f32_dpp v{O2+i}, v{O2+i}, v{O2+i} quad_perm:[2,3,0,1] row_mask:0xf bank_mask:0xf')
    e(f'''
    s_mov_b32 s58, 0xaaaaaaaa
    s_mov_b32 s59, 0xaaaaaaaa
    s_mov_b32 vcc_lo, 0xcccccccc
    s_mov_b32 vcc_hi, 0xcccccccc
    v_cndmask_b32_e64 v{O1}, v{O2}, v{O2+1}, s[58:59]
    v_cndmask_b32_e64 v{O1+2}, v{O2+2}, v{O2+3}, s[58:59]
    v_cndmask_b32 v{O1}, v{O1}, v{O1+2}, vcc
    v_mov_b32 v{O1+1}, s{sTAG}
    v_lshrrev_b32 v{O1+2}, 2, v0
    v_lshlrev_b32 v{O1+2}, 5, v{O1+2}
    v_and_b32 v{O1+3}, 1, v0
    v_lshl_add_u32 v{O1+2}, v{O1+3}, 4, v{O1+2}
    v_bfe_u32 v{O1+3}, v0, 1, 1
    v_lshl_add_u32 v{O1+2}, v{O1+3}, 3, v{O1+2}
    s_lshl_b32 s52, s{sRB}, 1
    s_add_u32 s52, s52, s{sKH}
    s_mul_i32 s53, s52, {14*512}
    s_add_u32 s53, s53, {ST_OFF}
    s_lshl_b32 s54, s{sJ}, 1
    s_add_u32 s54, s54, s{sCB}
    s_lshl_b32 s57, s54, 9
    s_add_u32 s57, s57, s53
    ''')
    g.v(f'buffer_store_dwordx2 {vr(O1,2)}, v{O1+2}, {S(SWS)}, s57 offen sc1', 'st')
    g.stamp(6)
    g.vm = [t.replace('n', 'u') if t and t[0] == 'n' else t for t in g.vm]
    d1 = {k: unit_dma(SI, 51, k + 4, k, 3584, f'u{k+4}') for k in range(3)}
    STR = 16
    def stat_loads():
        L = []
        for n in range(7):
            pre = 's_add_u32 s57, s53, 4096\n' if n == 4 else ''
            L.append((pre + f'buffer_load_dwordx4 {vr(STR+4*n,4)}, v5, {S(SWS)}, s{53 if n < 4 else 57} offen offset:{(n%4)*1024} sc1', 'sl'))
        return L
    d1[3] = [wsp_setup]
    d1[4] = wsp_dma(0); d1[5] = wsp_dma(1); d1[6] = stat_loads()
    run_pass(list(range(7)), False, d1)
    g.stamp(7)
    for i in range(8):
        e(f'ds_write_b128 v12, {vr(ACC+32+4*i,4)} offset:{i*1024}')
    e('s_waitcnt lgkmcnt(0)')
    lds_flag(g, 3)
    LR = g.lab('SR'); LD = g.lab('SK')
    e('s_movk_i32 s62, 0x1000')
    g.wait('sl')
    a.label(LR)
    tg = [STR + 4 * n + d for n in range(7) for d in (1, 3)]
    for op, dst in (('max', 44), ('min', 45)):
        e(f'v_{op}3_u32 v{dst}, v{tg[0]}, v{tg[1]}, v{tg[2]}')
        for i in range(3, 13, 2):
            e(f'v_{op}3_u32 v{dst}, v{dst}, v{tg[i]}, v{tg[i+1]}')
        e(f'v_{op}_u32 v{dst}, v{dst}, v{tg[13]}')
    e(f'''
    v_xor_b32 v44, s{sTAG}, v44
    v_xor_b32 v45, s{sTAG}, v45
    v_or_b32 v44, v44, v45
    v_cmp_ne_u32 vcc, 0, v44
    s_nop 1
    s_cbranch_vccz {LD}
    s_sub_u32 s62, s62, 1
    s_cbranch_scc1 {LD}
    s_sleep 1
    ''')
    for it in stat_loads(): e(it[0])
    e(f's_waitcnt vmcnt(0)\ns_branch {LR}')
    a.label(LD)
    g.stamp(8)
    for d in (0, 2):
        r = STR + d
        e(f'''
        v_add_f32 v{r}, v{r}, v{r+4}
        v_add_f32 v{r+8}, v{r+8}, v{r+12}
        v_add_f32 v{r+16}, v{r+16}, v{r+20}
        v_add_f32 v{r}, v{r}, v{r+24}
        v_add_f32 v{r+8}, v{r+8}, v{r+16}
        v_add_f32 v{r}, v{r}, v{r+8}
        v_mov_b32 v{r+1}, v{r}
        ''')
    e(f'''
    v_permlane32_swap_b32 v{STR}, v{STR+1}
    v_permlane32_swap_b32 v{STR+2}, v{STR+3}
    v_add_f32 v{STR}, v{STR}, v{STR+1}
    v_add_f32 v{STR+2}, v{STR+2}, v{STR+3}
    v_mul_f32 v{STR}, {f32(1.0/896)}, v{STR}
    v_mul_f32 v{STR+2}, {f32(1.0/896)}, v{STR+2}
    v_fma_f32 v{STR+2}, -v{STR}, v{STR}, v{STR+2}
    v_max_f32 v{STR+2}, 0, v{STR+2}
    v_add_f32 v{STR+2}, {f32(1e-5)}, v{STR+2}
    v_rsq_f32 v{STR+2}, v{STR+2}
    s_lshl_b32 s57, s{sW}, 9
    s_add_u32 s57, s57, {LF + 256}
    v_lshl_add_u32 v{STR+4}, v0, 2, s57
    v_lshrrev_b32 v{STR+5}, 4, v0
    v_lshl_add_u32 v{STR+5}, v{STR+5}, 5, s57
    v_mul_f32 v{STR}, -v{STR}, v{STR+2}
    v_cmp_lt_u32 vcc, 31, v0
    v_cndmask_b32 v{STR}, v{STR+2}, v{STR}, vcc
    ds_write_b32 v{STR+4}, v{STR}
    s_waitcnt lgkmcnt(0)
    ds_read_b128 v[24:27], v{STR+5}
    ds_read_b128 v[28:31], v{STR+5} offset:16
    ds_read_b128 v[32:35], v{STR+5} offset:128
    ds_read_b128 v[36:39], v{STR+5} offset:144
    s_lshl_b32 s57, s54, 18
    s_lshl_b32 s58, s52, 11
    s_add_u32 s57, s57, s58
    s_add_u32 s57, s57, {Z2_OFF}
    s_add_u32 s58, s57, 0x20000
    s_waitcnt lgkmcnt(0)
    ''')
    for nt in range(4):
        for Tl in range(2):
            r = y(Tl, nt)
            if Opt.pk:
                for d in (0, 2):
                    e(f'v_pk_fma_f32 {vr(r+d,2)}, {vr(r+d,2)}, {vr(24+4*Tl+d,2)}, {vr(32+4*Tl+d,2)}')
            else:
                for d in range(4):
                    e(f'v_fma_f32 v{r+d}, v{r+d}, v{24+4*Tl+d}, v{32+4*Tl+d}')
        pack(g, 48 + 4 * nt, y(0, nt), y(1, nt))
        g.v(f'buffer_store_dwordx4 {vr(48+4*nt,4)}, v5, {S(SWS)}, s{57 + (nt>>1)} offen offset:{(nt&1)*1024} sc1', 'z2')
    g.stamp(9)
    lds_spin(g, 3)
    for i in range(8):
        e(f'ds_read_b128 {vr(ACC+32+4*i,4)}, v13 offset:{i*1024}')
    CON = 64
    gelu_consts(g, CON)
    e('s_waitcnt lgkmcnt(0)')
    lds_flag(g, 4)
    addv(g, ACC, ACC, ACC + 32, 32)
    gelu(g, [ACC + 2 * i for i in range(8)], BF, CON)
    lds_spin(g, 4)
    for n in (2, 3):
        for it in wsp_dma(n): g.item(it)
    e(f'''
    s_lshl_b32 s57, s54, 6
    s_add_u32 s57, s57, s52
    s_mul_i32 s57, s57, {FS}
    s_add_u32 s57, s57, {FZ_OFF}
    ''')
    g.wait('z2')
    gflag(g, 57)
    g.stamp(10)
    gelu(g, [ACC + 16 + 2 * i for i in range(8)], BF, CON)
    for Tl in range(2):
        for v_ in range(2):
            d = 68 + (Tl * 2 + v_) * 4
            pack(g, d, acc(Tl, 2 * v_), acc(Tl, 2 * v_ + 1))
            e(f'ds_write_b128 v12, {vr(d,4)} offset:{8192 + (Tl*2+v_)*1024}')
    if Opt.prio: e('s_setprio 0')
    g.stamp(11)
    e('s_branch L_PB')
    a.label('L_G1')
    g.vm = list(vm_g1)
    for c in range(7):
        for r in a_reads(c): e(r)
        if c in (2, 5): e('s_waitcnt lgkmcnt(4)')
    g.wait('u0')
    e('s_waitcnt lgkmcnt(4)')
    for r in b_reads(0, 0): e(r)
    e('s_waitcnt lgkmcnt(0)\ns_barrier')
    for c in (1, 2, 3):
        for it in unit_dma(SQ, 50, c, c, 2688, f'u{c}'): g.item(it)
    dk = {k: unit_dma(SQ, 50, k + 4, k, 2688, f'u{k+4}') for k in range(3)}
    dk[4] = unit_dma(SQ, 51, 0, 0, 2688, 'n0'); dk[5] = unit_dma(SQ, 51, 1, 1, 2688, 'n1')
    run_pass(list(range(7)), True, dk, pre_done=True)
    g.stamp(4)
    exchange2(ACC, 1)
    g.stamp(5)
    CON = 176
    phi_consts(g, CON)
    e(f'''
    s_lshl_b32 s52, s{sRB}, 1
    s_add_u32 s52, s52, s{sKH}
    s_lshl_b32 s53, s{sJ}, 18
    s_lshl_b32 s54, s52, 10
    s_add_u32 s53, s53, s54
    s_mul_i32 s54, s{sCB}, {VD_OFF - KD_OFF}
    s_add_u32 s53, s53, s54
    s_add_u32 s53, s53, {KD_OFF}
    s_lshl_b32 s54, s{sJ}, 1
    s_add_u32 s54, s54, s{sCB}
    s_lshl_b32 s54, s54, 6
    s_add_u32 s54, s54, s52
    s_mul_i32 s54, s54, {FS}
    s_add_u32 s54, s54, {FK_OFF}
    s_cmp_eq_u32 s{sCB}, 1
    s_cbranch_scc1 L_G1V
    ''')
    vm_kv = list(g.vm)
    for cbv in (0, 1):
        if cbv == 1:
            a.label('L_G1V'); a.fence(2)
            g.vm = list(vm_kv)
        units = [0, 1, 2, 3] if cbv == 0 else [4, 5, 6]
        if cbv == 0:
            phi(g, [ACC + 2 * i for i in range(8)], BF, CON)
        lds_spin(g, 2)
        for c in range(2, len(units)):
            for it in unit_dma(SQ, 51, c, c, 2688, f'n{c}'): g.item(it)
        if cbv == 0:
            phi(g, [ACC + 16 + 2 * i for i in range(8)], BF, CON)
        for nt in range(4):
            pack(g, Y + 4 * nt, acc(0, nt), acc(1, nt))
            g.v(f'buffer_store_dwordx4 {vr(Y+4*nt,4)}, v5, {S(SWS)}, s53 offen sc1', 'kv')
            if nt < 3: e('s_add_u32 s53, s53, 0x10000')
        g.stamp(6)
        g.vm = [t.replace('n', 'u') if t and t[0] == 'n' else t for t in g.vm]
        keep = cbv
        order = tuple(t for t in (2, 3, 1 - keep, keep))
        run_pass(units, False, {}, lastorder=order)
        g.stamp(7)
        e(f'''
        s_lshl_b32 s57, s{sKH}, 13
        s_add_u32 s58, s{sREG}, s57
        v_add_u32 v12, s58, v5
        s_xor_b32 s57, s57, 8192
        s_add_u32 s58, s{sREG}, s57
        v_add_u32 v13, s58, v5
        v_mov_b32 v7, {LF + 16}
        ''')
        for Tl in order[:3]:
            for nt in range(4):
                e(f'ds_write_b128 v{12 + (Tl>>1)}, {vr(acc(Tl,nt),4)} offset:{(Tl&1)*4096 + nt*1024}')
        g.wait('kv', 'lgkmcnt(0)')
        lds_flag(g, 3)
        gflag(g, 54)
        wsp_setup()
        e(f'''
        s_lshl_b32 s57, s{sKH}, 13
        s_add_u32 s57, s57, {keep*4096}
        ''')
        for x in (1, 2, 3):
            e(f'''
            s_xor_b32 s58, s{sW}, {x}
            s_mul_i32 s58, s58, {REG}
            s_add_u32 s58, s58, s57
            v_add_u32 v{8+x}, s58, v5
            ''')
        phi_consts(g, 64)
        lds_spin(g, 3, four=True)
        for x in (1, 2, 3):
            for nt in range(4):
                e(f'ds_read_b128 {vr(16+(x-1)*16+4*nt,4)}, v{8+x} offset:{nt*1024}')
        K = acc(keep, 0)
        e('s_waitcnt lgkmcnt(8)')
        addv(g, K, K, 16, 16)
        e('s_waitcnt lgkmcnt(0)')
        lds_flag(g, 4)
        addv(g, 32, 32, 48, 16)
        addv(g, K, K, 32, 16)
        phi(g, [K + 2 * i for i in range(8)], BF, 64)
        e(f'''
        s_lshl_b32 s52, s{sRB}, 2
        s_lshl_b32 s53, s{sKH}, 1
        s_add_u32 s52, s52, s53
        s_add_u32 s52, s52, {keep}
        s_mul_i32 s53, s52, 14336
        s_lshl_b32 s54, s{sJ}, 11
        s_add_u32 s53, s53, s54
        s_add_u32 s53, s53, {PQ_OFF}
        s_lshl_b32 s54, s{sJ}, 7
        s_add_u32 s54, s54, s52
        s_mul_i32 s54, s54, {FS}
        s_add_u32 s54, s54, {FQ_OFF}
        ''')
        for v_ in range(2):
            pack(g, 68 + 4 * v_, K + 8 * v_, K + 8 * v_ + 4)
            g.v(f'buffer_store_dwordx4 {vr(68+4*v_,4)}, v5, {S(SWS)}, s53 offen offset:{v_*1024} sc1', 'pq')
        lds_spin(g, 4, four=True)
        for n in range(4):
            for it in wsp_dma(n): g.item(it)
        g.wait('pq')
        gflag(g, 54)
        g.stamp(11)
        if cbv == 0: e('s_branch L_PB')
    a.label('L_PB'); a.fence(2)
    g.vm = []
    ZB = 16; BACC = 128; BA = 160; BS = 112; Z1R = 116; XRES = 124
    e(f'''
    s_and_b32 s{sCB}, s{sW}, 3
    s_lshr_b32 s{sKH}, s{sW}, 2
    s_lshl_b32 s52, s{sJ}, 1
    s_lshr_b32 s53, s{sCB}, 1
    s_add_u32 s52, s52, s53
    s_mul_i32 s52, s52, {64*FS}
    s_add_u32 s52, s52, {FZ_OFF}
    v_mul_u32_u24 v2, {FS}, v0
    s_lshl_b32 s47, s{sJ}, 2
    s_add_u32 s47, s47, s{sCB}
    s_lshl_b32 s48, s47, 17
    s_lshl_b32 s49, s{sKH}, 12
    s_add_u32 s48, s48, s49
    s_add_u32 s48, s48, {Z2_OFF}
    s_lshl_b32 s49, s56, 5
    v_add_u32 v6, 8192, v5
    ''')
    e(f'''
    v_bfe_u32 v3, v0, 2, 2
    v_lshlrev_b32 v3, 4, v3
    v_and_b32 v4, 3, v0
    v_lshl_add_u32 v3, v4, 1, v3
    s_lshl_b32 s53, s{sRB}, 7
    s_lshl_b32 s54, s{sKH}, 6
    s_add_u32 s53, s53, s54
    ''')
    for Tl in range(2):
        g.v(f'buffer_load_ushort v{BS+2*Tl}, v3, {S(SBS)}, s53 offen offset:{Tl*8}', 'b')
    e(f'''
    v_and_b32 v3, 15, v0
    v_lshrrev_b32 v4, 4, v0
    v_lshrrev_b32 v7, 1, v3
    v_xor_b32 v4, v4, v7
    v_lshlrev_b32 v4, 4, v4
    v_and_b32 v7, 7, v0
    v_lshl_add_u32 v4, v7, 7, v4
    v_lshrrev_b32 v3, 3, v3
    v_mul_u32_u24 v3, {REG}, v3
    v_add_u32 v4, v4, v3
    s_mul_i32 s53, s{sKH}, {4*REG + 1024}
    s_mul_i32 s54, s{sKH}, {4*REG - 1024}
    s_sub_u32 s54, {4*REG}, s54
    v_add_u32 v8, s53, v4
    v_xor_b32 v9, 64, v8
    v_add_u32 v10, s54, v4
    v_xor_b32 v11, 64, v10
    ''')
    e(f'''
    v_lshrrev_b32 v3, 3, v0
    v_and_b32 v4, 6, v3
    v_xor_b32 v4, v4, v0
    v_and_b32 v4, 7, v4
    v_lshlrev_b32 v4, 4, v4
    v_mad_u32_u24 v12, v3, 896, v4
    s_cmp_eq_u32 s{sCB}, 3
    s_cselect_b32 s53, 3, 7
    v_and_b32 v3, s53, v3
    v_mad_u32_u24 v13, v3, 896, v4
    s_mul_i32 s50, s{sCB}, {8*896}
    s_lshl_b32 s53, s{sJ}, 7
    s_add_u32 s50, s50, s53
    s_mul_i32 s51, s{sKH}, {32*896}
    s_add_u32 s51, s51, s50
    s_mul_i32 s53, s{sKH}, {28*896}
    s_add_u32 s50, s50, s53
    ''' .replace('896, v4', 's60, v4').replace('v_lshrrev_b32 v3, 3, v0', 's_movk_i32 s60, 896\n    v_lshrrev_b32 v3, 3, v0'))
    def w3slot(yy): return yy if yy < 20 else yy - 16
    def w3_dma(yy):
        if yy < 8:
            t = f's_add_u32 s61, s50, {yy*56*896}\ns_add_u32 m0, s{sREG}, {w3slot(yy)*1024}\nbuffer_load_dwordx4 v13, {S(SWO)}, s61 offen lds'
        else:
            t = f's_add_u32 s61, s51, {(yy-8)*64*896}\ns_add_u32 m0, s{sREG}, {w3slot(yy)*1024}\nbuffer_load_dwordx4 v12, {S(SWT)}, s61 offen lds'
        return (t, f'y{yy}')
    def z_loads(n):
        r = ZB + (n % 3) * 32
        L = []
        for k in range(8):
            pre = f's_add_u32 s57, s49, {n*16384}\ns_and_b32 s57, s57, 0x1ffff\ns_add_u32 s57, s57, s48\n' if k == 0 else ''
            L.append((pre + f'buffer_load_dwordx4 {vr(r+4*k,4)}, v{5 + k//4}, {S(SWS)}, s57 offen offset:{(k%4)*1024} sc1', f'z{n}_{k//2}'))
        return L
    g.stamp(12)
    gpoll(g, 2, 52)
    g.stamp(13)
    for n in (0, 1):
        for it in z_loads(n): g.item(it)
    e('s_waitcnt lgkmcnt(0)\ns_barrier')
    g.stamp(14)
    e(f'''
    s_lshr_b32 s53, s{sCB}, 1
    s_lshl_b32 s53, s53, 1
    s_add_u32 s53, s53, s{sKH}
    s_mul_i32 s53, s53, {REG}
    s_and_b32 s54, s{sCB}, 1
    s_lshl_b32 s54, s54, 10
    s_add_u32 s53, s53, s54
    v_add_u32 v3, s53, v5
    ds_read_b128 {vr(Z1R,4)}, v3 offset:16384
    ds_read_b128 {vr(Z1R+4,4)}, v3 offset:{16384+2048}
    ''')
    def bacc(ft, Tl): return BACC + (Tl * 2 + ft) * 4
    def ba_reads(n, q):
        s = BA + 16 * (q & 1)
        slot = (4 * n + 2 * (q >> 1)) % 16
        return [f'ds_read_b128 {vr(s+4*Tl,4)}, v{8 + (Tl>>1)*2 + (q&1)} offset:{(Tl&1)*2*REG + slot*1024}' for Tl in range(4)]
    for r in ba_reads(0, 0): e(r)
    for n in range(8):
        sec = []
        if n >= 1:
            if n - 1 < 4: sec += wsp_dma(n + 3)
            else: sec += [w3_dma(yy) for yy in range(4 * (n - 5), 4 * (n - 5) + 4)]
        if n + 2 < 8: sec += z_loads(n + 2)
        if n == 7:
            pass
        per = (len(sec) + 3) // 4
        for q in range(4):
            g.wait(f'z{n}_{q}', 'lgkmcnt(0)')
            s = BA + 16 * (q & 1)
            zr = ZB + (n % 3) * 32 + q * 8
            order = (2, 3, 0, 1) if (n == 7 and q == 3) else (0, 1, 2, 3)
            M_ = [f'{MF} {vr(bacc(ft,Tl),4)}, {vr(zr+4*ft,4)}, {vr(s+4*Tl,4)}, {"0" if (n == 0 and q == 0) else vr(bacc(ft,Tl),4)}'
                  for Tl in order for ft in range(2)]
            nxt = ba_reads(n, q + 1) if q < 3 else (ba_reads(n + 1, 0) if n < 7 else [])
            mine = sec[q * per:(q + 1) * per]
            weave(g, M_[:4], nxt)
            weave(g, M_[4:], mine)
        if n < 7:
            if g.has(f'w{n+2}'): g.wait(f'w{n+2}')
            e('s_barrier')
        g.stamp(15 + n)
    e(f'''
    s_add_u32 s53, s{sREG}, 16384
    v_add_u32 v3, s53, v5
    s_xor_b32 s54, s{sW}, 4
    s_mul_i32 s54, s54, {REG}
    s_add_u32 s54, s54, 16384
    v_add_u32 v4, s54, v5
    ''')
    for i in range(4):
        e(f'ds_write_b128 v3, {vr(BACC+16+4*i,4)} offset:{i*1024}')
    UT = 16
    for Tl in range(2):
        e(f'v_lshlrev_b32 v{BS+2*Tl}, 16, v{BS+2*Tl}\nv_mov_b32 v{BS+2*Tl+1}, v{BS+2*Tl}')
        for jx in range(4):
            e(f'v_lshlrev_b32 v{UT+8*Tl+2*jx}, 16, v{Z1R+4*Tl+jx}')
            e(f'v_and_b32 v{UT+8*Tl+2*jx+1}, 0xffff0000, v{Z1R+4*Tl+jx}')
    for Tl in range(2):
        for jx in range(4):
            r = BACC + 8 * Tl + 2 * jx
            e(f'v_pk_add_f32 {vr(r,2)}, {vr(r,2)}, {vr(BS+2*Tl,2)}')
    if g.has('y7'): g.wait('y7', 'lgkmcnt(0)')
    else: e('s_waitcnt lgkmcnt(0)')
    e('s_barrier')
    for i in range(4):
        e(f'ds_read_b128 {vr(BACC+16+4*i,4)}, v4 offset:{i*1024}')
    e(f'''
    s_lshl_b32 s53, s{sRB}, 2
    s_lshl_b32 s54, s{sKH}, 1
    s_add_u32 s53, s53, s54
    s_mul_i32 s53, s53, 44
    s_add_u32 s53, s53, s47
    s_lshl_b32 s53, s53, 10
    s_add_u32 s53, s53, {ACT_OFF + 16*1024}
    s_add_u32 s54, s53, {44*1024}
    s_waitcnt lgkmcnt(0)
    ''')
    for Tl in range(2):
        for jx in range(4):
            r = BACC + 8 * Tl + 2 * jx
            e(f'v_pk_add_f32 {vr(r,2)}, {vr(r,2)}, {vr(r+16,2)}')
        for jx in range(4):
            r = BACC + 8 * Tl + 2 * jx
            e(f'v_pk_mul_f32 {vr(r,2)}, {vr(r,2)}, {vr(UT+8*Tl+2*jx,2)}')
        pack(g, Z1R + 4 * Tl, BACC + 8 * Tl, BACC + 8 * Tl + 4)
        g.v(f'buffer_store_dwordx4 {vr(Z1R+4*Tl,4)}, v5, {S(SWS)}, s{53+Tl} offen sc1', 'U')
    for yy in range(12, 16): g.item(w3_dma(yy))
    if g.has('y11'): g.wait('y11')
    e('s_barrier')
    for yy in range(16, 20): g.item(w3_dma(yy))
    e(f'''
    s_lshl_b32 s53, s{sRB}, 1
    s_add_u32 s54, s53, s{sKH}
    s_mul_i32 s54, s54, 28
    s_add_u32 s54, s54, s47
    s_mul_i32 s54, s54, {FS}
    s_add_u32 s54, s54, {FU_OFF}
    s_lshr_b32 s52, s{sCB}, 1
    s_add_u32 s52, s52, s53
    s_mul_i32 s52, s52, {28*FS}
    s_add_u32 s52, s52, {FU_OFF}
    s_lshr_b32 s53, s{sRB}, 1
    s_mul_i32 s53, s53, {16*FS}
    s_add_u32 s53, s53, {FO_OFF}
    v_and_b32 v3, 15, v0
    v_mul_u32_u24 v3, {FS}, v3
    v_min_u32 v4, 27, v0
    v_mul_u32_u24 v4, {FS}, v4
    s_lshl_b32 s48, s{sRB}, 2
    s_add_u32 s48, s48, s{sCB}
    s_mul_i32 s48, s48, 44
    s_add_u32 s48, s48, s{sKH}
    s_lshl_b32 s48, s48, 10
    s_add_u32 s48, s48, {ACT_OFF}
    ''')
    g.wait('U')
    gflag(g, 54)
    g.stamp(23)
    gpoll(g, 3, 53)
    g.stamp(24)
    CF = 16; CACC = 128; CW = 160
    def act_load(yy):
        pre = f's_add_u32 s57, s48, {yy*2048}\n' if yy % 2 == 0 else ''
        return (pre + f'buffer_load_dwordx4 {vr(CF+4*yy,4)}, v5, {S(SWS)}, s57 offen offset:{(yy%2)*2048} sc1', f'a{yy}')
    for yy in range(8): g.item(act_load(yy))
    e(f'''
    v_lshrrev_b32 v6, 5, v0
    v_lshlrev_b32 v6, 3, v6
    v_bfe_u32 v7, v0, 3, 2
    v_add_u32 v6, v6, v7
    v_mul_u32_u24 v6, 896, v6
    v_and_b32 v7, 7, v0
    v_lshl_add_u32 v6, v7, 4, v6
    s_lshr_b32 s49, s55, 12
    s_mul_i32 s49, s49, 896
    s_lshl_b32 s57, s{sJ}, 7
    s_add_u32 s49, s49, s57
    ''')
    g.v(f'buffer_load_dwordx4 {vr(XRES,4)}, v6, {S(SX)}, s49 offen', 'xr')
    e(f'''
    v_bfe_u32 v2, v0, 2, 3
    v_lshrrev_b32 v7, 5, v0
    v_mul_u32_u24 v7, {REG}, v7
    v_lshl_add_u32 v7, v2, 7, v7
    v_and_b32 v3, 3, v0
    v_lshl_add_u32 v7, v3, 3, v7
    s_mul_i32 s57, s{sKH}, {4*REG}
    v_add_u32 v7, s57, v7
    v_lshrrev_b32 v2, 1, v2
    v_lshlrev_b32 v2, 5, v2
    ''')
    for t in range(4):
        e(f'v_xor_b32 v3, {t*32}, v2\nv_add_u32 v{8+t}, v7, v3')
    def cw_reads(yy):
        s = CW + 16 * (yy & 1)
        return [f'ds_read_b64_tr_b16 {vr(s+4*t+2*h,2)}, v{8+t} offset:{h*2*REG + w3slot(yy)*1024}' for t in range(4) for h in range(2)]
    def c_part(y0, y1):
        for r in cw_reads(y0): e(r)
        for yy in range(y0, y1):
            g.wait(f'a{yy}', 'lgkmcnt(0)')
            s = CW + 16 * (yy & 1)
            M_ = [f'{MF} {vr(CACC+4*nt,4)}, {vr(s+4*nt,4)}, {vr(CF+4*yy,4)}, {"0" if yy == 0 else vr(CACC+4*nt,4)}' for nt in range(4)]
            weave(g, M_, cw_reads(yy + 1) if yy + 1 < y1 else [], per=2)
    c_part(0, 8)
    e('s_barrier')
    g.stamp(25)
    for yy in (20, 21): g.item(w3_dma(yy))
    gpoll(g, 4, 52)
    g.stamp(26)
    for yy in range(8, 22): g.item(act_load(yy))
    e('s_barrier')
    c_part(8, 22)
    g.stamp(27)
    e(f'''
    v_and_b32 v2, 15, v0
    v_lshrrev_b32 v3, 4, v0
    v_xor_b32 v3, v3, v2
    v_lshlrev_b32 v3, 4, v3
    v_lshl_add_u32 v3, v2, 8, v3
    v_add_u32 v3, s{sREG}, v3
    ''')
    for nt in range(4):
        e(f'v_xor_b32 v{8+nt}, {nt*64}, v3')
    for nt in range(4):
        e(f'ds_write_b128 v{8+nt}, {vr(CACC+4*nt,4)}')
    e(f'''
    s_and_b32 s57, s{sW}, 1
    s_lshl_b32 s57, s57, 3
    v_lshrrev_b32 v2, 3, v0
    v_add_u32 v2, s57, v2
    v_and_b32 v3, 7, v0
    v_lshlrev_b32 v3, 1, v3
    v_xor_b32 v3, v3, v2
    v_lshlrev_b32 v3, 4, v3
    v_lshl_add_u32 v3, v2, 8, v3
    s_lshr_b32 s57, s{sW}, 1
    s_mul_i32 s57, s57, {REG}
    v_add_u32 v3, s57, v3
    v_xor_b32 v4, 16, v3
    v_add_u32 v12, {4*REG}, v3
    v_add_u32 v13, {4*REG}, v4
    ''')
    for jx in range(4):
        e(f'v_lshlrev_b32 v{16+2*jx}, 16, v{XRES+jx}\nv_and_b32 v{17+2*jx}, 0xffff0000, v{XRES+jx}')
    e(f'''
    s_waitcnt lgkmcnt(0)
    s_barrier
    ds_read_b128 v[24:27], v3
    ds_read_b128 v[28:31], v4
    ds_read_b128 v[32:35], v12
    ds_read_b128 v[36:39], v13
    s_waitcnt lgkmcnt(2)
    ''')
    for jx in range(4):
        e(f'v_pk_add_f32 {vr(16+2*jx,2)}, {vr(16+2*jx,2)}, {vr(24+2*jx,2)}')
    e('s_waitcnt lgkmcnt(0)')
    for jx in range(4):
        e(f'v_pk_add_f32 {vr(16+2*jx,2)}, {vr(16+2*jx,2)}, {vr(32+2*jx,2)}')
    pack(g, 24, 16, 20)
    g.v(f'buffer_store_dwordx4 v[24:27], v6, {S(SOUT)}, s49 offen', 'out')
    e(f'''
    s_or_b32 s57, s{sRB}, s{sJ}
    s_or_b32 s57, s57, s{sW}
    s_cmp_lg_u32 s57, 0
    s_cbranch_scc1 L_END
    ''')
    assert FS == 4
    e(f's_mov_b32 s57, {FO_OFF}')
    gpoll(g, 5, 57, x4=True)
    e(f's_mov_b32 s57, {EPOCH_OFF}')
    gflag(g, 57)
    e('s_branch L_END')
    a.label('L_ATT'); a.fence(2)
    g.vm = []
    sH, sOFF, sT0 = 47, 48, 49
    e(f'''
    s_waitcnt lgkmcnt(0)
    s_load_dword s{sTAG}, s[{SWS}:{SWS+1}], {EPOCH_OFF}
    s_lshr_b32 s{sH}, s{sRB}, 1
    s_and_b32 s{sKH}, s{sRB}, 1
    s_mul_i32 s50, s{sH}, 7
    s_and_b32 s{sOFF}, s50, 3
    s_lshr_b32 s{sT0}, s50, 2
    v_lshlrev_b32 v5, 4, v0
    ''')
    if Opt.pf:
        e(f'''
        s_lshl_b32 s51, s{sRB}, 3
        s_add_u32 s51, s51, s{sW}
        s_lshl_b32 s51, s51, 15
        s_sleep 32
        ''')
        for i in range(32):
            e(f'buffer_load_dwordx4 {vr(16+4*i,4)}, v5, {S(SSP)}, s51 offen offset:{(i%4)*1024}')
            if i % 4 == 3: e('s_add_u32 s51, s51, 4096')
    e(f'''
    v_bfe_u32 v2, v0, 2, 2
    v_cmp_gt_u32 vcc, s{sOFF}, v2
    v_cndmask_b32_e64 v3, 0, 1, vcc
    v_add_u32 v3, s{sT0}, v3
    v_lshl_add_u32 v8, v3, 16, v5
    v_add_u32 v9, 0x10000, v8
    ''')
    e(f'''
    s_mul_i32 s50, s{sH}, 28
    s_lshr_b32 s51, s50, 6
    s_add_u32 s52, s50, 27
    s_lshr_b32 s52, s52, 6
    s_sub_u32 s52, s52, s51
    v_bfe_u32 v3, v0, 4, 1
    v_mul_u32_u24 v3, s52, v3
    v_add_u32 v3, s51, v3
    v_lshlrev_b32 v4, 7, v3
    v_bfe_u32 v6, v0, 3, 1
    v_lshl_add_u32 v6, v6, 6, v4
    v_and_b32 v7, 7, v0
    v_add_u32 v6, v6, v7
    v_mul_u32_u24 v6, {FS}, v6
    v_add_u32 v4, v4, v7
    v_mul_u32_u24 v7, {FS}, v4
    s_mul_i32 s53, s{sW}, {8*FS}
    s_add_u32 s54, s53, {FK_OFF}
    s_mul_i32 s55, s{sKH}, {64*FS}
    s_add_u32 s55, s55, s53
    s_add_u32 s55, s55, {FQ_OFF}
    s_lshl_b32 s56, s{sW}, 13
    s_add_u32 s57, s56, {VD_OFF}
    s_add_u32 s56, s56, {KD_OFF}
    s_waitcnt lgkmcnt(0)
    s_add_u32 s{sTAG}, s{sTAG}, {TAGC}
    ''')
    g.stamp(1)
    gpoll(g, 6, 54)
    g.stamp(2)
    KB = 16; VB = 80; QB = 144; KA = 176; ONE = 200
    for kk in range(8):
        if kk == 4: e('s_add_u32 s56, s56, 4096\ns_add_u32 s57, s57, 4096')
        for X in range(2):
            g.v(f'buffer_load_dwordx4 {vr(KB+(kk*2+X)*4,4)}, v{8+X}, {S(SWS)}, s56 offen offset:{(kk%4)*1024} sc1', f'k{kk}')
        for X in range(2):
            g.v(f'buffer_load_dwordx4 {vr(VB+(kk*2+X)*4,4)}, v{8+X}, {S(SWS)}, s57 offen offset:{(kk%4)*1024} sc1', f'k{kk}')
    for jx in range(4): e(f'v_mov_b32 v{ONE+jx}, 0x3f803f80')
    e(f'''
    v_lshrrev_b32 v2, 4, v0
    v_cmp_gt_u32 vcc, s{sOFF}, v2
    v_cndmask_b32_e64 v3, 0, 1, vcc
    v_add_u32 v3, s{sT0}, v3
    v_lshrrev_b32 v4, 1, v3
    v_lshl_add_u32 v10, v4, 10, v5
    v_and_b32 v4, 1, v3
    v_lshl_add_u32 v10, v4, 3, v10
    v_add_u32 v3, 1, v3
    v_lshrrev_b32 v4, 1, v3
    v_lshl_add_u32 v11, v4, 10, v5
    v_and_b32 v4, 1, v3
    v_lshl_add_u32 v11, v4, 3, v11
    s_add_u32 s50, s{sOFF}, 3
    s_and_b32 s50, s50, 3
    v_cmp_eq_u32 s[58:59], s50, v2
    v_bfe_u32 v3, v0, 2, 2
    v_cmp_eq_u32 s[60:61], s50, v3
    v_cndmask_b32_e64 v11, v11, v10, s[58:59]
    v_subrev_u32 v3, s{sOFF}, v2
    v_and_b32 v3, 3, v3
    v_lshlrev_b32 v3, 8, v3
    v_and_b32 v4, 15, v0
    v_lshl_add_u32 v12, v4, 4, v3
    ''')
    for kk in range(8):
        g.wait(f'k{kk}')
        for Xd in range(2):
            for Xe in range(3):
                d = vr(KA + (Xd * 3 + Xe) * 4, 4)
                b = vr(VB + (kk*2+Xe)*4, 4) if Xe < 2 else vr(ONE, 4)
                e(f'{MF} {d}, {vr(KB+(kk*2+Xd)*4,4)}, {b}, {"0" if kk == 0 else d}')
    e(f's_mul_i32 s50, s{sW}, 6144\nv_add_u32 v2, s50, v5')
    for i in range(6):
        e(f'ds_write_b128 v2, {vr(KA+4*i,4)} offset:{i*1024}')
    g.stamp(3)
    gpoll(g, 7, 55)
    g.stamp(4)
    e(f'''
    s_lshl_b32 s50, s{sKH}, 6
    s_lshl_b32 s51, s{sW}, 3
    s_add_u32 s50, s50, s51
    s_mul_i32 s51, s50, 14336
    s_add_u32 s51, s51, {PQ_OFF}
    s_mul_i32 s52, s50, 44
    s_add_u32 s52, s52, s{sH}
    s_lshl_b32 s52, s52, 10
    s_add_u32 s52, s52, {ACT_OFF}
    s_lshl_b32 s53, s50, 1
    s_add_u32 s53, s53, s{sH}
    s_mul_i32 s53, s53, {FS}
    s_add_u32 s53, s53, {FO_OFF}
    ''')
    for i in range(8):
        for X in range(2):
            g.v(f'buffer_load_dwordx2 {vr(QB+4*i+2*X,2)}, v{10+X}, {S(SWS)}, s51 offen sc1', f'q{i}')
        if i < 7: e('s_add_u32 s51, s51, 14336')
    e('s_waitcnt lgkmcnt(0)\ns_barrier')
    R = 16
    for hf in range(2):
        for w in range(4):
            for i in range(6):
                e(f'ds_read_b128 {vr(R+(w*6+i)*4,4)}, v5 offset:{(hf*4+w)*6144 + i*1024}')
            if w % 2 == 1: e('s_waitcnt lgkmcnt(0)')
        for i in range(12):
            e(f'v_pk_add_f32 {vr(R+2*i,2)}, {vr(R+2*i,2)}, {vr(R+24+2*i,2)}')
            e(f'v_pk_add_f32 {vr(R+48+2*i,2)}, {vr(R+48+2*i,2)}, {vr(R+72+2*i,2)}')
        for i in range(12):
            if hf == 0:
                e(f'v_pk_add_f32 {vr(KA+2*i,2)}, {vr(R+2*i,2)}, {vr(R+48+2*i,2)}')
            else:
                e(f'v_pk_add_f32 {vr(R+2*i,2)}, {vr(R+2*i,2)}, {vr(R+48+2*i,2)}')
                e(f'v_pk_add_f32 {vr(KA+2*i,2)}, {vr(KA+2*i,2)}, {vr(R+2*i,2)}')
    KF = 204
    for Xe in range(3):
        pack(g, KF + 4 * Xe, KA + Xe * 4, KA + (3 + Xe) * 4)
    for Xe in range(3):
        for jx in (2, 3):
            e(f'v_cndmask_b32_e64 v{KF+4*Xe+jx}, v{KF+4*Xe+jx}, 0, s[58:59]')
    for jx in range(4):
        e(f'v_cndmask_b32_e64 v{KF+4+jx}, v{KF+4+jx}, 0, s[60:61]')
    g.stamp(5)
    OB = 16
    for i in range(8):
        g.wait(f'q{i}')
        for Xe in range(3):
            e(f'{MF} {vr(OB+i*12+4*Xe,4)}, {vr(KF+4*Xe,4)}, {vr(QB+4*i,4)}, 0')
    for i in range(8):
        o = OB + i * 12
        e(f'v_add_f32 v{o+8}, {f32(1e-6)}, v{o+8}\nv_rcp_f32 v{o+8}, v{o+8}\nv_mov_b32 v{o+9}, v{o+8}')
        for p in range(4):
            e(f'v_pk_mul_f32 {vr(o+2*p,2)}, {vr(o+2*p,2)}, {vr(o+8,2)}')
        pack(g, QB + 4 * i, o, o + 4)
        g.v(f'buffer_store_dwordx4 {vr(QB+4*i,4)}, v12, {S(SWS)}, s52 offen sc1', 'o')
        if i < 7: e(f's_add_u32 s52, s52, {44*1024}')
    g.wait('o')
    gflag(g, 53)
    a.label('L_END')
    if Opt.stamp:
        g.stamp(30)
        e('s_waitcnt vmcnt(0)')
        g.stamp(31)
        e(f'''
        s_memrealtime s[96:97]
        s_waitcnt lgkmcnt(0)
        v_writelane_b32 v15, s94, 0
        v_writelane_b32 v15, s98, 32
        v_writelane_b32 v15, s96, 33
        s_lshl_b32 s96, s2, 3
        s_add_u32 s96, s96, s{sW}
        s_lshl_b32 s96, s96, 8
        s_add_u32 s96, s96, {DBG_OFF}
        v_lshlrev_b32 v14, 2, v0
        buffer_store_dword v15, v14, {S(SWS)}, s96 offen
        ''')
    a.label('L_EXIT')
    e('s_endpgm')
    head = '; @launch grid=(256,1,1) block=(512,1,1) lds=163840\n'
    tail = f'''.section .rodata,"a"
.p2align 6
.amdhsa_kernel {KNAME}
  .amdhsa_next_free_vgpr 256
  .amdhsa_next_free_sgpr 102
  .amdhsa_accum_offset 256
  .amdhsa_group_segment_fixed_size 0
  .amdhsa_kernarg_size 88
  .amdhsa_user_sgpr_count 2
  .amdhsa_user_sgpr_kernarg_segment_ptr 1
  .amdhsa_system_sgpr_workgroup_id_x 1
.end_amdhsa_kernel
'''
    return head + a.text() + tail

if __name__ == '__main__':
    for o in sys.argv[2:]:
        k, _, v = o.partition('=')
        setattr(Opt, k, bool(int(v)) if v else True)
    open(sys.argv[1], 'w').write(gen())
```

```python
import sys, math
from asmlib import *

KNAME = 'parallel_sum__linear_attn_block__mixer_gmlp__prompt_kernel'
FS = 128
FZ_OFF = 0; FK_OFF = 0x8000; FQ_OFF = 0x10000; FU_OFF = 0x18000; FO_OFF = 0x20000
EPOCH_OFF = 0x40000
ST_OFF  = 0x80000
Z2_OFF  = 0x100000
KD_OFF  = 0x480000
VD_OFF  = 0x640000
PQ_OFF  = 0x800000
ACT_OFF = 0x9C0000
DBG_OFF = 0x1000000
WS_SIZE = 0x1100000
REG = 20480
XN0 = 4 * REG + 4096
LF  = 7 * REG + 16384
TAGC = 0x9E3779B9

LOG2E = 1.4426950408889634
GC0 = -2.0 * math.sqrt(2.0 / math.pi) * LOG2E
GC1 = GC0 * 0.044715

SX, SQ, SI, SWS, SSP, SBS, SWO, SWT, SOUT = 4, 8, 12, 16, 20, 24, 28, 32, 36
def S(b): return f's[{b}:{b+3}]'
sW, sRB, sJ, sTAG, sCB, sKH, sREG = 40, 41, 42, 43, 44, 45, 46

class Opt:
    stamp = False
    pk = True
    prio = True
    rot = True
    pf = True
    slp = 4

class G:
    def __init__(self):
        self.a = Asm(); self.vm = []; self.nl = 0
    def e(self, t): self.a.e(t)
    def v(self, text, tag=None):
        self.a.e(text); self.vm.append(tag)
    def wait(self, tag, extra=''):
        idx = max(i for i, t in enumerate(self.vm) if t == tag)
        n = len(self.vm) - 1 - idx
        assert n <= 63, n
        self.a.e(f's_waitcnt vmcnt({n}) {extra}')
        self.vm = self.vm[idx + 1:]
    def has(self, tag): return tag in self.vm
    def item(self, it):
        if callable(it): it()
        elif isinstance(it, tuple): self.v(it[0], it[1])
        else: self.e(it)
    def lab(self, p):
        self.nl += 1; return f'{p}_{self.nl}'
    def stamp(self, idx):
        if Opt.stamp:
            self.e(f's_memtime s[96:97]\ns_waitcnt lgkmcnt(0)\nv_writelane_b32 v15, s96, {idx}')

def weave(g, prim, sec, start=0, per=1):
    sec = list(sec)
    for i, p in enumerate(prim):
        g.item(p)
        if i >= start:
            for _ in range(per):
                if sec: g.item(sec.pop(0))
    for s in sec: g.item(s)

def lds_flag(g, val):
    g.e(f'v_mov_b32 v14, {val}\nds_write_b32 v6, v14')

def lds_spin(g, val, four=False):
    L = g.lab('SP'); D = g.lab('SD')
    g.e(f's_movk_i32 s62, 0x7fff')
    g.a.label(L)
    if four:
        g.e(f'''
        ds_read_b128 v[220:223], v7
        s_waitcnt lgkmcnt(0)
        v_min3_u32 v220, v220, v221, v222
        v_min_u32 v14, v220, v223
        ''')
    else:
        g.e('ds_read_b32 v14, v7\ns_waitcnt lgkmcnt(0)')
    g.e(f'''
    v_readfirstlane_b32 s63, v14
    s_cmp_ge_u32 s63, {val}
    s_cbranch_scc1 {D}
    s_sub_u32 s62, s62, 1
    s_cbranch_scc0 {L}
    ''')
    g.a.label(D)

def gflag(g, soff):
    g.e(f's_mov_b64 exec, 1\nv_mov_b32 v14, s{sTAG}')
    g.v(f'buffer_store_dword v14, off, {S(SWS)}, s{soff} sc1', 'flag')
    g.e('s_mov_b64 exec, -1')

def wgflag(g, cnt, n, soff, vt):
    K = g.lab('WF')
    g.e(f"""
    s_mov_b64 exec, 1
    v_mov_b32 v14, 1
    v_mov_b32 v{vt}, {LF + 32 + 4*cnt}
    ds_add_rtn_u32 v14, v{vt}, v14
    s_waitcnt lgkmcnt(0)
    v_readfirstlane_b32 s63, v14
    s_cmp_eq_u32 s63, {n-1}
    s_cbranch_scc0 {K}
    v_mov_b32 v14, s{sTAG}
    buffer_store_dword v14, off, {S(SWS)}, s{soff} sc1
    """)
    g.a.label(K)
    g.e('s_mov_b64 exec, -1')

def poll1(g, voff, soff, flag=None):
    K = g.lab('P1')
    g.e(f's_cmp_lg_u32 s{sW}, 0\ns_cbranch_scc1 {K}')
    if flag: gflag(g, flag)
    gpoll(g, voff, soff)
    g.a.label(K)
    g.e('s_waitcnt vmcnt(0)')
    g.vm = []

def gpoll(g, voff, soff, x4=False):
    L = g.lab('PL'); D = g.lab('PD')
    g.e('s_movk_i32 s62, 0x1000')
    g.a.label(L)
    if x4:
        g.e(f'''
        buffer_load_dwordx4 v[220:223], v{voff}, {S(SWS)}, s{soff} offen sc1
        s_waitcnt vmcnt(0)
        v_xor_b32 v220, s{sTAG}, v220
        v_xor_b32 v221, s{sTAG}, v221
        v_xor_b32 v222, s{sTAG}, v222
        v_xor_b32 v223, s{sTAG}, v223
        v_or3_b32 v220, v220, v221, v222
        v_or_b32 v14, v220, v223
        v_cmp_ne_u32 vcc, 0, v14
        ''')
    else:
        g.e(f'''
        buffer_load_dword v14, v{voff}, {S(SWS)}, s{soff} offen sc1
        s_waitcnt vmcnt(0)
        v_cmp_ne_u32 vcc, s{sTAG}, v14
        ''')
    g.e(f'''
    s_nop 1
    s_cbranch_vccz {D}
    s_sleep {Opt.slp}
    s_sub_u32 s62, s62, 1
    s_cbranch_scc0 {L}
    ''')
    g.a.label(D)
    g.vm = []

def gelu(g, regs, T, CON):
    Ts = [T + 2 * i for i in range(len(regs))]
    z = list(zip(regs, Ts))
    if Opt.pk:
        for x, t in z: g.e(f'v_pk_mul_f32 {vr(t,2)}, {vr(x,2)}, {vr(x,2)}')
        for x, t in z: g.e(f'v_pk_fma_f32 {vr(t,2)}, {vr(t,2)}, {vr(CON+2,2)}, {vr(CON,2)}')
        for x, t in z: g.e(f'v_pk_mul_f32 {vr(t,2)}, {vr(t,2)}, {vr(x,2)}')
    else:
        for x, t in z:
            for d in (0, 1): g.e(f'v_mul_f32 v{t+d}, v{x+d}, v{x+d}')
        for x, t in z:
            for d in (0, 1): g.e(f'v_fma_f32 v{t+d}, v{t+d}, v{CON+2}, v{CON}')
        for x, t in z:
            for d in (0, 1): g.e(f'v_mul_f32 v{t+d}, v{t+d}, v{x+d}')
    for x, t in z:
        for d in (0, 1): g.e(f'v_exp_f32 v{t+d}, v{t+d}')
    if Opt.pk:
        for x, t in z: g.e(f'v_pk_add_f32 {vr(t,2)}, {vr(t,2)}, 1.0 op_sel_hi:[1,0]')
    else:
        for x, t in z:
            for d in (0, 1): g.e(f'v_add_f32 v{t+d}, 1.0, v{t+d}')
    for x, t in z:
        for d in (0, 1): g.e(f'v_rcp_f32 v{t+d}, v{t+d}')
    if Opt.pk:
        for x, t in z: g.e(f'v_pk_mul_f32 {vr(x,2)}, {vr(x,2)}, {vr(t,2)}')
    else:
        for x, t in z:
            for d in (0, 1): g.e(f'v_mul_f32 v{x+d}, v{x+d}, v{t+d}')

def gelu_consts(g, CON):
    g.e(f'''
    v_mov_b32 v{CON}, {f32(GC0)}
    v_mov_b32 v{CON+1}, {f32(GC0)}
    v_mov_b32 v{CON+2}, {f32(GC1)}
    v_mov_b32 v{CON+3}, {f32(GC1)}
    ''')

def phi(g, regs, T, CON):
    Ts = [T + 2 * i for i in range(len(regs))]
    z = list(zip(regs, Ts))
    if Opt.pk:
        for x, t in z: g.e(f'v_pk_mul_f32 {vr(t,2)}, {vr(x,2)}, {vr(CON,2)}')
    else:
        for x, t in z:
            for d in (0, 1): g.e(f'v_mul_f32 v{t+d}, v{x+d}, v{CON}')
    for x, t in z:
        for d in (0, 1): g.e(f'v_exp_f32_e64 v{t+d}, v{t+d} clamp')
    for x, t in z:
        for d in (0, 1): g.e(f'v_max_f32 v{x+d}, 0, v{x+d}')
    if Opt.pk:
        for x, t in z: g.e(f'v_pk_add_f32 {vr(x,2)}, {vr(x,2)}, {vr(t,2)}')
        for x, t in z: g.e(f'v_pk_add_f32 {vr(x,2)}, {vr(x,2)}, {vr(CON+2,2)}')
    else:
        for x, t in z:
            for d in (0, 1): g.e(f'v_add_f32 v{x+d}, v{x+d}, v{t+d}')
        for x, t in z:
            for d in (0, 1): g.e(f'v_add_f32 v{x+d}, v{x+d}, v{CON+2}')

def phi_consts(g, CON):
    g.e(f'''
    v_mov_b32 v{CON}, {f32(LOG2E)}
    v_mov_b32 v{CON+1}, {f32(LOG2E)}
    v_mov_b32 v{CON+2}, {f32(1e-6)}
    v_mov_b32 v{CON+3}, {f32(1e-6)}
    ''')

def addv(g, dst, x, y, n):
    if Opt.pk:
        for i in range(0, n, 2): g.e(f'v_pk_add_f32 {vr(dst+i,2)}, {vr(x+i,2)}, {vr(y+i,2)}')
    else:
        for i in range(n): g.e(f'v_add_f32 v{dst+i}, v{x+i}, v{y+i}')

def pack(g, dst, r0, r1):
    g.e(f'''
    v_cvt_pk_bf16_f32 v{dst}, v{r0}, v{r0+1}
    v_cvt_pk_bf16_f32 v{dst+1}, v{r0+2}, v{r0+3}
    v_cvt_pk_bf16_f32 v{dst+2}, v{r1}, v{r1+1}
    v_cvt_pk_bf16_f32 v{dst+3}, v{r1+2}, v{r1+3}
    ''')

MF = 'v_mfma_f32_16x16x32_bf16'

def gen():
    g = G(); a = g.a; e = g.e
    a.raw('.amdgcn_target "amdgcn-amd-amdhsa--gfx950"\n.text')
    a.raw(f'.globl {KNAME}\n.p2align 8\n.type {KNAME},@function\n{KNAME}:')
    if Opt.stamp:
        e('s_memrealtime s[98:99]\ns_memtime s[94:95]')
    e(f'''
    s_cmp_ge_u32 s2, 256
    s_cbranch_scc1 L_EXIT
    s_load_dwordx2 s[{SX}:{SX+1}], s[0:1], 0
    s_load_dwordx2 s[{SQ}:{SQ+1}], s[0:1], 8
    s_load_dwordx2 s[{SI}:{SI+1}], s[0:1], 32
    s_load_dwordx2 s[{SWS}:{SWS+1}], s[0:1], 80
    s_load_dwordx2 s[{SSP}:{SSP+1}], s[0:1], 40
    s_load_dwordx2 s[{SBS}:{SBS+1}], s[0:1], 48
    s_load_dwordx2 s[{SWO}:{SWO+1}], s[0:1], 16
    s_load_dwordx2 s[{SWT}:{SWT+1}], s[0:1], 56
    s_load_dwordx2 s[{SOUT}:{SOUT+1}], s[0:1], 64
    v_lshrrev_b32 v1, 6, v0
    v_and_b32 v0, 63, v0
    v_readfirstlane_b32 s{sW}, v1
    ''')
    for b, sz in ((SX, 2048*896), (SQ, 448*2688), (SI, 448*3584), (SWS, WS_SIZE), (SSP, 2048*4096), (SBS, 4096),
                  (SWO, 448*896), (SWT, 896*896), (SOUT, 2048*896)):
        e(f's_mov_b32 s{b+2}, {sz}\ns_mov_b32 s{b+3}, 0x20000')
    e(f'''
    s_and_b32 s47, s2, 3
    s_lshl_b32 s47, s47, 3
    s_bfe_u32 s48, s2, 0x30003
    s_add_u32 s{sRB}, s47, s48
    s_and_b32 s47, s2, 4
    s_lshr_b32 s48, s2, 6
    s_add_u32 s{sJ}, s47, s48
    s_mul_i32 s{sREG}, s{sW}, {REG}
    v_lshrrev_b32 v2, 3, v0
    v_and_b32 v3, 7, v0
    ''')
    if Opt.stamp:
        e('v_mov_b32 v15, 0')
    e(f'''
    s_cmp_eq_u32 s{sJ}, 7
    s_cbranch_scc1 L_ATT
    v_mul_u32_u24 v4, 896, v2
    v_lshl_add_u32 v4, v3, 4, v4
    s_lshl_b32 s47, s{sRB}, 3
    s_add_u32 s47, s47, s{sW}
    s_mul_i32 s47, s47, {8*896}
    s_bfe_u32 s{sCB}, s{sW}, 0x10001
    s_and_b32 s{sKH}, s{sW}, 1
    s_movk_i32 s48, 3584
    s_cmp_lt_u32 s{sW}, 4
    s_cselect_b32 s48, s48, 2688
    s_waitcnt lgkmcnt(0)
    ''')
    XR = 16
    for i in range(7):
        g.v(f'buffer_load_dwordx4 {vr(XR+4*i,4)}, v4, {S(SX)}, s47 offen offset:{i*128}', 'x')
    e(f's_load_dword s{sTAG}, s[{SWS}:{SWS+1}], {EPOCH_OFF}')
    e(f'''
    v_and_b32 v5, 3, v2
    v_lshrrev_b32 v6, 2, v2
    v_lshl_add_u32 v5, v6, 3, v5
    v_mul_lo_u32 v5, v5, s48
    v_and_b32 v6, 6, v2
    v_xor_b32 v6, v6, v3
    v_lshl_add_u32 v1, v6, 4, v5
    v_mov_b32 v12, v2
    v_mov_b32 v13, v3
    s_lshl_b32 s49, s48, 2
    s_sub_u32 s49, s49, 1024
    s_lshl_b32 s50, s48, 4
    s_sub_u32 s50, s50, 2048
    v_add_u32 v2, s49, v1
    v_add_u32 v3, s50, v1
    v_add_u32 v4, s49, v3
    s_mul_i32 s49, s48, 32
    s_mul_i32 s49, s49, s{sKH}
    s_barrier
    s_cmp_ge_u32 s{sW}, 4
    s_cbranch_scc1 L_G1PRE
    ''')
    def unit_dma(srd, sbase, c, slot, stride, tag):
        its = [f's_add_u32 s61, s{sbase}, {c*64*stride}\ns_add_u32 m0, s{sREG}, {slot*4096}']
        L = []
        for b in range(4):
            pre = its[0] + '\n' if b == 0 else ''
            L.append((pre + f'buffer_load_dwordx4 v{1+b}, {S(srd)}, s61 offen offset:{b*1024} lds', tag))
        return L
    vmx = list(g.vm)
    e(f'''
    s_lshl_b32 s51, s{sJ}, 8
    s_lshl_b32 s52, s{sCB}, 7
    s_add_u32 s51, s51, s52
    s_add_u32 s51, s51, s49
    s_add_u32 s50, s51, 1792
    ''')
    for c in range(4):
        for it in unit_dma(SI, 50, c, c, 3584, f'u{c}'): g.item(it)
    g.wait('x')
    vm_g0 = list(g.vm)
    e('s_branch L_LN')
    a.label('L_G1PRE')
    g.vm = list(vmx)
    e(f'''
    s_lshl_b32 s51, s{sJ}, 7
    s_add_u32 s51, s51, s49
    s_mul_i32 s52, s{sCB}, 896
    s_add_u32 s50, s51, s52
    s_add_u32 s50, s50, 896
    s_mul_i32 s52, s{sCB}, {256*2688}
    s_add_u32 s51, s51, s52
    v_mov_b32 v14, 0
    v_and_b32 v5, 15, v0
    v_lshlrev_b32 v5, 2, v5
    v_add_u32 v5, {LF}, v5
    ds_write_b32 v5, v14
    ''')
    for it in unit_dma(SQ, 50, 0, 0, 2688, 'u0'): g.item(it)
    g.wait('x')
    vm_g1 = list(g.vm)
    a.label('L_LN')
    g.stamp(1)
    XF = 48
    for i in range(28):
        e(f'v_lshlrev_b32 v{XF+2*i}, 16, v{XR+i}')
        e(f'v_and_b32 v{XF+2*i+1}, 0xffff0000, v{XR+i}')
    AC = 104
    M = 112
    for jx in range(4):
        e(f'v_pk_add_f32 {vr(AC+2*jx,2)}, {vr(XF+2*jx,2)}, {vr(XF+8+2*jx,2)}')
    for i in range(8, 28):
        jx = i % 4
        e(f'v_pk_add_f32 {vr(AC+2*jx,2)}, {vr(AC+2*jx,2)}, {vr(XF+2*i,2)}')
    def red8(dst):
        e(f'''
        v_pk_add_f32 {vr(AC,2)}, {vr(AC,2)}, {vr(AC+2,2)}
        v_pk_add_f32 {vr(AC+4,2)}, {vr(AC+4,2)}, {vr(AC+6,2)}
        v_pk_add_f32 {vr(AC,2)}, {vr(AC,2)}, {vr(AC+4,2)}
        v_add_f32 v{dst}, v{AC}, v{AC+1}
        v_add_f32_dpp v{dst}, v{dst}, v{dst} quad_perm:[1,0,3,2] row_mask:0xf bank_mask:0xf
        v_add_f32_dpp v{dst}, v{dst}, v{dst} quad_perm:[2,3,0,1] row_mask:0xf bank_mask:0xf
        v_add_f32_dpp v{dst}, v{dst}, v{dst} row_half_mirror row_mask:0xf bank_mask:0xf
        ''')
    red8(M)
    e(f'v_mul_f32 v{M}, {f32(-1.0/448)}, v{M}\nv_mov_b32 v{M+1}, v{M}')
    for i in range(28):
        e(f'v_pk_add_f32 {vr(XF+2*i,2)}, {vr(XF+2*i,2)}, {vr(M,2)}')
    for jx in range(4):
        e(f'v_pk_mul_f32 {vr(AC+2*jx,2)}, {vr(XF+2*jx,2)}, {vr(XF+2*jx,2)}')
    for i in range(4, 28):
        jx = i % 4
        e(f'v_pk_fma_f32 {vr(AC+2*jx,2)}, {vr(XF+2*i,2)}, {vr(XF+2*i,2)}, {vr(AC+2*jx,2)}')
    red8(M)
    e(f'''
    v_mov_b32 v{M+2}, {f32(1e-5)}
    v_fmac_f32 v{M+2}, {f32(1.0/448)}, v{M}
    v_rsq_f32 v{M}, v{M+2}
    ''')
    e(f'''
    s_lshr_b32 s52, s{sW}, 2
    s_lshl_b32 s52, s52, 5
    s_and_b32 s53, s{sW}, 3
    s_lshl_b32 s53, s53, 2
    s_add_u32 s52, s52, s53
    v_lshrrev_b32 v6, 5, v0
    v_lshlrev_b32 v6, 4, v6
    v_and_b32 v7, 3, v12
    v_add3_u32 v6, v6, v7, s52
    v_lshlrev_b32 v7, 7, v6
    v_bfe_u32 v6, v6, 1, 3
    v_xor_b32 v6, v6, v13
    v_lshl_add_u32 v7, v6, 4, v7
    v_add_u32 v7, {XN0}, v7
    v_mov_b32 v{M+1}, v{M}
    ''')
    def slab_off(c): return (c >> 1) * REG + (c & 1) * 8192
    for i in range(7):
        for jx in range(4):
            k = 4 * i + jx
            e(f'v_pk_mul_f32 {vr(XF+2*k,2)}, {vr(XF+2*k,2)}, {vr(M,2)}')
        for jx in range(4):
            k = 4 * i + jx
            e(f'v_cvt_pk_bf16_f32 v{XR+k}, v{XF+2*k}, v{XF+2*k+1}')
        e(f'ds_write_b128 v7, {vr(XR+4*i,4)} offset:{slab_off(i)}')
    AA = 224
    e(f'''
    v_and_b32 v5, 15, v0
    v_lshrrev_b32 v6, 4, v0
    s_lshl_b32 s52, s{sKH}, 2
    v_add_u32 v6, s52, v6
    v_lshrrev_b32 v7, 1, v5
    v_xor_b32 v6, v6, v7
    v_lshlrev_b32 v6, 4, v6
    v_lshl_add_u32 v6, v5, 7, v6
    s_lshl_b32 s52, s{sKH}, 12
    s_add_u32 s53, s52, {XN0}
    s_sub_u32 s54, {XN0 + 4096}, s52
    v_add_u32 v{AA}, s53, v6
    v_add_u32 v{AA+1}, s54, v6
    v_add_u32 v{AA+2}, {2*REG}, v{AA}
    v_add_u32 v{AA+3}, {2*REG}, v{AA+1}
    ''')
    e(f'''
    v_bfe_u32 v6, v0, 2, 3
    v_lshrrev_b32 v7, 5, v0
    v_lshlrev_b32 v7, 11, v7
    v_lshl_add_u32 v7, v6, 7, v7
    v_and_b32 v5, 3, v0
    v_lshl_add_u32 v7, v5, 3, v7
    v_add_u32 v7, s{sREG}, v7
    v_lshrrev_b32 v6, 1, v6
    v_lshlrev_b32 v6, 5, v6
    ''')
    for t in range(4):
        e(f'v_xor_b32 v5, {t*32}, v6\nv_add_u32 v{8+t}, v7, v5')
    e(f'''
    v_lshlrev_b32 v5, 4, v0
    s_lshl_b32 s52, s{sW}, 2
    s_add_u32 s52, s52, {LF}
    v_mov_b32 v6, s52
    s_xor_b32 s52, s52, 4
    v_mov_b32 v7, s52
    s_add_u32 s52, s{sREG}, 8192
    v_add_u32 v12, s52, v5
    s_xor_b32 s53, s{sW}, 1
    s_mul_i32 s53, s53, {REG}
    s_add_u32 s53, s53, 8192
    v_add_u32 v13, s53, v5
    s_waitcnt lgkmcnt(0)
    s_add_u32 s{sTAG}, s{sTAG}, {TAGC}
    ''')
    g.stamp(2)
    e('s_barrier')
    g.stamp(3)
    AF = 16; ACC = 128; BF = 192; Y = 224
    def af(c, Tl): return AF + (c * 4 + Tl) * 4
    def acc(Tl, nt): return ACC + (Tl * 4 + nt) * 4
    def a_reads(c):
        return [f'ds_read_b128 {vr(af(c,Tl),4)}, v{AA + (2 if c >= 4 else 0) + (Tl>>1)} offset:{slab_off(c - (4 if c >= 4 else 0)) + (Tl&1)*2048}' for Tl in range(4)]
    def b_reads(k, slot):
        s = BF + 16 * (k & 1)
        return [f'ds_read_b64_tr_b16 {vr(s+4*t+2*h,2)}, v{8+t} offset:{slot*4096 + h*1024}' for t in range(4) for h in range(2)]
    def mfmas(k, c, orientD, first, order=(0, 1, 2, 3)):
        L = []
        s = BF + 16 * (k & 1)
        for Tl in order:
            for nt in range(4):
                xa = vr(af(c, Tl), 4); wb = vr(s + 4 * nt, 4); d = vr(acc(Tl, nt), 4)
                cc = '0' if first else d
                L.append(f'{MF} {d}, {xa}, {wb}, {cc}' if orientD else f'{MF} {d}, {wb}, {xa}, {cc}')
        return L
    def run_pass(units, orientD, dma_at, extra_reads={}, lgk={}, after={}, lastorder=(2, 3, 0, 1), pre_done=False):
        n = len(units)
        if not pre_done:
            g.wait('u0')
            for r in b_reads(0, 0): e(r)
        for k, c in enumerate(units):
            e(f's_waitcnt lgkmcnt({lgk.get(k, 0)})')
            M_ = mfmas(k, c, orientD, k == 0, lastorder if k == n - 1 else (0, 1, 2, 3))
            weave(g, M_[:4], dma_at.get(k, []))
            rd = []
            if k + 1 < n:
                if g.has(f'u{k+1}'): g.wait(f'u{k+1}')
                rd = b_reads(k + 1, (k + 1) % 4)
            pre, post = extra_reads.get(k, ([], []))
            rd = pre + rd + post
            weave(g, M_[4:], rd, per=(2 if len(rd) > 12 else 1))
            for it in after.get(k, []): g.item(it)
    def exchange2(dst, f0):
        for i in range(8):
            e(f'ds_write_b128 v12, {vr(ACC+32+4*i,4)} offset:{i*1024}')
        e('s_waitcnt lgkmcnt(0)')
        lds_flag(g, f0)
        lds_spin(g, f0)
        for i in range(8):
            e(f'ds_read_b128 {vr(ACC+32+4*i,4)}, v13 offset:{i*1024}')
        e('s_waitcnt lgkmcnt(4)')
        addv(g, dst, ACC, ACC + 32, 16)
        e('s_waitcnt lgkmcnt(0)')
        lds_flag(g, f0 + 1)
        addv(g, dst + 16, ACC + 16, ACC + 48, 16)
    def wsp_setup():
        e(f'''
        s_lshl_b32 s55, s{sRB}, 6
        s_lshr_b32 s57, s{sW}, 2
        s_lshl_b32 s57, s57, 5
        s_add_u32 s55, s55, s57
        s_bfe_u32 s57, s{sW}, 0x10001
        s_lshl_b32 s57, s57, 2
        s_add_u32 s55, s55, s57
        s_and_b32 s57, s{sW}, 1
        s_lshl_b32 s58, s57, 4
        s_add_u32 s55, s55, s58
        s_lshl_b32 s55, s55, 12
        s_lshl_b32 s57, s57, 2
        v_lshrrev_b32 v14, 4, v0
        v_add_u32 v14, s57, v14
        v_xor_b32 v14, v14, v0
        v_and_b32 v14, 7, v14
        v_lshlrev_b32 v14, 4, v14
        v_lshrrev_b32 v1, 5, v0
        v_lshl_add_u32 v14, v1, 15, v14
        v_bfe_u32 v1, v0, 3, 2
        v_lshl_add_u32 v1, v1, 12, v14
        ''')
        if Opt.rot:
            e(f's_and_b32 s56, s{sRB}, 7\ns_lshl_b32 s56, s56, 9')
        else:
            e('s_mov_b32 s56, 0')
    def wsp_dma(n):
        L = []
        for k in range(4):
            pre = f's_add_u32 s61, s56, {n*512}\ns_and_b32 s61, s61, 0xfff\ns_add_u32 s61, s61, s55\n' if k == 0 else ''
            L.append((pre + f's_add_u32 m0, s{sREG}, {((4*n+k) % 16)*1024 - 128*k}\n'
                      f'buffer_load_dwordx4 v1, {S(SSP)}, s61 offen offset:{128*k} lds', f'w{n}'))
        return L
    e(f's_cmp_ge_u32 s{sW}, 4\ns_cbranch_scc1 L_G1')
    g.vm = list(vm_g0)
    if Opt.prio: e('s_setprio 2')
    for r in a_reads(0): e(r)
    dz = {k: unit_dma(SI, 50, k + 4, k, 3584, f'u{k+4}') for k in range(3)}
    dz[4] = unit_dma(SI, 51, 0, 0, 3584, 'n0'); dz[5] = unit_dma(SI, 51, 1, 1, 3584, 'n1')
    run_pass(list(range(7)), True, dz,
             extra_reads={0: (a_reads(1), a_reads(2) + a_reads(3)), 1: ([], a_reads(4) + a_reads(5) + a_reads(6))},
             lgk={1: 8}, after={1: ['s_waitcnt lgkmcnt(0)', 's_barrier']})
    g.stamp(4)
    exchange2(Y, 1)
    g.stamp(5)
    CON = 176
    gelu_consts(g, CON)
    gelu(g, [Y + 2 * i for i in range(8)], BF, CON)
    lds_spin(g, 2)
    for c in (2, 3):
        for it in unit_dma(SI, 51, c, c, 3584, f'n{c}'): g.item(it)
    gelu(g, [Y + 16 + 2 * i for i in range(8)], BF, CON)
    SS = 160; QQ = 168
    def y(Tl, nt): return Y + (Tl * 4 + nt) * 4
    for Tl in range(2):
        for pr in range(2):
            s = SS + 4 * Tl + 2 * pr; q = QQ + 4 * Tl + 2 * pr
            yy = [y(Tl, nt) + 2 * pr for nt in range(4)]
            if Opt.pk:
                e(f'''
                v_pk_add_f32 {vr(s,2)}, {vr(yy[0],2)}, {vr(yy[1],2)}
                v_pk_mul_f32 {vr(q,2)}, {vr(yy[0],2)}, {vr(yy[0],2)}
                v_pk_add_f32 {vr(s,2)}, {vr(s,2)}, {vr(yy[2],2)}
                v_pk_fma_f32 {vr(q,2)}, {vr(yy[1],2)}, {vr(yy[1],2)}, {vr(q,2)}
                v_pk_add_f32 {vr(s,2)}, {vr(s,2)}, {vr(yy[3],2)}
                v_pk_fma_f32 {vr(q,2)}, {vr(yy[2],2)}, {vr(yy[2],2)}, {vr(q,2)}
                v_pk_fma_f32 {vr(q,2)}, {vr(yy[3],2)}, {vr(yy[3],2)}, {vr(q,2)}
                ''')
            else:
                for d in (0, 1):
                    e(f'''
                    v_add_f32 v{s+d}, v{yy[0]+d}, v{yy[1]+d}
                    v_mul_f32 v{q+d}, v{yy[0]+d}, v{yy[0]+d}
                    v_add_f32 v{s+d}, v{s+d}, v{yy[2]+d}
                    v_fmac_f32 v{q+d}, v{yy[1]+d}, v{yy[1]+d}
                    v_add_f32 v{s+d}, v{s+d}, v{yy[3]+d}
                    v_fmac_f32 v{q+d}, v{yy[2]+d}, v{yy[2]+d}
                    v_fmac_f32 v{q+d}, v{yy[3]+d}, v{yy[3]+d}
                    ''')
    O1 = BF; O2 = BF + 8
    for k, base in enumerate((SS, QQ)):
        for i in range(4):
            e(f'v_add_f32_dpp v{O1+4*k+i}, v{base+i}, v{base+i} row_ror:8 row_mask:0xf bank_mask:0x3')
        for i in range(4):
            e(f'v_add_f32_dpp v{O1+4*k+i}, v{base+4+i}, v{base+4+i} row_ror:8 row_mask:0xf bank_mask:0xc')
    for k in range(2):
        for i in range(2):
            e(f'v_add_f32_dpp v{O2+2*k+i}, v{O1+4*k+i}, v{O1+4*k+i} row_ror:12 row_mask:0xf bank_mask:0x5')
        for i in range(2):
            e(f'v_add_f32_dpp v{O2+2*k+i}, v{O1+4*k+2+i}, v{O1+4*k+2+i} row_ror:4 row_mask:0xf bank_mask:0xa')
    for i in range(4):
        e(f'v_add_f32_dpp v{O2+i}, v{O2+i}, v{O2+i} quad_perm:[1,0,3,2] row_mask:0xf bank_mask:0xf')
    for i in range(4):
        e(f'v_add_f32_dpp v{O2+i}, v{O2+i}, v{O2+i} quad_perm:[2,3,0,1] row_mask:0xf bank_mask:0xf')
    e(f'''
    s_mov_b32 s58, 0xaaaaaaaa
    s_mov_b32 s59, 0xaaaaaaaa
    s_mov_b32 vcc_lo, 0xcccccccc
    s_mov_b32 vcc_hi, 0xcccccccc
    v_cndmask_b32_e64 v{O1}, v{O2}, v{O2+1}, s[58:59]
    v_cndmask_b32_e64 v{O1+2}, v{O2+2}, v{O2+3}, s[58:59]
    v_cndmask_b32 v{O1}, v{O1}, v{O1+2}, vcc
    v_mov_b32 v{O1+1}, s{sTAG}
    v_lshrrev_b32 v{O1+2}, 2, v0
    v_lshlrev_b32 v{O1+2}, 5, v{O1+2}
    v_and_b32 v{O1+3}, 1, v0
    v_lshl_add_u32 v{O1+2}, v{O1+3}, 4, v{O1+2}
    v_bfe_u32 v{O1+3}, v0, 1, 1
    v_lshl_add_u32 v{O1+2}, v{O1+3}, 3, v{O1+2}
    s_lshl_b32 s52, s{sRB}, 1
    s_add_u32 s52, s52, s{sKH}
    s_mul_i32 s53, s52, {14*512}
    s_add_u32 s53, s53, {ST_OFF}
    s_lshl_b32 s54, s{sJ}, 1
    s_add_u32 s54, s54, s{sCB}
    s_lshl_b32 s57, s54, 9
    s_add_u32 s57, s57, s53
    ''')
    g.v(f'buffer_store_dwordx2 {vr(O1,2)}, v{O1+2}, {S(SWS)}, s57 offen sc1', 'st')
    g.stamp(6)
    g.vm = [t.replace('n', 'u') if t and t[0] == 'n' else t for t in g.vm]
    d1 = {k: unit_dma(SI, 51, k + 4, k, 3584, f'u{k+4}') for k in range(3)}
    STR = 16
    def stat_loads():
        L = []
        for n in range(7):
            pre = 's_add_u32 s57, s53, 4096\n' if n == 4 else ''
            L.append((pre + f'buffer_load_dwordx4 {vr(STR+4*n,4)}, v5, {S(SWS)}, s{53 if n < 4 else 57} offen offset:{(n%4)*1024} sc1', 'sl'))
        return L
    d1[3] = [wsp_setup]
    d1[4] = wsp_dma(0); d1[5] = wsp_dma(1); d1[6] = stat_loads()
    run_pass(list(range(7)), False, d1)
    g.stamp(7)
    for i in range(8):
        e(f'ds_write_b128 v12, {vr(ACC+32+4*i,4)} offset:{i*1024}')
    e('s_waitcnt lgkmcnt(0)')
    lds_flag(g, 3)
    LR = g.lab('SR'); LD = g.lab('SK')
    e('s_movk_i32 s62, 0x1000')
    g.wait('sl')
    a.label(LR)
    tg = [STR + 4 * n + d for n in range(7) for d in (1, 3)]
    for op, dst in (('max', 44), ('min', 45)):
        e(f'v_{op}3_u32 v{dst}, v{tg[0]}, v{tg[1]}, v{tg[2]}')
        for i in range(3, 13, 2):
            e(f'v_{op}3_u32 v{dst}, v{dst}, v{tg[i]}, v{tg[i+1]}')
        e(f'v_{op}_u32 v{dst}, v{dst}, v{tg[13]}')
    e(f'''
    v_xor_b32 v44, s{sTAG}, v44
    v_xor_b32 v45, s{sTAG}, v45
    v_or_b32 v44, v44, v45
    v_cmp_ne_u32 vcc, 0, v44
    s_nop 1
    s_cbranch_vccz {LD}
    s_sub_u32 s62, s62, 1
    s_cbranch_scc1 {LD}
    s_sleep 1
    ''')
    for it in stat_loads(): e(it[0])
    e(f's_waitcnt vmcnt(0)\ns_branch {LR}')
    a.label(LD)
    g.stamp(8)
    for d in (0, 2):
        r = STR + d
        e(f'''
        v_add_f32 v{r}, v{r}, v{r+4}
        v_add_f32 v{r+8}, v{r+8}, v{r+12}
        v_add_f32 v{r+16}, v{r+16}, v{r+20}
        v_add_f32 v{r}, v{r}, v{r+24}
        v_add_f32 v{r+8}, v{r+8}, v{r+16}
        v_add_f32 v{r}, v{r}, v{r+8}
        v_mov_b32 v{r+1}, v{r}
        ''')
    e(f'''
    v_permlane32_swap_b32 v{STR}, v{STR+1}
    v_permlane32_swap_b32 v{STR+2}, v{STR+3}
    v_add_f32 v{STR}, v{STR}, v{STR+1}
    v_add_f32 v{STR+2}, v{STR+2}, v{STR+3}
    v_mul_f32 v{STR}, {f32(1.0/896)}, v{STR}
    v_mul_f32 v{STR+2}, {f32(1.0/896)}, v{STR+2}
    v_fma_f32 v{STR+2}, -v{STR}, v{STR}, v{STR+2}
    v_max_f32 v{STR+2}, 0, v{STR+2}
    v_add_f32 v{STR+2}, {f32(1e-5)}, v{STR+2}
    v_rsq_f32 v{STR+2}, v{STR+2}
    s_lshl_b32 s57, s{sW}, 9
    s_add_u32 s57, s57, {LF + 256}
    v_lshl_add_u32 v{STR+4}, v0, 2, s57
    v_lshrrev_b32 v{STR+5}, 4, v0
    v_lshl_add_u32 v{STR+5}, v{STR+5}, 5, s57
    v_mul_f32 v{STR}, -v{STR}, v{STR+2}
    v_cmp_lt_u32 vcc, 31, v0
    v_cndmask_b32 v{STR}, v{STR+2}, v{STR}, vcc
    ds_write_b32 v{STR+4}, v{STR}
    s_waitcnt lgkmcnt(0)
    ds_read_b128 v[24:27], v{STR+5}
    ds_read_b128 v[28:31], v{STR+5} offset:16
    ds_read_b128 v[32:35], v{STR+5} offset:128
    ds_read_b128 v[36:39], v{STR+5} offset:144
    s_lshl_b32 s57, s54, 18
    s_lshl_b32 s58, s52, 11
    s_add_u32 s57, s57, s58
    s_add_u32 s57, s57, {Z2_OFF}
    s_add_u32 s58, s57, 0x20000
    s_waitcnt lgkmcnt(0)
    ''')
    for nt in range(4):
        for Tl in range(2):
            r = y(Tl, nt)
            if Opt.pk:
                for d in (0, 2):
                    e(f'v_pk_fma_f32 {vr(r+d,2)}, {vr(r+d,2)}, {vr(24+4*Tl+d,2)}, {vr(32+4*Tl+d,2)}')
            else:
                for d in range(4):
                    e(f'v_fma_f32 v{r+d}, v{r+d}, v{24+4*Tl+d}, v{32+4*Tl+d}')
        pack(g, 48 + 4 * nt, y(0, nt), y(1, nt))
        g.v(f'buffer_store_dwordx4 {vr(48+4*nt,4)}, v5, {S(SWS)}, s{57 + (nt>>1)} offen offset:{(nt&1)*1024} sc1', 'z2')
    g.stamp(9)
    lds_spin(g, 3)
    for i in range(8):
        e(f'ds_read_b128 {vr(ACC+32+4*i,4)}, v13 offset:{i*1024}')
    CON = 64
    gelu_consts(g, CON)
    e('s_waitcnt lgkmcnt(0)')
    lds_flag(g, 4)
    addv(g, ACC, ACC, ACC + 32, 32)
    gelu(g, [ACC + 2 * i for i in range(8)], BF, CON)
    lds_spin(g, 4)
    for n in (2, 3):
        for it in wsp_dma(n): g.item(it)
    e(f'''
    s_lshl_b32 s57, s{sJ}, 5
    s_add_u32 s57, s57, s{sRB}
    s_mul_i32 s57, s57, {FS}
    s_add_u32 s57, s57, {FZ_OFF}
    ''')
    g.wait('z2')
    wgflag(g, 0, 4, 57, 44)
    g.stamp(10)
    gelu(g, [ACC + 16 + 2 * i for i in range(8)], BF, CON)
    for Tl in range(2):
        for v_ in range(2):
            d = 68 + (Tl * 2 + v_) * 4
            pack(g, d, acc(Tl, 2 * v_), acc(Tl, 2 * v_ + 1))
            e(f'ds_write_b128 v12, {vr(d,4)} offset:{8192 + (Tl*2+v_)*1024}')
    if Opt.prio: e('s_setprio 0')
    g.stamp(11)
    e('s_branch L_PB')
    a.label('L_G1')
    g.vm = list(vm_g1)
    for c in range(7):
        for r in a_reads(c): e(r)
        if c in (2, 5): e('s_waitcnt lgkmcnt(4)')
    g.wait('u0')
    e('s_waitcnt lgkmcnt(4)')
    for r in b_reads(0, 0): e(r)
    e('s_waitcnt lgkmcnt(0)\ns_barrier')
    for c in (1, 2, 3):
        for it in unit_dma(SQ, 50, c, c, 2688, f'u{c}'): g.item(it)
    dk = {k: unit_dma(SQ, 50, k + 4, k, 2688, f'u{k+4}') for k in range(3)}
    dk[4] = unit_dma(SQ, 51, 0, 0, 2688, 'n0'); dk[5] = unit_dma(SQ, 51, 1, 1, 2688, 'n1')
    run_pass(list(range(7)), True, dk, pre_done=True)
    g.stamp(4)
    exchange2(ACC, 1)
    g.stamp(5)
    CON = 176
    phi_consts(g, CON)
    e(f'''
    s_lshl_b32 s52, s{sRB}, 1
    s_add_u32 s52, s52, s{sKH}
    s_lshl_b32 s53, s{sJ}, 18
    s_lshl_b32 s54, s52, 10
    s_add_u32 s53, s53, s54
    s_mul_i32 s54, s{sCB}, {VD_OFF - KD_OFF}
    s_add_u32 s53, s53, s54
    s_add_u32 s53, s53, {KD_OFF}
    s_lshl_b32 s54, s{sJ}, 5
    s_add_u32 s54, s54, s{sRB}
    s_mul_i32 s54, s54, {FS}
    s_add_u32 s54, s54, {FK_OFF}
    s_cmp_eq_u32 s{sCB}, 1
    s_cbranch_scc1 L_G1V
    ''')
    vm_kv = list(g.vm)
    for cbv in (0, 1):
        if cbv == 1:
            a.label('L_G1V'); a.fence(2)
            g.vm = list(vm_kv)
        units = [0, 1, 2, 3] if cbv == 0 else [4, 5, 6]
        if cbv == 0:
            phi(g, [ACC + 2 * i for i in range(8)], BF, CON)
        lds_spin(g, 2)
        for c in range(2, len(units)):
            for it in unit_dma(SQ, 51, c, c, 2688, f'n{c}'): g.item(it)
        if cbv == 0:
            phi(g, [ACC + 16 + 2 * i for i in range(8)], BF, CON)
        for nt in range(4):
            pack(g, Y + 4 * nt, acc(0, nt), acc(1, nt))
            g.v(f'buffer_store_dwordx4 {vr(Y+4*nt,4)}, v5, {S(SWS)}, s53 offen sc1', 'kv')
            if nt < 3: e('s_add_u32 s53, s53, 0x10000')
        g.stamp(6)
        g.vm = [t.replace('n', 'u') if t and t[0] == 'n' else t for t in g.vm]
        keep = cbv
        order = tuple(t for t in (2, 3, 1 - keep, keep))
        run_pass(units, False, {}, lastorder=order)
        g.stamp(7)
        e(f'''
        s_lshl_b32 s57, s{sKH}, 13
        s_add_u32 s58, s{sREG}, s57
        v_add_u32 v12, s58, v5
        s_xor_b32 s57, s57, 8192
        s_add_u32 s58, s{sREG}, s57
        v_add_u32 v13, s58, v5
        v_mov_b32 v7, {LF + 16}
        ''')
        for Tl in order[:3]:
            for nt in range(4):
                e(f'ds_write_b128 v{12 + (Tl>>1)}, {vr(acc(Tl,nt),4)} offset:{(Tl&1)*4096 + nt*1024}')
        g.wait('kv', 'lgkmcnt(0)')
        lds_flag(g, 3)
        wgflag(g, 1, 4, 54, 16)
        wsp_setup()
        e(f'''
        s_lshl_b32 s57, s{sKH}, 13
        s_add_u32 s57, s57, {keep*4096}
        ''')
        for x in (1, 2, 3):
            e(f'''
            s_xor_b32 s58, s{sW}, {x}
            s_mul_i32 s58, s58, {REG}
            s_add_u32 s58, s58, s57
            v_add_u32 v{8+x}, s58, v5
            ''')
        phi_consts(g, 64)
        lds_spin(g, 3, four=True)
        for x in (1, 2, 3):
            for nt in range(4):
                e(f'ds_read_b128 {vr(16+(x-1)*16+4*nt,4)}, v{8+x} offset:{nt*1024}')
        K = acc(keep, 0)
        e('s_waitcnt lgkmcnt(8)')
        addv(g, K, K, 16, 16)
        e('s_waitcnt lgkmcnt(0)')
        lds_flag(g, 4)
        addv(g, 32, 32, 48, 16)
        addv(g, K, K, 32, 16)
        phi(g, [K + 2 * i for i in range(8)], BF, 64)
        e(f'''
        s_lshl_b32 s52, s{sRB}, 2
        s_lshl_b32 s53, s{sKH}, 1
        s_add_u32 s52, s52, s53
        s_add_u32 s52, s52, {keep}
        s_mul_i32 s53, s52, 14336
        s_lshl_b32 s54, s{sJ}, 11
        s_add_u32 s53, s53, s54
        s_add_u32 s53, s53, {PQ_OFF}
        s_lshl_b32 s54, s{sJ}, 5
        s_add_u32 s54, s54, s{sRB}
        s_mul_i32 s54, s54, {FS}
        s_add_u32 s54, s54, {FQ_OFF}
        ''')
        for v_ in range(2):
            pack(g, 68 + 4 * v_, K + 8 * v_, K + 8 * v_ + 4)
            g.v(f'buffer_store_dwordx4 {vr(68+4*v_,4)}, v5, {S(SWS)}, s53 offen offset:{v_*1024} sc1', 'pq')
        lds_spin(g, 4, four=True)
        for n in range(4):
            for it in wsp_dma(n): g.item(it)
        g.wait('pq')
        wgflag(g, 2, 4, 54, 16)
        g.stamp(11)
        if cbv == 0: e('s_branch L_PB')
    a.label('L_PB'); a.fence(2)
    g.vm = []
    ZB = 16; BACC = 128; BA = 160; BS = 112; Z1R = 116; XRES = 124
    e(f'''
    s_and_b32 s{sCB}, s{sW}, 3
    s_lshr_b32 s{sKH}, s{sW}, 2
    s_mul_i32 s52, s{sJ}, {32*FS}
    s_add_u32 s52, s52, {FZ_OFF}
    v_and_b32 v2, 31, v0
    v_mul_u32_u24 v2, {FS}, v2
    s_lshl_b32 s47, s{sJ}, 2
    s_add_u32 s47, s47, s{sCB}
    s_lshl_b32 s48, s47, 17
    s_lshl_b32 s49, s{sKH}, 12
    s_add_u32 s48, s48, s49
    s_add_u32 s48, s48, {Z2_OFF}
    s_lshl_b32 s49, s56, 5
    v_add_u32 v6, 8192, v5
    ''')
    e(f'''
    v_bfe_u32 v3, v0, 2, 2
    v_lshlrev_b32 v3, 4, v3
    v_and_b32 v4, 3, v0
    v_lshl_add_u32 v3, v4, 1, v3
    s_lshl_b32 s53, s{sRB}, 7
    s_lshl_b32 s54, s{sKH}, 6
    s_add_u32 s53, s53, s54
    ''')
    for Tl in range(2):
        g.v(f'buffer_load_ushort v{BS+2*Tl}, v3, {S(SBS)}, s53 offen offset:{Tl*8}', 'b')
    e(f'''
    v_and_b32 v3, 15, v0
    v_lshrrev_b32 v4, 4, v0
    v_lshrrev_b32 v7, 1, v3
    v_xor_b32 v4, v4, v7
    v_lshlrev_b32 v4, 4, v4
    v_and_b32 v7, 7, v0
    v_lshl_add_u32 v4, v7, 7, v4
    v_lshrrev_b32 v3, 3, v3
    v_mul_u32_u24 v3, {REG}, v3
    v_add_u32 v4, v4, v3
    s_mul_i32 s53, s{sKH}, {4*REG + 1024}
    s_mul_i32 s54, s{sKH}, {4*REG - 1024}
    s_sub_u32 s54, {4*REG}, s54
    v_add_u32 v8, s53, v4
    v_xor_b32 v9, 64, v8
    v_add_u32 v10, s54, v4
    v_xor_b32 v11, 64, v10
    ''')
    e(f'''
    v_lshrrev_b32 v3, 3, v0
    v_and_b32 v4, 6, v3
    v_xor_b32 v4, v4, v0
    v_and_b32 v4, 7, v4
    v_lshlrev_b32 v4, 4, v4
    v_mad_u32_u24 v12, v3, 896, v4
    s_cmp_eq_u32 s{sCB}, 3
    s_cselect_b32 s53, 3, 7
    v_and_b32 v3, s53, v3
    v_mad_u32_u24 v13, v3, 896, v4
    s_mul_i32 s50, s{sCB}, {8*896}
    s_lshl_b32 s53, s{sJ}, 7
    s_add_u32 s50, s50, s53
    s_mul_i32 s51, s{sKH}, {32*896}
    s_add_u32 s51, s51, s50
    s_mul_i32 s53, s{sKH}, {28*896}
    s_add_u32 s50, s50, s53
    ''' .replace('896, v4', 's60, v4').replace('v_lshrrev_b32 v3, 3, v0', 's_movk_i32 s60, 896\n    v_lshrrev_b32 v3, 3, v0'))
    def w3slot(yy): return yy if yy < 20 else yy - 16
    def w3_dma(yy):
        if yy < 8:
            t = f's_add_u32 s61, s50, {yy*56*896}\ns_add_u32 m0, s{sREG}, {w3slot(yy)*1024}\nbuffer_load_dwordx4 v13, {S(SWO)}, s61 offen lds'
        else:
            t = f's_add_u32 s61, s51, {(yy-8)*64*896}\ns_add_u32 m0, s{sREG}, {w3slot(yy)*1024}\nbuffer_load_dwordx4 v12, {S(SWT)}, s61 offen lds'
        return (t, f'y{yy}')
    def z_loads(n):
        r = ZB + (n % 3) * 32
        L = []
        for k in range(8):
            pre = f's_add_u32 s57, s49, {n*16384}\ns_and_b32 s57, s57, 0x1ffff\ns_add_u32 s57, s57, s48\n' if k == 0 else ''
            L.append((pre + f'buffer_load_dwordx4 {vr(r+4*k,4)}, v{5 + k//4}, {S(SWS)}, s57 offen offset:{(k%4)*1024} sc1', f'z{n}_{k//2}'))
        return L
    g.stamp(12)
    poll1(g, 2, 52)
    g.stamp(13)
    e('s_waitcnt lgkmcnt(0)\ns_barrier')
    for n in (0, 1):
        for it in z_loads(n): g.item(it)
    g.stamp(14)
    e(f'''
    s_lshr_b32 s53, s{sCB}, 1
    s_lshl_b32 s53, s53, 1
    s_add_u32 s53, s53, s{sKH}
    s_mul_i32 s53, s53, {REG}
    s_and_b32 s54, s{sCB}, 1
    s_lshl_b32 s54, s54, 10
    s_add_u32 s53, s53, s54
    v_add_u32 v3, s53, v5
    ds_read_b128 {vr(Z1R,4)}, v3 offset:16384
    ds_read_b128 {vr(Z1R+4,4)}, v3 offset:{16384+2048}
    ''')
    def bacc(ft, Tl): return BACC + (Tl * 2 + ft) * 4
    def ba_reads(n, q):
        s = BA + 16 * (q & 1)
        slot = (4 * n + 2 * (q >> 1)) % 16
        return [f'ds_read_b128 {vr(s+4*Tl,4)}, v{8 + (Tl>>1)*2 + (q&1)} offset:{(Tl&1)*2*REG + slot*1024}' for Tl in range(4)]
    for r in ba_reads(0, 0): e(r)
    for n in range(8):
        sec = []
        if n >= 1:
            if n - 1 < 4: sec += wsp_dma(n + 3)
            else: sec += [w3_dma(yy) for yy in range(4 * (n - 5), 4 * (n - 5) + 4)]
        if n + 2 < 8: sec += z_loads(n + 2)
        if n == 7:
            pass
        per = (len(sec) + 3) // 4
        for q in range(4):
            g.wait(f'z{n}_{q}', 'lgkmcnt(0)')
            s = BA + 16 * (q & 1)
            zr = ZB + (n % 3) * 32 + q * 8
            order = (2, 3, 0, 1) if (n == 7 and q == 3) else (0, 1, 2, 3)
            M_ = [f'{MF} {vr(bacc(ft,Tl),4)}, {vr(zr+4*ft,4)}, {vr(s+4*Tl,4)}, {"0" if (n == 0 and q == 0) else vr(bacc(ft,Tl),4)}'
                  for Tl in order for ft in range(2)]
            nxt = ba_reads(n, q + 1) if q < 3 else (ba_reads(n + 1, 0) if n < 7 else [])
            mine = sec[q * per:(q + 1) * per]
            weave(g, M_[:4], nxt)
            weave(g, M_[4:], mine)
        if n < 7:
            if g.has(f'w{n+2}'): g.wait(f'w{n+2}')
            e('s_barrier')
        g.stamp(15 + n)
    e(f'''
    s_add_u32 s53, s{sREG}, 16384
    v_add_u32 v3, s53, v5
    s_xor_b32 s54, s{sW}, 4
    s_mul_i32 s54, s54, {REG}
    s_add_u32 s54, s54, 16384
    v_add_u32 v4, s54, v5
    ''')
    for i in range(4):
        e(f'ds_write_b128 v3, {vr(BACC+16+4*i,4)} offset:{i*1024}')
    UT = 16
    for Tl in range(2):
        e(f'v_lshlrev_b32 v{BS+2*Tl}, 16, v{BS+2*Tl}\nv_mov_b32 v{BS+2*Tl+1}, v{BS+2*Tl}')
        for jx in range(4):
            e(f'v_lshlrev_b32 v{UT+8*Tl+2*jx}, 16, v{Z1R+4*Tl+jx}')
            e(f'v_and_b32 v{UT+8*Tl+2*jx+1}, 0xffff0000, v{Z1R+4*Tl+jx}')
    for Tl in range(2):
        for jx in range(4):
            r = BACC + 8 * Tl + 2 * jx
            e(f'v_pk_add_f32 {vr(r,2)}, {vr(r,2)}, {vr(BS+2*Tl,2)}')
    if g.has('y7'): g.wait('y7', 'lgkmcnt(0)')
    else: e('s_waitcnt lgkmcnt(0)')
    e('s_barrier')
    for i in range(4):
        e(f'ds_read_b128 {vr(BACC+16+4*i,4)}, v4 offset:{i*1024}')
    e(f'''
    s_lshl_b32 s53, s{sRB}, 2
    s_lshl_b32 s54, s{sKH}, 1
    s_add_u32 s53, s53, s54
    s_mul_i32 s53, s53, 44
    s_add_u32 s53, s53, s47
    s_lshl_b32 s53, s53, 10
    s_add_u32 s53, s53, {ACT_OFF + 16*1024}
    s_add_u32 s54, s53, {44*1024}
    s_waitcnt lgkmcnt(0)
    ''')
    for Tl in range(2):
        for jx in range(4):
            r = BACC + 8 * Tl + 2 * jx
            e(f'v_pk_add_f32 {vr(r,2)}, {vr(r,2)}, {vr(r+16,2)}')
        for jx in range(4):
            r = BACC + 8 * Tl + 2 * jx
            e(f'v_pk_mul_f32 {vr(r,2)}, {vr(r,2)}, {vr(UT+8*Tl+2*jx,2)}')
        pack(g, Z1R + 4 * Tl, BACC + 8 * Tl, BACC + 8 * Tl + 4)
        g.v(f'buffer_store_dwordx4 {vr(Z1R+4*Tl,4)}, v5, {S(SWS)}, s{53+Tl} offen sc1', 'U')
    for yy in range(12, 16): g.item(w3_dma(yy))
    if g.has('y11'): g.wait('y11')
    e('s_barrier')
    for yy in range(16, 20): g.item(w3_dma(yy))
    e(f'''
    s_mul_i32 s52, s{sRB}, {8*FS}
    s_add_u32 s52, s52, {FU_OFF}
    s_mul_i32 s54, s{sJ}, {FS}
    s_add_u32 s54, s54, s52
    s_lshr_b32 s53, s{sRB}, 1
    s_mul_i32 s53, s53, {16*FS}
    s_add_u32 s53, s53, {FO_OFF}
    v_and_b32 v3, 15, v0
    v_mul_u32_u24 v3, {FS}, v3
    v_min_u32 v4, 6, v0
    v_mul_u32_u24 v4, {FS}, v4
    s_lshl_b32 s48, s{sRB}, 2
    s_add_u32 s48, s48, s{sCB}
    s_mul_i32 s48, s48, 44
    s_add_u32 s48, s48, s{sKH}
    s_lshl_b32 s48, s48, 10
    s_add_u32 s48, s48, {ACT_OFF}
    ''')
    g.wait('U')
    e('s_barrier')
    g.stamp(23)
    poll1(g, 3, 53, flag=54)
    e('s_barrier')
    g.stamp(24)
    CF = 16; CACC = 128; CW = 160
    def act_load(yy):
        pre = f's_add_u32 s57, s48, {yy*2048}\n' if yy % 2 == 0 else ''
        return (pre + f'buffer_load_dwordx4 {vr(CF+4*yy,4)}, v5, {S(SWS)}, s57 offen offset:{(yy%2)*2048} sc1', f'a{yy}')
    for yy in range(8): g.item(act_load(yy))
    e(f'''
    v_lshrrev_b32 v6, 5, v0
    v_lshlrev_b32 v6, 3, v6
    v_bfe_u32 v7, v0, 3, 2
    v_add_u32 v6, v6, v7
    v_mul_u32_u24 v6, 896, v6
    v_and_b32 v7, 7, v0
    v_lshl_add_u32 v6, v7, 4, v6
    s_lshr_b32 s49, s55, 12
    s_mul_i32 s49, s49, 896
    s_lshl_b32 s57, s{sJ}, 7
    s_add_u32 s49, s49, s57
    ''')
    g.v(f'buffer_load_dwordx4 {vr(XRES,4)}, v6, {S(SX)}, s49 offen', 'xr')
    e(f'''
    v_bfe_u32 v2, v0, 2, 3
    v_lshrrev_b32 v7, 5, v0
    v_mul_u32_u24 v7, {REG}, v7
    v_lshl_add_u32 v7, v2, 7, v7
    v_and_b32 v3, 3, v0
    v_lshl_add_u32 v7, v3, 3, v7
    s_mul_i32 s57, s{sKH}, {4*REG}
    v_add_u32 v7, s57, v7
    v_lshrrev_b32 v2, 1, v2
    v_lshlrev_b32 v2, 5, v2
    ''')
    for t in range(4):
        e(f'v_xor_b32 v3, {t*32}, v2\nv_add_u32 v{8+t}, v7, v3')
    def cw_reads(yy):
        s = CW + 16 * (yy & 1)
        return [f'ds_read_b64_tr_b16 {vr(s+4*t+2*h,2)}, v{8+t} offset:{h*2*REG + w3slot(yy)*1024}' for t in range(4) for h in range(2)]
    def c_part(y0, y1):
        for r in cw_reads(y0): e(r)
        for yy in range(y0, y1):
            g.wait(f'a{yy}', 'lgkmcnt(0)')
            s = CW + 16 * (yy & 1)
            M_ = [f'{MF} {vr(CACC+4*nt,4)}, {vr(s+4*nt,4)}, {vr(CF+4*yy,4)}, {"0" if yy == 0 else vr(CACC+4*nt,4)}' for nt in range(4)]
            weave(g, M_, cw_reads(yy + 1) if yy + 1 < y1 else [], per=2)
    c_part(0, 8)
    e('s_barrier')
    g.stamp(25)
    for yy in (20, 21): g.item(w3_dma(yy))
    poll1(g, 4, 52)
    e('s_barrier')
    g.stamp(26)
    for yy in range(8, 22): g.item(act_load(yy))
    c_part(8, 22)
    g.stamp(27)
    e(f'''
    v_and_b32 v2, 15, v0
    v_lshrrev_b32 v3, 4, v0
    v_xor_b32 v3, v3, v2
    v_lshlrev_b32 v3, 4, v3
    v_lshl_add_u32 v3, v2, 8, v3
    v_add_u32 v3, s{sREG}, v3
    ''')
    for nt in range(4):
        e(f'v_xor_b32 v{8+nt}, {nt*64}, v3')
    for nt in range(4):
        e(f'ds_write_b128 v{8+nt}, {vr(CACC+4*nt,4)}')
    e(f'''
    s_and_b32 s57, s{sW}, 1
    s_lshl_b32 s57, s57, 3
    v_lshrrev_b32 v2, 3, v0
    v_add_u32 v2, s57, v2
    v_and_b32 v3, 7, v0
    v_lshlrev_b32 v3, 1, v3
    v_xor_b32 v3, v3, v2
    v_lshlrev_b32 v3, 4, v3
    v_lshl_add_u32 v3, v2, 8, v3
    s_lshr_b32 s57, s{sW}, 1
    s_mul_i32 s57, s57, {REG}
    v_add_u32 v3, s57, v3
    v_xor_b32 v4, 16, v3
    v_add_u32 v12, {4*REG}, v3
    v_add_u32 v13, {4*REG}, v4
    ''')
    for jx in range(4):
        e(f'v_lshlrev_b32 v{16+2*jx}, 16, v{XRES+jx}\nv_and_b32 v{17+2*jx}, 0xffff0000, v{XRES+jx}')
    e(f'''
    s_waitcnt lgkmcnt(0)
    s_barrier
    ds_read_b128 v[24:27], v3
    ds_read_b128 v[28:31], v4
    ds_read_b128 v[32:35], v12
    ds_read_b128 v[36:39], v13
    s_waitcnt lgkmcnt(2)
    ''')
    for jx in range(4):
        e(f'v_pk_add_f32 {vr(16+2*jx,2)}, {vr(16+2*jx,2)}, {vr(24+2*jx,2)}')
    e('s_waitcnt lgkmcnt(0)')
    for jx in range(4):
        e(f'v_pk_add_f32 {vr(16+2*jx,2)}, {vr(16+2*jx,2)}, {vr(32+2*jx,2)}')
    pack(g, 24, 16, 20)
    g.v(f'buffer_store_dwordx4 v[24:27], v6, {S(SOUT)}, s49 offen', 'out')
    e(f'''
    s_or_b32 s57, s{sRB}, s{sJ}
    s_or_b32 s57, s57, s{sW}
    s_cmp_lg_u32 s57, 0
    s_cbranch_scc1 L_END
    ''')
    e(f'v_lshlrev_b32 v2, 7, v0')
    for q in range(4):
        e(f's_mov_b32 s57, {FO_OFF + q*64*FS}')
        gpoll(g, 2, 57)
    e(f's_mov_b32 s57, {EPOCH_OFF}')
    gflag(g, 57)
    e('s_branch L_END')
    a.label('L_ATT'); a.fence(2)
    g.vm = []
    sH, sOFF, sT0 = 47, 48, 49
    e(f'''
    s_waitcnt lgkmcnt(0)
    s_load_dword s{sTAG}, s[{SWS}:{SWS+1}], {EPOCH_OFF}
    s_lshr_b32 s{sH}, s{sRB}, 1
    s_and_b32 s{sKH}, s{sRB}, 1
    s_mul_i32 s50, s{sH}, 7
    s_and_b32 s{sOFF}, s50, 3
    s_lshr_b32 s{sT0}, s50, 2
    v_lshlrev_b32 v5, 4, v0
    ''')
    if Opt.pf:
        e(f'''
        s_lshl_b32 s51, s{sRB}, 3
        s_add_u32 s51, s51, s{sW}
        s_lshl_b32 s51, s51, 15
        s_sleep 32
        ''')
        for i in range(32):
            e(f'buffer_load_dwordx4 {vr(16+4*i,4)}, v5, {S(SSP)}, s51 offen offset:{(i%4)*1024}')
            if i % 4 == 3: e('s_add_u32 s51, s51, 4096')
    e(f'''
    v_bfe_u32 v2, v0, 2, 2
    v_cmp_gt_u32 vcc, s{sOFF}, v2
    v_cndmask_b32_e64 v3, 0, 1, vcc
    v_add_u32 v3, s{sT0}, v3
    v_lshl_add_u32 v8, v3, 16, v5
    v_add_u32 v9, 0x10000, v8
    ''')
    e(f'''
    s_mul_i32 s50, s{sH}, 28
    s_lshr_b32 s51, s50, 6
    s_add_u32 s52, s50, 27
    s_lshr_b32 s52, s52, 6
    s_sub_u32 s52, s52, s51
    v_bfe_u32 v3, v0, 4, 1
    v_mul_u32_u24 v3, s52, v3
    v_add_u32 v3, s51, v3
    v_lshlrev_b32 v4, 5, v3
    v_and_b32 v7, 3, v0
    v_add_u32 v6, v4, v7
    v_mul_u32_u24 v6, {FS}, v6
    v_and_b32 v7, 1, v0
    v_add_u32 v4, v4, v7
    v_mul_u32_u24 v7, {FS}, v4
    s_mul_i32 s53, s{sW}, {4*FS}
    s_add_u32 s54, s53, {FK_OFF}
    s_mul_i32 s55, s{sKH}, {16*FS}
    s_mul_i32 s53, s{sW}, {2*FS}
    s_add_u32 s55, s55, s53
    s_add_u32 s55, s55, {FQ_OFF}
    s_lshl_b32 s56, s{sW}, 13
    s_add_u32 s57, s56, {VD_OFF}
    s_add_u32 s56, s56, {KD_OFF}
    s_waitcnt lgkmcnt(0)
    s_add_u32 s{sTAG}, s{sTAG}, {TAGC}
    ''')
    g.stamp(1)
    gpoll(g, 6, 54)
    g.stamp(2)
    KB = 16; VB = 80; QB = 144; KA = 176; ONE = 200
    for kk in range(8):
        if kk == 4: e('s_add_u32 s56, s56, 4096\ns_add_u32 s57, s57, 4096')
        for X in range(2):
            g.v(f'buffer_load_dwordx4 {vr(KB+(kk*2+X)*4,4)}, v{8+X}, {S(SWS)}, s56 offen offset:{(kk%4)*1024} sc1', f'k{kk}')
        for X in range(2):
            g.v(f'buffer_load_dwordx4 {vr(VB+(kk*2+X)*4,4)}, v{8+X}, {S(SWS)}, s57 offen offset:{(kk%4)*1024} sc1', f'k{kk}')
    for jx in range(4): e(f'v_mov_b32 v{ONE+jx}, 0x3f803f80')
    e(f'''
    v_lshrrev_b32 v2, 4, v0
    v_cmp_gt_u32 vcc, s{sOFF}, v2
    v_cndmask_b32_e64 v3, 0, 1, vcc
    v_add_u32 v3, s{sT0}, v3
    v_lshrrev_b32 v4, 1, v3
    v_lshl_add_u32 v10, v4, 10, v5
    v_and_b32 v4, 1, v3
    v_lshl_add_u32 v10, v4, 3, v10
    v_add_u32 v3, 1, v3
    v_lshrrev_b32 v4, 1, v3
    v_lshl_add_u32 v11, v4, 10, v5
    v_and_b32 v4, 1, v3
    v_lshl_add_u32 v11, v4, 3, v11
    s_add_u32 s50, s{sOFF}, 3
    s_and_b32 s50, s50, 3
    v_cmp_eq_u32 s[58:59], s50, v2
    v_bfe_u32 v3, v0, 2, 2
    v_cmp_eq_u32 s[60:61], s50, v3
    v_cndmask_b32_e64 v11, v11, v10, s[58:59]
    v_subrev_u32 v3, s{sOFF}, v2
    v_and_b32 v3, 3, v3
    v_lshlrev_b32 v3, 8, v3
    v_and_b32 v4, 15, v0
    v_lshl_add_u32 v12, v4, 4, v3
    ''')
    for kk in range(8):
        g.wait(f'k{kk}')
        for Xd in range(2):
            for Xe in range(3):
                d = vr(KA + (Xd * 3 + Xe) * 4, 4)
                b = vr(VB + (kk*2+Xe)*4, 4) if Xe < 2 else vr(ONE, 4)
                e(f'{MF} {d}, {vr(KB+(kk*2+Xd)*4,4)}, {b}, {"0" if kk == 0 else d}')
    e(f's_mul_i32 s50, s{sW}, 6144\nv_add_u32 v2, s50, v5')
    for i in range(6):
        e(f'ds_write_b128 v2, {vr(KA+4*i,4)} offset:{i*1024}')
    g.stamp(3)
    gpoll(g, 7, 55)
    g.stamp(4)
    e(f'''
    s_lshl_b32 s50, s{sKH}, 6
    s_lshl_b32 s51, s{sW}, 3
    s_add_u32 s50, s50, s51
    s_mul_i32 s51, s50, 14336
    s_add_u32 s51, s51, {PQ_OFF}
    s_mul_i32 s52, s50, 44
    s_add_u32 s52, s52, s{sH}
    s_lshl_b32 s52, s52, 10
    s_add_u32 s52, s52, {ACT_OFF}
    s_lshl_b32 s53, s50, 1
    s_add_u32 s53, s53, s{sH}
    s_mul_i32 s53, s53, {FS}
    s_add_u32 s53, s53, {FO_OFF}
    ''')
    for i in range(8):
        for X in range(2):
            g.v(f'buffer_load_dwordx2 {vr(QB+4*i+2*X,2)}, v{10+X}, {S(SWS)}, s51 offen sc1', f'q{i}')
        if i < 7: e('s_add_u32 s51, s51, 14336')
    e('s_waitcnt lgkmcnt(0)\ns_barrier')
    R = 16
    for hf in range(2):
        for w in range(4):
            for i in range(6):
                e(f'ds_read_b128 {vr(R+(w*6+i)*4,4)}, v5 offset:{(hf*4+w)*6144 + i*1024}')
            if w % 2 == 1: e('s_waitcnt lgkmcnt(0)')
        for i in range(12):
            e(f'v_pk_add_f32 {vr(R+2*i,2)}, {vr(R+2*i,2)}, {vr(R+24+2*i,2)}')
            e(f'v_pk_add_f32 {vr(R+48+2*i,2)}, {vr(R+48+2*i,2)}, {vr(R+72+2*i,2)}')
        for i in range(12):
            if hf == 0:
                e(f'v_pk_add_f32 {vr(KA+2*i,2)}, {vr(R+2*i,2)}, {vr(R+48+2*i,2)}')
            else:
                e(f'v_pk_add_f32 {vr(R+2*i,2)}, {vr(R+2*i,2)}, {vr(R+48+2*i,2)}')
                e(f'v_pk_add_f32 {vr(KA+2*i,2)}, {vr(KA+2*i,2)}, {vr(R+2*i,2)}')
    KF = 204
    for Xe in range(3):
        pack(g, KF + 4 * Xe, KA + Xe * 4, KA + (3 + Xe) * 4)
    for Xe in range(3):
        for jx in (2, 3):
            e(f'v_cndmask_b32_e64 v{KF+4*Xe+jx}, v{KF+4*Xe+jx}, 0, s[58:59]')
    for jx in range(4):
        e(f'v_cndmask_b32_e64 v{KF+4+jx}, v{KF+4+jx}, 0, s[60:61]')
    g.stamp(5)
    OB = 16
    for i in range(8):
        g.wait(f'q{i}')
        for Xe in range(3):
            e(f'{MF} {vr(OB+i*12+4*Xe,4)}, {vr(KF+4*Xe,4)}, {vr(QB+4*i,4)}, 0')
    for i in range(8):
        o = OB + i * 12
        e(f'v_add_f32 v{o+8}, {f32(1e-6)}, v{o+8}\nv_rcp_f32 v{o+8}, v{o+8}\nv_mov_b32 v{o+9}, v{o+8}')
        for p in range(4):
            e(f'v_pk_mul_f32 {vr(o+2*p,2)}, {vr(o+2*p,2)}, {vr(o+8,2)}')
        pack(g, QB + 4 * i, o, o + 4)
        g.v(f'buffer_store_dwordx4 {vr(QB+4*i,4)}, v12, {S(SWS)}, s52 offen sc1', 'o')
        if i < 7: e(f's_add_u32 s52, s52, {44*1024}')
    g.wait('o')
    gflag(g, 53)
    a.label('L_END')
    if Opt.stamp:
        g.stamp(30)
        e('s_waitcnt vmcnt(0)')
        g.stamp(31)
        e(f'''
        s_memrealtime s[96:97]
        s_waitcnt lgkmcnt(0)
        v_writelane_b32 v15, s94, 0
        v_writelane_b32 v15, s98, 32
        v_writelane_b32 v15, s96, 33
        s_lshl_b32 s96, s2, 3
        s_add_u32 s96, s96, s{sW}
        s_lshl_b32 s96, s96, 8
        s_add_u32 s96, s96, {DBG_OFF}
        v_lshlrev_b32 v14, 2, v0
        buffer_store_dword v15, v14, {S(SWS)}, s96 offen
        ''')
    a.label('L_EXIT')
    e('s_endpgm')
    head = '; @launch grid=(256,1,1) block=(512,1,1) lds=163840\n'
    tail = f'''.section .rodata,"a"
.p2align 6
.amdhsa_kernel {KNAME}
  .amdhsa_next_free_vgpr 256
  .amdhsa_next_free_sgpr 102
  .amdhsa_accum_offset 256
  .amdhsa_group_segment_fixed_size 0
  .amdhsa_kernarg_size 88
  .amdhsa_user_sgpr_count 2
  .amdhsa_user_sgpr_kernarg_segment_ptr 1
  .amdhsa_system_sgpr_workgroup_id_x 1
.end_amdhsa_kernel
'''
    return head + a.text() + tail

if __name__ == '__main__':
    for o in sys.argv[2:]:
        k, _, v = o.partition('=')
        setattr(Opt, k, int(v) if v else True)
    open(sys.argv[1], 'w').write(gen())
```

```python
import sys, math
from asmlib import *

KNAME = 'parallel_sum__linear_attn_block__mixer_gmlp__prompt_kernel'
FS = 128
FZ_OFF = 0; FK_OFF = 0x8000; FQ_OFF = 0x10000; FU_OFF = 0x18000; FO_OFF = 0x20000
EPOCH_OFF = 0x40000
ST_OFF  = 0x80000
Z2_OFF  = 0x100000
KD_OFF  = 0x480000
VD_OFF  = 0x640000
PQ_OFF  = 0x800000
ACT_OFF = 0x9C0000
DBG_OFF = 0x1000000
WS_SIZE = 0x1100000
REG = 20480
XN0 = 4 * REG + 4096
LF  = 7 * REG + 16384
TAGC = 0x9E3779B9

LOG2E = 1.4426950408889634
GC0 = -2.0 * math.sqrt(2.0 / math.pi) * LOG2E
GC1 = GC0 * 0.044715

SX, SQ, SI, SWS, SSP, SBS, SWO, SWT, SOUT = 4, 8, 12, 16, 20, 24, 28, 32, 36
def S(b): return f's[{b}:{b+3}]'
sW, sRB, sJ, sTAG, sCB, sKH, sREG = 40, 41, 42, 43, 44, 45, 46

class Opt:
    stamp = False
    pk = True
    prio = True
    rot = True
    pf = True
    slp = 4
    hold = -1

class G:
    def __init__(self):
        self.a = Asm(); self.vm = []; self.nl = 0
    def e(self, t): self.a.e(t)
    def v(self, text, tag=None):
        self.a.e(text); self.vm.append(tag)
    def wait(self, tag, extra=''):
        idx = max(i for i, t in enumerate(self.vm) if t == tag)
        n = len(self.vm) - 1 - idx
        assert n <= 63, n
        self.a.e(f's_waitcnt vmcnt({n}) {extra}')
        self.vm = self.vm[idx + 1:]
    def has(self, tag): return tag in self.vm
    def item(self, it):
        if callable(it): it()
        elif isinstance(it, tuple): self.v(it[0], it[1])
        else: self.e(it)
    def lab(self, p):
        self.nl += 1; return f'{p}_{self.nl}'
    def stamp(self, idx):
        if Opt.hold == idx:
            self.e('s_memrealtime s[94:95]\ns_waitcnt lgkmcnt(0)')
        if Opt.stamp:
            self.e(f's_memtime s[96:97]\ns_waitcnt lgkmcnt(0)\nv_writelane_b32 v15, s96, {idx}')

def weave(g, prim, sec, start=0, per=1):
    sec = list(sec)
    for i, p in enumerate(prim):
        g.item(p)
        if i >= start:
            for _ in range(per):
                if sec: g.item(sec.pop(0))
    for s in sec: g.item(s)

def lds_flag(g, val):
    g.e(f'v_mov_b32 v14, {val}\nds_write_b32 v6, v14')

def lds_spin(g, val, four=False):
    L = g.lab('SP'); D = g.lab('SD')
    g.e(f's_movk_i32 s62, 0x7fff')
    g.a.label(L)
    if four:
        g.e(f'''
        ds_read_b128 v[220:223], v7
        s_waitcnt lgkmcnt(0)
        v_min3_u32 v220, v220, v221, v222
        v_min_u32 v14, v220, v223
        ''')
    else:
        g.e('ds_read_b32 v14, v7\ns_waitcnt lgkmcnt(0)')
    g.e(f'''
    v_readfirstlane_b32 s63, v14
    s_cmp_ge_u32 s63, {val}
    s_cbranch_scc1 {D}
    s_sub_u32 s62, s62, 1
    s_cbranch_scc0 {L}
    ''')
    g.a.label(D)

def gflag(g, soff):
    g.e(f's_mov_b64 exec, 1\nv_mov_b32 v14, s{sTAG}')
    g.v(f'buffer_store_dword v14, off, {S(SWS)}, s{soff} sc1', 'flag')
    g.e('s_mov_b64 exec, -1')

def wgflag(g, cnt, n, soff, vt):
    K = g.lab('WF')
    g.e(f"""
    s_mov_b64 exec, 1
    v_mov_b32 v14, 1
    v_mov_b32 v{vt}, {LF + 32 + 4*cnt}
    ds_add_rtn_u32 v14, v{vt}, v14
    s_waitcnt lgkmcnt(0)
    v_readfirstlane_b32 s63, v14
    s_cmp_eq_u32 s63, {n-1}
    s_cbranch_scc0 {K}
    v_mov_b32 v14, s{sTAG}
    buffer_store_dword v14, off, {S(SWS)}, s{soff} sc1
    """)
    g.a.label(K)
    g.e('s_mov_b64 exec, -1')

def poll1(g, voff, soff, flag=None):
    K = g.lab('P1')
    g.e(f's_cmp_lg_u32 s{sW}, 0\ns_cbranch_scc1 {K}')
    if flag: gflag(g, flag)
    gpoll(g, voff, soff)
    g.a.label(K)
    g.e('s_waitcnt vmcnt(0)')
    g.vm = []

def gpoll(g, voff, soff, x4=False):
    L = g.lab('PL'); D = g.lab('PD')
    g.e('s_movk_i32 s62, 0x1000')
    g.a.label(L)
    if x4:
        g.e(f'''
        buffer_load_dwordx4 v[220:223], v{voff}, {S(SWS)}, s{soff} offen sc1
        s_waitcnt vmcnt(0)
        v_xor_b32 v220, s{sTAG}, v220
        v_xor_b32 v221, s{sTAG}, v221
        v_xor_b32 v222, s{sTAG}, v222
        v_xor_b32 v223, s{sTAG}, v223
        v_or3_b32 v220, v220, v221, v222
        v_or_b32 v14, v220, v223
        v_cmp_ne_u32 vcc, 0, v14
        ''')
    else:
        g.e(f'''
        buffer_load_dword v14, v{voff}, {S(SWS)}, s{soff} offen sc1
        s_waitcnt vmcnt(0)
        v_cmp_ne_u32 vcc, s{sTAG}, v14
        ''')
    g.e(f'''
    s_nop 1
    s_cbranch_vccz {D}
    s_sleep {Opt.slp}
    s_sub_u32 s62, s62, 1
    s_cbranch_scc0 {L}
    ''')
    g.a.label(D)
    g.vm = []

def gelu(g, regs, T, CON):
    Ts = [T + 2 * i for i in range(len(regs))]
    z = list(zip(regs, Ts))
    if Opt.pk:
        for x, t in z: g.e(f'v_pk_mul_f32 {vr(t,2)}, {vr(x,2)}, {vr(x,2)}')
        for x, t in z: g.e(f'v_pk_fma_f32 {vr(t,2)}, {vr(t,2)}, {vr(CON+2,2)}, {vr(CON,2)}')
        for x, t in z: g.e(f'v_pk_mul_f32 {vr(t,2)}, {vr(t,2)}, {vr(x,2)}')
    else:
        for x, t in z:
            for d in (0, 1): g.e(f'v_mul_f32 v{t+d}, v{x+d}, v{x+d}')
        for x, t in z:
            for d in (0, 1): g.e(f'v_fma_f32 v{t+d}, v{t+d}, v{CON+2}, v{CON}')
        for x, t in z:
            for d in (0, 1): g.e(f'v_mul_f32 v{t+d}, v{t+d}, v{x+d}')
    for x, t in z:
        for d in (0, 1): g.e(f'v_exp_f32 v{t+d}, v{t+d}')
    if Opt.pk:
        for x, t in z: g.e(f'v_pk_add_f32 {vr(t,2)}, {vr(t,2)}, 1.0 op_sel_hi:[1,0]')
    else:
        for x, t in z:
            for d in (0, 1): g.e(f'v_add_f32 v{t+d}, 1.0, v{t+d}')
    for x, t in z:
        for d in (0, 1): g.e(f'v_rcp_f32 v{t+d}, v{t+d}')
    if Opt.pk:
        for x, t in z: g.e(f'v_pk_mul_f32 {vr(x,2)}, {vr(x,2)}, {vr(t,2)}')
    else:
        for x, t in z:
            for d in (0, 1): g.e(f'v_mul_f32 v{x+d}, v{x+d}, v{t+d}')

def gelu_consts(g, CON):
    g.e(f'''
    v_mov_b32 v{CON}, {f32(GC0)}
    v_mov_b32 v{CON+1}, {f32(GC0)}
    v_mov_b32 v{CON+2}, {f32(GC1)}
    v_mov_b32 v{CON+3}, {f32(GC1)}
    ''')

def phi(g, regs, T, CON):
    Ts = [T + 2 * i for i in range(len(regs))]
    z = list(zip(regs, Ts))
    if Opt.pk:
        for x, t in z: g.e(f'v_pk_mul_f32 {vr(t,2)}, {vr(x,2)}, {vr(CON,2)}')
    else:
        for x, t in z:
            for d in (0, 1): g.e(f'v_mul_f32 v{t+d}, v{x+d}, v{CON}')
    for x, t in z:
        for d in (0, 1): g.e(f'v_exp_f32_e64 v{t+d}, v{t+d} clamp')
    for x, t in z:
        for d in (0, 1): g.e(f'v_max_f32 v{x+d}, 0, v{x+d}')
    if Opt.pk:
        for x, t in z: g.e(f'v_pk_add_f32 {vr(x,2)}, {vr(x,2)}, {vr(t,2)}')
        for x, t in z: g.e(f'v_pk_add_f32 {vr(x,2)}, {vr(x,2)}, {vr(CON+2,2)}')
    else:
        for x, t in z:
            for d in (0, 1): g.e(f'v_add_f32 v{x+d}, v{x+d}, v{t+d}')
        for x, t in z:
            for d in (0, 1): g.e(f'v_add_f32 v{x+d}, v{x+d}, v{CON+2}')

def phi_consts(g, CON):
    g.e(f'''
    v_mov_b32 v{CON}, {f32(LOG2E)}
    v_mov_b32 v{CON+1}, {f32(LOG2E)}
    v_mov_b32 v{CON+2}, {f32(1e-6)}
    v_mov_b32 v{CON+3}, {f32(1e-6)}
    ''')

def addv(g, dst, x, y, n):
    if Opt.pk:
        for i in range(0, n, 2): g.e(f'v_pk_add_f32 {vr(dst+i,2)}, {vr(x+i,2)}, {vr(y+i,2)}')
    else:
        for i in range(n): g.e(f'v_add_f32 v{dst+i}, v{x+i}, v{y+i}')

def pack(g, dst, r0, r1):
    g.e(f'''
    v_cvt_pk_bf16_f32 v{dst}, v{r0}, v{r0+1}
    v_cvt_pk_bf16_f32 v{dst+1}, v{r0+2}, v{r0+3}
    v_cvt_pk_bf16_f32 v{dst+2}, v{r1}, v{r1+1}
    v_cvt_pk_bf16_f32 v{dst+3}, v{r1+2}, v{r1+3}
    ''')

MF = 'v_mfma_f32_16x16x32_bf16'

def gen():
    g = G(); a = g.a; e = g.e
    a.raw('.amdgcn_target "amdgcn-amd-amdhsa--gfx950"\n.text')
    a.raw(f'.globl {KNAME}\n.p2align 8\n.type {KNAME},@function\n{KNAME}:')
    if Opt.stamp:
        e('s_memrealtime s[98:99]\ns_memtime s[94:95]')
    if Opt.hold >= 0:
        e('s_memrealtime s[94:95]')
    e(f'''
    s_cmp_ge_u32 s2, 256
    s_cbranch_scc1 L_EXIT
    s_load_dwordx2 s[{SX}:{SX+1}], s[0:1], 0
    s_load_dwordx2 s[{SQ}:{SQ+1}], s[0:1], 8
    s_load_dwordx2 s[{SI}:{SI+1}], s[0:1], 32
    s_load_dwordx2 s[{SWS}:{SWS+1}], s[0:1], 80
    s_load_dwordx2 s[{SSP}:{SSP+1}], s[0:1], 40
    s_load_dwordx2 s[{SBS}:{SBS+1}], s[0:1], 48
    s_load_dwordx2 s[{SWO}:{SWO+1}], s[0:1], 16
    s_load_dwordx2 s[{SWT}:{SWT+1}], s[0:1], 56
    s_load_dwordx2 s[{SOUT}:{SOUT+1}], s[0:1], 64
    v_lshrrev_b32 v1, 6, v0
    v_and_b32 v0, 63, v0
    v_readfirstlane_b32 s{sW}, v1
    ''')
    for b, sz in ((SX, 2048*896), (SQ, 448*2688), (SI, 448*3584), (SWS, WS_SIZE), (SSP, 2048*4096), (SBS, 4096),
                  (SWO, 448*896), (SWT, 896*896), (SOUT, 2048*896)):
        e(f's_mov_b32 s{b+2}, {sz}\ns_mov_b32 s{b+3}, 0x20000')
    e(f'''
    s_and_b32 s47, s2, 3
    s_lshl_b32 s47, s47, 3
    s_bfe_u32 s48, s2, 0x30003
    s_add_u32 s{sRB}, s47, s48
    s_and_b32 s47, s2, 4
    s_lshr_b32 s48, s2, 6
    s_add_u32 s{sJ}, s47, s48
    s_mul_i32 s{sREG}, s{sW}, {REG}
    v_lshrrev_b32 v2, 3, v0
    v_and_b32 v3, 7, v0
    ''')
    if Opt.stamp:
        e('v_mov_b32 v15, 0')
    e(f'''
    s_cmp_eq_u32 s{sJ}, 7
    s_cbranch_scc1 L_ATT
    v_mul_u32_u24 v4, 896, v2
    v_lshl_add_u32 v4, v3, 4, v4
    s_lshl_b32 s47, s{sRB}, 3
    s_add_u32 s47, s47, s{sW}
    s_mul_i32 s47, s47, {8*896}
    s_bfe_u32 s{sCB}, s{sW}, 0x10001
    s_and_b32 s{sKH}, s{sW}, 1
    s_movk_i32 s48, 3584
    s_cmp_lt_u32 s{sW}, 4
    s_cselect_b32 s48, s48, 2688
    s_waitcnt lgkmcnt(0)
    ''')
    XR = 16
    for i in range(7):
        g.v(f'buffer_load_dwordx4 {vr(XR+4*i,4)}, v4, {S(SX)}, s47 offen offset:{i*128}', 'x')
    e(f's_load_dword s{sTAG}, s[{SWS}:{SWS+1}], {EPOCH_OFF}')
    e(f'''
    v_and_b32 v5, 3, v2
    v_lshrrev_b32 v6, 2, v2
    v_lshl_add_u32 v5, v6, 3, v5
    v_mul_lo_u32 v5, v5, s48
    v_and_b32 v6, 6, v2
    v_xor_b32 v6, v6, v3
    v_lshl_add_u32 v1, v6, 4, v5
    v_mov_b32 v12, v2
    v_mov_b32 v13, v3
    s_lshl_b32 s49, s48, 2
    s_sub_u32 s49, s49, 1024
    s_lshl_b32 s50, s48, 4
    s_sub_u32 s50, s50, 2048
    v_add_u32 v2, s49, v1
    v_add_u32 v3, s50, v1
    v_add_u32 v4, s49, v3
    s_mul_i32 s49, s48, 32
    s_mul_i32 s49, s49, s{sKH}
    s_barrier
    s_cmp_ge_u32 s{sW}, 4
    s_cbranch_scc1 L_G1PRE
    ''')
    def unit_dma(srd, sbase, c, slot, stride, tag):
        its = [f's_add_u32 s61, s{sbase}, {c*64*stride}\ns_add_u32 m0, s{sREG}, {slot*4096}']
        L = []
        for b in range(4):
            pre = its[0] + '\n' if b == 0 else ''
            L.append((pre + f'buffer_load_dwordx4 v{1+b}, {S(srd)}, s61 offen offset:{b*1024} lds', tag))
        return L
    vmx = list(g.vm)
    e(f'''
    s_lshl_b32 s51, s{sJ}, 8
    s_lshl_b32 s52, s{sCB}, 7
    s_add_u32 s51, s51, s52
    s_add_u32 s51, s51, s49
    s_add_u32 s50, s51, 1792
    ''')
    for c in range(4):
        for it in unit_dma(SI, 50, c, c, 3584, f'u{c}'): g.item(it)
    g.wait('x')
    vm_g0 = list(g.vm)
    e('s_branch L_LN')
    a.label('L_G1PRE')
    g.vm = list(vmx)
    e(f'''
    s_lshl_b32 s51, s{sJ}, 7
    s_add_u32 s51, s51, s49
    s_mul_i32 s52, s{sCB}, 896
    s_add_u32 s50, s51, s52
    s_add_u32 s50, s50, 896
    s_mul_i32 s52, s{sCB}, {256*2688}
    s_add_u32 s51, s51, s52
    v_mov_b32 v14, 0
    v_and_b32 v5, 15, v0
    v_lshlrev_b32 v5, 2, v5
    v_add_u32 v5, {LF}, v5
    ds_write_b32 v5, v14
    ''')
    for it in unit_dma(SQ, 50, 0, 0, 2688, 'u0'): g.item(it)
    g.wait('x')
    vm_g1 = list(g.vm)
    a.label('L_LN')
    g.stamp(1)
    XF = 48
    for i in range(28):
        e(f'v_lshlrev_b32 v{XF+2*i}, 16, v{XR+i}')
        e(f'v_and_b32 v{XF+2*i+1}, 0xffff0000, v{XR+i}')
    AC = 104
    M = 112
    for jx in range(4):
        e(f'v_pk_add_f32 {vr(AC+2*jx,2)}, {vr(XF+2*jx,2)}, {vr(XF+8+2*jx,2)}')
    for i in range(8, 28):
        jx = i % 4
        e(f'v_pk_add_f32 {vr(AC+2*jx,2)}, {vr(AC+2*jx,2)}, {vr(XF+2*i,2)}')
    def red8(dst):
        e(f'''
        v_pk_add_f32 {vr(AC,2)}, {vr(AC,2)}, {vr(AC+2,2)}
        v_pk_add_f32 {vr(AC+4,2)}, {vr(AC+4,2)}, {vr(AC+6,2)}
        v_pk_add_f32 {vr(AC,2)}, {vr(AC,2)}, {vr(AC+4,2)}
        v_add_f32 v{dst}, v{AC}, v{AC+1}
        v_add_f32_dpp v{dst}, v{dst}, v{dst} quad_perm:[1,0,3,2] row_mask:0xf bank_mask:0xf
        v_add_f32_dpp v{dst}, v{dst}, v{dst} quad_perm:[2,3,0,1] row_mask:0xf bank_mask:0xf
        v_add_f32_dpp v{dst}, v{dst}, v{dst} row_half_mirror row_mask:0xf bank_mask:0xf
        ''')
    red8(M)
    e(f'v_mul_f32 v{M}, {f32(-1.0/448)}, v{M}\nv_mov_b32 v{M+1}, v{M}')
    for i in range(28):
        e(f'v_pk_add_f32 {vr(XF+2*i,2)}, {vr(XF+2*i,2)}, {vr(M,2)}')
    for jx in range(4):
        e(f'v_pk_mul_f32 {vr(AC+2*jx,2)}, {vr(XF+2*jx,2)}, {vr(XF+2*jx,2)}')
    for i in range(4, 28):
        jx = i % 4
        e(f'v_pk_fma_f32 {vr(AC+2*jx,2)}, {vr(XF+2*i,2)}, {vr(XF+2*i,2)}, {vr(AC+2*jx,2)}')
    red8(M)
    e(f'''
    v_mov_b32 v{M+2}, {f32(1e-5)}
    v_fmac_f32 v{M+2}, {f32(1.0/448)}, v{M}
    v_rsq_f32 v{M}, v{M+2}
    ''')
    e(f'''
    s_lshr_b32 s52, s{sW}, 2
    s_lshl_b32 s52, s52, 5
    s_and_b32 s53, s{sW}, 3
    s_lshl_b32 s53, s53, 2
    s_add_u32 s52, s52, s53
    v_lshrrev_b32 v6, 5, v0
    v_lshlrev_b32 v6, 4, v6
    v_and_b32 v7, 3, v12
    v_add3_u32 v6, v6, v7, s52
    v_lshlrev_b32 v7, 7, v6
    v_bfe_u32 v6, v6, 1, 3
    v_xor_b32 v6, v6, v13
    v_lshl_add_u32 v7, v6, 4, v7
    v_add_u32 v7, {XN0}, v7
    v_mov_b32 v{M+1}, v{M}
    ''')
    def slab_off(c): return (c >> 1) * REG + (c & 1) * 8192
    for i in range(7):
        for jx in range(4):
            k = 4 * i + jx
            e(f'v_pk_mul_f32 {vr(XF+2*k,2)}, {vr(XF+2*k,2)}, {vr(M,2)}')
        for jx in range(4):
            k = 4 * i + jx
            e(f'v_cvt_pk_bf16_f32 v{XR+k}, v{XF+2*k}, v{XF+2*k+1}')
        e(f'ds_write_b128 v7, {vr(XR+4*i,4)} offset:{slab_off(i)}')
    AA = 224
    e(f'''
    v_and_b32 v5, 15, v0
    v_lshrrev_b32 v6, 4, v0
    s_lshl_b32 s52, s{sKH}, 2
    v_add_u32 v6, s52, v6
    v_lshrrev_b32 v7, 1, v5
    v_xor_b32 v6, v6, v7
    v_lshlrev_b32 v6, 4, v6
    v_lshl_add_u32 v6, v5, 7, v6
    s_lshl_b32 s52, s{sKH}, 12
    s_add_u32 s53, s52, {XN0}
    s_sub_u32 s54, {XN0 + 4096}, s52
    v_add_u32 v{AA}, s53, v6
    v_add_u32 v{AA+1}, s54, v6
    v_add_u32 v{AA+2}, {2*REG}, v{AA}
    v_add_u32 v{AA+3}, {2*REG}, v{AA+1}
    ''')
    e(f'''
    v_bfe_u32 v6, v0, 2, 3
    v_lshrrev_b32 v7, 5, v0
    v_lshlrev_b32 v7, 11, v7
    v_lshl_add_u32 v7, v6, 7, v7
    v_and_b32 v5, 3, v0
    v_lshl_add_u32 v7, v5, 3, v7
    v_add_u32 v7, s{sREG}, v7
    v_lshrrev_b32 v6, 1, v6
    v_lshlrev_b32 v6, 5, v6
    ''')
    for t in range(4):
        e(f'v_xor_b32 v5, {t*32}, v6\nv_add_u32 v{8+t}, v7, v5')
    e(f'''
    v_lshlrev_b32 v5, 4, v0
    s_lshl_b32 s52, s{sW}, 2
    s_add_u32 s52, s52, {LF}
    v_mov_b32 v6, s52
    s_xor_b32 s52, s52, 4
    v_mov_b32 v7, s52
    s_add_u32 s52, s{sREG}, 8192
    v_add_u32 v12, s52, v5
    s_xor_b32 s53, s{sW}, 1
    s_mul_i32 s53, s53, {REG}
    s_add_u32 s53, s53, 8192
    v_add_u32 v13, s53, v5
    s_waitcnt lgkmcnt(0)
    s_add_u32 s{sTAG}, s{sTAG}, {TAGC}
    ''')
    g.stamp(2)
    e('s_barrier')
    g.stamp(3)
    AF = 16; ACC = 128; BF = 192; Y = 224
    def af(c, Tl): return AF + (c * 4 + Tl) * 4
    def acc(Tl, nt): return ACC + (Tl * 4 + nt) * 4
    def a_reads(c):
        return [f'ds_read_b128 {vr(af(c,Tl),4)}, v{AA + (2 if c >= 4 else 0) + (Tl>>1)} offset:{slab_off(c - (4 if c >= 4 else 0)) + (Tl&1)*2048}' for Tl in range(4)]
    def b_reads(k, slot):
        s = BF + 16 * (k & 1)
        return [f'ds_read_b64_tr_b16 {vr(s+4*t+2*h,2)}, v{8+t} offset:{slot*4096 + h*1024}' for t in range(4) for h in range(2)]
    def mfmas(k, c, orientD, first, order=(0, 1, 2, 3)):
        L = []
        s = BF + 16 * (k & 1)
        for Tl in order:
            for nt in range(4):
                xa = vr(af(c, Tl), 4); wb = vr(s + 4 * nt, 4); d = vr(acc(Tl, nt), 4)
                cc = '0' if first else d
                L.append(f'{MF} {d}, {xa}, {wb}, {cc}' if orientD else f'{MF} {d}, {wb}, {xa}, {cc}')
        return L
    def run_pass(units, orientD, dma_at, extra_reads={}, lgk={}, after={}, lastorder=(2, 3, 0, 1), pre_done=False):
        n = len(units)
        if not pre_done:
            g.wait('u0')
            for r in b_reads(0, 0): e(r)
        for k, c in enumerate(units):
            e(f's_waitcnt lgkmcnt({lgk.get(k, 0)})')
            M_ = mfmas(k, c, orientD, k == 0, lastorder if k == n - 1 else (0, 1, 2, 3))
            weave(g, M_[:4], dma_at.get(k, []))
            rd = []
            if k + 1 < n:
                if g.has(f'u{k+1}'): g.wait(f'u{k+1}')
                rd = b_reads(k + 1, (k + 1) % 4)
            pre, post = extra_reads.get(k, ([], []))
            rd = pre + rd + post
            weave(g, M_[4:], rd, per=(2 if len(rd) > 12 else 1))
            for it in after.get(k, []): g.item(it)
    def exchange2(dst, f0):
        for i in range(8):
            e(f'ds_write_b128 v12, {vr(ACC+32+4*i,4)} offset:{i*1024}')
        e('s_waitcnt lgkmcnt(0)')
        lds_flag(g, f0)
        lds_spin(g, f0)
        for i in range(8):
            e(f'ds_read_b128 {vr(ACC+32+4*i,4)}, v13 offset:{i*1024}')
        e('s_waitcnt lgkmcnt(4)')
        addv(g, dst, ACC, ACC + 32, 16)
        e('s_waitcnt lgkmcnt(0)')
        lds_flag(g, f0 + 1)
        addv(g, dst + 16, ACC + 16, ACC + 48, 16)
    def wsp_setup():
        e(f'''
        s_lshl_b32 s55, s{sRB}, 6
        s_lshr_b32 s57, s{sW}, 2
        s_lshl_b32 s57, s57, 5
        s_add_u32 s55, s55, s57
        s_bfe_u32 s57, s{sW}, 0x10001
        s_lshl_b32 s57, s57, 2
        s_add_u32 s55, s55, s57
        s_and_b32 s57, s{sW}, 1
        s_lshl_b32 s58, s57, 4
        s_add_u32 s55, s55, s58
        s_lshl_b32 s55, s55, 12
        s_lshl_b32 s57, s57, 2
        v_lshrrev_b32 v14, 4, v0
        v_add_u32 v14, s57, v14
        v_xor_b32 v14, v14, v0
        v_and_b32 v14, 7, v14
        v_lshlrev_b32 v14, 4, v14
        v_lshrrev_b32 v1, 5, v0
        v_lshl_add_u32 v14, v1, 15, v14
        v_bfe_u32 v1, v0, 3, 2
        v_lshl_add_u32 v1, v1, 12, v14
        ''')
        if Opt.rot:
            e(f's_and_b32 s56, s{sRB}, 7\ns_lshl_b32 s56, s56, 9')
        else:
            e('s_mov_b32 s56, 0')
    def wsp_dma(n):
        L = []
        for k in range(4):
            pre = f's_add_u32 s61, s56, {n*512}\ns_and_b32 s61, s61, 0xfff\ns_add_u32 s61, s61, s55\n' if k == 0 else ''
            L.append((pre + f's_add_u32 m0, s{sREG}, {((4*n+k) % 16)*1024 - 128*k}\n'
                      f'buffer_load_dwordx4 v1, {S(SSP)}, s61 offen offset:{128*k} lds', f'w{n}'))
        return L
    e(f's_cmp_ge_u32 s{sW}, 4\ns_cbranch_scc1 L_G1')
    g.vm = list(vm_g0)
    if Opt.prio: e('s_setprio 2')
    for r in a_reads(0): e(r)
    dz = {k: unit_dma(SI, 50, k + 4, k, 3584, f'u{k+4}') for k in range(3)}
    dz[4] = unit_dma(SI, 51, 0, 0, 3584, 'n0'); dz[5] = unit_dma(SI, 51, 1, 1, 3584, 'n1')
    run_pass(list(range(7)), True, dz,
             extra_reads={0: (a_reads(1), a_reads(2) + a_reads(3)), 1: ([], a_reads(4) + a_reads(5) + a_reads(6))},
             lgk={1: 8}, after={1: ['s_waitcnt lgkmcnt(0)', 's_barrier']})
    g.stamp(4)
    exchange2(Y, 1)
    g.stamp(5)
    CON = 176
    gelu_consts(g, CON)
    gelu(g, [Y + 2 * i for i in range(8)], BF, CON)
    lds_spin(g, 2)
    for c in (2, 3):
        for it in unit_dma(SI, 51, c, c, 3584, f'n{c}'): g.item(it)
    gelu(g, [Y + 16 + 2 * i for i in range(8)], BF, CON)
    SS = 160; QQ = 168
    def y(Tl, nt): return Y + (Tl * 4 + nt) * 4
    for Tl in range(2):
        for pr in range(2):
            s = SS + 4 * Tl + 2 * pr; q = QQ + 4 * Tl + 2 * pr
            yy = [y(Tl, nt) + 2 * pr for nt in range(4)]
            if Opt.pk:
                e(f'''
                v_pk_add_f32 {vr(s,2)}, {vr(yy[0],2)}, {vr(yy[1],2)}
                v_pk_mul_f32 {vr(q,2)}, {vr(yy[0],2)}, {vr(yy[0],2)}
                v_pk_add_f32 {vr(s,2)}, {vr(s,2)}, {vr(yy[2],2)}
                v_pk_fma_f32 {vr(q,2)}, {vr(yy[1],2)}, {vr(yy[1],2)}, {vr(q,2)}
                v_pk_add_f32 {vr(s,2)}, {vr(s,2)}, {vr(yy[3],2)}
                v_pk_fma_f32 {vr(q,2)}, {vr(yy[2],2)}, {vr(yy[2],2)}, {vr(q,2)}
                v_pk_fma_f32 {vr(q,2)}, {vr(yy[3],2)}, {vr(yy[3],2)}, {vr(q,2)}
                ''')
            else:
                for d in (0, 1):
                    e(f'''
                    v_add_f32 v{s+d}, v{yy[0]+d}, v{yy[1]+d}
                    v_mul_f32 v{q+d}, v{yy[0]+d}, v{yy[0]+d}
                    v_add_f32 v{s+d}, v{s+d}, v{yy[2]+d}
                    v_fmac_f32 v{q+d}, v{yy[1]+d}, v{yy[1]+d}
                    v_add_f32 v{s+d}, v{s+d}, v{yy[3]+d}
                    v_fmac_f32 v{q+d}, v{yy[2]+d}, v{yy[2]+d}
                    v_fmac_f32 v{q+d}, v{yy[3]+d}, v{yy[3]+d}
                    ''')
    O1 = BF; O2 = BF + 8
    for k, base in enumerate((SS, QQ)):
        for i in range(4):
            e(f'v_add_f32_dpp v{O1+4*k+i}, v{base+i}, v{base+i} row_ror:8 row_mask:0xf bank_mask:0x3')
        for i in range(4):
            e(f'v_add_f32_dpp v{O1+4*k+i}, v{base+4+i}, v{base+4+i} row_ror:8 row_mask:0xf bank_mask:0xc')
    for k in range(2):
        for i in range(2):
            e(f'v_add_f32_dpp v{O2+2*k+i}, v{O1+4*k+i}, v{O1+4*k+i} row_ror:12 row_mask:0xf bank_mask:0x5')
        for i in range(2):
            e(f'v_add_f32_dpp v{O2+2*k+i}, v{O1+4*k+2+i}, v{O1+4*k+2+i} row_ror:4 row_mask:0xf bank_mask:0xa')
    for i in range(4):
        e(f'v_add_f32_dpp v{O2+i}, v{O2+i}, v{O2+i} quad_perm:[1,0,3,2] row_mask:0xf bank_mask:0xf')
    for i in range(4):
        e(f'v_add_f32_dpp v{O2+i}, v{O2+i}, v{O2+i} quad_perm:[2,3,0,1] row_mask:0xf bank_mask:0xf')
    e(f'''
    s_mov_b32 s58, 0xaaaaaaaa
    s_mov_b32 s59, 0xaaaaaaaa
    s_mov_b32 vcc_lo, 0xcccccccc
    s_mov_b32 vcc_hi, 0xcccccccc
    v_cndmask_b32_e64 v{O1}, v{O2}, v{O2+1}, s[58:59]
    v_cndmask_b32_e64 v{O1+2}, v{O2+2}, v{O2+3}, s[58:59]
    v_cndmask_b32 v{O1}, v{O1}, v{O1+2}, vcc
    v_mov_b32 v{O1+1}, s{sTAG}
    v_lshrrev_b32 v{O1+2}, 2, v0
    v_lshlrev_b32 v{O1+2}, 5, v{O1+2}
    v_and_b32 v{O1+3}, 1, v0
    v_lshl_add_u32 v{O1+2}, v{O1+3}, 4, v{O1+2}
    v_bfe_u32 v{O1+3}, v0, 1, 1
    v_lshl_add_u32 v{O1+2}, v{O1+3}, 3, v{O1+2}
    s_lshl_b32 s52, s{sRB}, 1
    s_add_u32 s52, s52, s{sKH}
    s_mul_i32 s53, s52, {14*512}
    s_add_u32 s53, s53, {ST_OFF}
    s_lshl_b32 s54, s{sJ}, 1
    s_add_u32 s54, s54, s{sCB}
    s_lshl_b32 s57, s54, 9
    s_add_u32 s57, s57, s53
    ''')
    g.v(f'buffer_store_dwordx2 {vr(O1,2)}, v{O1+2}, {S(SWS)}, s57 offen sc1', 'st')
    g.stamp(6)
    g.vm = [t.replace('n', 'u') if t and t[0] == 'n' else t for t in g.vm]
    d1 = {k: unit_dma(SI, 51, k + 4, k, 3584, f'u{k+4}') for k in range(3)}
    STR = 16
    def stat_loads():
        L = []
        for n in range(7):
            pre = 's_add_u32 s57, s53, 4096\n' if n == 4 else ''
            L.append((pre + f'buffer_load_dwordx4 {vr(STR+4*n,4)}, v5, {S(SWS)}, s{53 if n < 4 else 57} offen offset:{(n%4)*1024} sc1', 'sl'))
        return L
    d1[3] = [wsp_setup]
    d1[4] = wsp_dma(0); d1[5] = wsp_dma(1); d1[6] = stat_loads()
    run_pass(list(range(7)), False, d1)
    g.stamp(7)
    for i in range(8):
        e(f'ds_write_b128 v12, {vr(ACC+32+4*i,4)} offset:{i*1024}')
    e('s_waitcnt lgkmcnt(0)')
    lds_flag(g, 3)
    LR = g.lab('SR'); LD = g.lab('SK')
    e('s_movk_i32 s62, 0x1000')
    g.wait('sl')
    a.label(LR)
    tg = [STR + 4 * n + d for n in range(7) for d in (1, 3)]
    for op, dst in (('max', 44), ('min', 45)):
        e(f'v_{op}3_u32 v{dst}, v{tg[0]}, v{tg[1]}, v{tg[2]}')
        for i in range(3, 13, 2):
            e(f'v_{op}3_u32 v{dst}, v{dst}, v{tg[i]}, v{tg[i+1]}')
        e(f'v_{op}_u32 v{dst}, v{dst}, v{tg[13]}')
    e(f'''
    v_xor_b32 v44, s{sTAG}, v44
    v_xor_b32 v45, s{sTAG}, v45
    v_or_b32 v44, v44, v45
    v_cmp_ne_u32 vcc, 0, v44
    s_nop 1
    s_cbranch_vccz {LD}
    s_sub_u32 s62, s62, 1
    s_cbranch_scc1 {LD}
    s_sleep 1
    ''')
    for it in stat_loads(): e(it[0])
    e(f's_waitcnt vmcnt(0)\ns_branch {LR}')
    a.label(LD)
    g.stamp(8)
    for d in (0, 2):
        r = STR + d
        e(f'''
        v_add_f32 v{r}, v{r}, v{r+4}
        v_add_f32 v{r+8}, v{r+8}, v{r+12}
        v_add_f32 v{r+16}, v{r+16}, v{r+20}
        v_add_f32 v{r}, v{r}, v{r+24}
        v_add_f32 v{r+8}, v{r+8}, v{r+16}
        v_add_f32 v{r}, v{r}, v{r+8}
        v_mov_b32 v{r+1}, v{r}
        ''')
    e(f'''
    v_permlane32_swap_b32 v{STR}, v{STR+1}
    v_permlane32_swap_b32 v{STR+2}, v{STR+3}
    v_add_f32 v{STR}, v{STR}, v{STR+1}
    v_add_f32 v{STR+2}, v{STR+2}, v{STR+3}
    v_mul_f32 v{STR}, {f32(1.0/896)}, v{STR}
    v_mul_f32 v{STR+2}, {f32(1.0/896)}, v{STR+2}
    v_fma_f32 v{STR+2}, -v{STR}, v{STR}, v{STR+2}
    v_max_f32 v{STR+2}, 0, v{STR+2}
    v_add_f32 v{STR+2}, {f32(1e-5)}, v{STR+2}
    v_rsq_f32 v{STR+2}, v{STR+2}
    s_lshl_b32 s57, s{sW}, 9
    s_add_u32 s57, s57, {LF + 256}
    v_lshl_add_u32 v{STR+4}, v0, 2, s57
    v_lshrrev_b32 v{STR+5}, 4, v0
    v_lshl_add_u32 v{STR+5}, v{STR+5}, 5, s57
    v_mul_f32 v{STR}, -v{STR}, v{STR+2}
    v_cmp_lt_u32 vcc, 31, v0
    v_cndmask_b32 v{STR}, v{STR+2}, v{STR}, vcc
    ds_write_b32 v{STR+4}, v{STR}
    s_waitcnt lgkmcnt(0)
    ds_read_b128 v[24:27], v{STR+5}
    ds_read_b128 v[28:31], v{STR+5} offset:16
    ds_read_b128 v[32:35], v{STR+5} offset:128
    ds_read_b128 v[36:39], v{STR+5} offset:144
    s_lshl_b32 s57, s54, 18
    s_lshl_b32 s58, s52, 11
    s_add_u32 s57, s57, s58
    s_add_u32 s57, s57, {Z2_OFF}
    s_add_u32 s58, s57, 0x20000
    s_waitcnt lgkmcnt(0)
    ''')
    for nt in range(4):
        for Tl in range(2):
            r = y(Tl, nt)
            if Opt.pk:
                for d in (0, 2):
                    e(f'v_pk_fma_f32 {vr(r+d,2)}, {vr(r+d,2)}, {vr(24+4*Tl+d,2)}, {vr(32+4*Tl+d,2)}')
            else:
                for d in range(4):
                    e(f'v_fma_f32 v{r+d}, v{r+d}, v{24+4*Tl+d}, v{32+4*Tl+d}')
        pack(g, 48 + 4 * nt, y(0, nt), y(1, nt))
        g.v(f'buffer_store_dwordx4 {vr(48+4*nt,4)}, v5, {S(SWS)}, s{57 + (nt>>1)} offen offset:{(nt&1)*1024} sc1', 'z2')
    g.stamp(9)
    lds_spin(g, 3)
    for i in range(8):
        e(f'ds_read_b128 {vr(ACC+32+4*i,4)}, v13 offset:{i*1024}')
    CON = 64
    gelu_consts(g, CON)
    e('s_waitcnt lgkmcnt(0)')
    lds_flag(g, 4)
    addv(g, ACC, ACC, ACC + 32, 32)
    gelu(g, [ACC + 2 * i for i in range(8)], BF, CON)
    lds_spin(g, 4)
    for n in (2, 3):
        for it in wsp_dma(n): g.item(it)
    e(f'''
    s_lshl_b32 s57, s{sJ}, 5
    s_add_u32 s57, s57, s{sRB}
    s_mul_i32 s57, s57, {FS}
    s_add_u32 s57, s57, {FZ_OFF}
    ''')
    g.wait('z2')
    wgflag(g, 0, 4, 57, 44)
    g.stamp(10)
    gelu(g, [ACC + 16 + 2 * i for i in range(8)], BF, CON)
    for Tl in range(2):
        for v_ in range(2):
            d = 68 + (Tl * 2 + v_) * 4
            pack(g, d, acc(Tl, 2 * v_), acc(Tl, 2 * v_ + 1))
            e(f'ds_write_b128 v12, {vr(d,4)} offset:{8192 + (Tl*2+v_)*1024}')
    if Opt.prio: e('s_setprio 0')
    g.stamp(11)
    e('s_branch L_PB')
    a.label('L_G1')
    g.vm = list(vm_g1)
    for c in range(7):
        for r in a_reads(c): e(r)
        if c in (2, 5): e('s_waitcnt lgkmcnt(4)')
    g.wait('u0')
    e('s_waitcnt lgkmcnt(4)')
    for r in b_reads(0, 0): e(r)
    e('s_waitcnt lgkmcnt(0)\ns_barrier')
    for c in (1, 2, 3):
        for it in unit_dma(SQ, 50, c, c, 2688, f'u{c}'): g.item(it)
    dk = {k: unit_dma(SQ, 50, k + 4, k, 2688, f'u{k+4}') for k in range(3)}
    dk[4] = unit_dma(SQ, 51, 0, 0, 2688, 'n0'); dk[5] = unit_dma(SQ, 51, 1, 1, 2688, 'n1')
    run_pass(list(range(7)), True, dk, pre_done=True)
    g.stamp(4)
    exchange2(ACC, 1)
    g.stamp(5)
    CON = 176
    phi_consts(g, CON)
    e(f'''
    s_lshl_b32 s52, s{sRB}, 1
    s_add_u32 s52, s52, s{sKH}
    s_lshl_b32 s53, s{sJ}, 18
    s_lshl_b32 s54, s52, 10
    s_add_u32 s53, s53, s54
    s_mul_i32 s54, s{sCB}, {VD_OFF - KD_OFF}
    s_add_u32 s53, s53, s54
    s_add_u32 s53, s53, {KD_OFF}
    s_lshl_b32 s54, s{sJ}, 5
    s_add_u32 s54, s54, s{sRB}
    s_mul_i32 s54, s54, {FS}
    s_add_u32 s54, s54, {FK_OFF}
    s_cmp_eq_u32 s{sCB}, 1
    s_cbranch_scc1 L_G1V
    ''')
    vm_kv = list(g.vm)
    for cbv in (0, 1):
        if cbv == 1:
            a.label('L_G1V'); a.fence(2)
            g.vm = list(vm_kv)
        units = [0, 1, 2, 3] if cbv == 0 else [4, 5, 6]
        if cbv == 0:
            phi(g, [ACC + 2 * i for i in range(8)], BF, CON)
        lds_spin(g, 2)
        for c in range(2, len(units)):
            for it in unit_dma(SQ, 51, c, c, 2688, f'n{c}'): g.item(it)
        if cbv == 0:
            phi(g, [ACC + 16 + 2 * i for i in range(8)], BF, CON)
        for nt in range(4):
            pack(g, Y + 4 * nt, acc(0, nt), acc(1, nt))
            g.v(f'buffer_store_dwordx4 {vr(Y+4*nt,4)}, v5, {S(SWS)}, s53 offen sc1', 'kv')
            if nt < 3: e('s_add_u32 s53, s53, 0x10000')
        g.stamp(6)
        g.vm = [t.replace('n', 'u') if t and t[0] == 'n' else t for t in g.vm]
        keep = cbv
        order = tuple(t for t in (2, 3, 1 - keep, keep))
        run_pass(units, False, {}, lastorder=order)
        g.stamp(7)
        e(f'''
        s_lshl_b32 s57, s{sKH}, 13
        s_add_u32 s58, s{sREG}, s57
        v_add_u32 v12, s58, v5
        s_xor_b32 s57, s57, 8192
        s_add_u32 s58, s{sREG}, s57
        v_add_u32 v13, s58, v5
        v_mov_b32 v7, {LF + 16}
        ''')
        for Tl in order[:3]:
            for nt in range(4):
                e(f'ds_write_b128 v{12 + (Tl>>1)}, {vr(acc(Tl,nt),4)} offset:{(Tl&1)*4096 + nt*1024}')
        g.wait('kv', 'lgkmcnt(0)')
        lds_flag(g, 3)
        wgflag(g, 1, 4, 54, 16)
        wsp_setup()
        e(f'''
        s_lshl_b32 s57, s{sKH}, 13
        s_add_u32 s57, s57, {keep*4096}
        ''')
        for x in (1, 2, 3):
            e(f'''
            s_xor_b32 s58, s{sW}, {x}
            s_mul_i32 s58, s58, {REG}
            s_add_u32 s58, s58, s57
            v_add_u32 v{8+x}, s58, v5
            ''')
        phi_consts(g, 64)
        lds_spin(g, 3, four=True)
        for x in (1, 2, 3):
            for nt in range(4):
                e(f'ds_read_b128 {vr(16+(x-1)*16+4*nt,4)}, v{8+x} offset:{nt*1024}')
        K = acc(keep, 0)
        e('s_waitcnt lgkmcnt(8)')
        addv(g, K, K, 16, 16)
        e('s_waitcnt lgkmcnt(0)')
        lds_flag(g, 4)
        addv(g, 32, 32, 48, 16)
        addv(g, K, K, 32, 16)
        phi(g, [K + 2 * i for i in range(8)], BF, 64)
        e(f'''
        s_lshl_b32 s52, s{sRB}, 2
        s_lshl_b32 s53, s{sKH}, 1
        s_add_u32 s52, s52, s53
        s_add_u32 s52, s52, {keep}
        s_mul_i32 s53, s52, 14336
        s_lshl_b32 s54, s{sJ}, 11
        s_add_u32 s53, s53, s54
        s_add_u32 s53, s53, {PQ_OFF}
        s_lshl_b32 s54, s{sJ}, 5
        s_add_u32 s54, s54, s{sRB}
        s_mul_i32 s54, s54, {FS}
        s_add_u32 s54, s54, {FQ_OFF}
        ''')
        for v_ in range(2):
            pack(g, 68 + 4 * v_, K + 8 * v_, K + 8 * v_ + 4)
            g.v(f'buffer_store_dwordx4 {vr(68+4*v_,4)}, v5, {S(SWS)}, s53 offen offset:{v_*1024} sc1', 'pq')
        lds_spin(g, 4, four=True)
        for n in range(4):
            for it in wsp_dma(n): g.item(it)
        g.wait('pq')
        wgflag(g, 2, 4, 54, 16)
        g.stamp(11)
        if cbv == 0: e('s_branch L_PB')
    a.label('L_PB'); a.fence(2)
    g.vm = []
    ZB = 16; BACC = 128; BA = 160; BS = 112; Z1R = 116; XRES = 124
    e(f'''
    s_and_b32 s{sCB}, s{sW}, 3
    s_lshr_b32 s{sKH}, s{sW}, 2
    s_mul_i32 s52, s{sJ}, {32*FS}
    s_add_u32 s52, s52, {FZ_OFF}
    v_and_b32 v2, 31, v0
    v_mul_u32_u24 v2, {FS}, v2
    s_lshl_b32 s47, s{sJ}, 2
    s_add_u32 s47, s47, s{sCB}
    s_lshl_b32 s48, s47, 17
    s_lshl_b32 s49, s{sKH}, 12
    s_add_u32 s48, s48, s49
    s_add_u32 s48, s48, {Z2_OFF}
    s_lshl_b32 s49, s56, 5
    v_add_u32 v6, 8192, v5
    ''')
    e(f'''
    v_bfe_u32 v3, v0, 2, 2
    v_lshlrev_b32 v3, 4, v3
    v_and_b32 v4, 3, v0
    v_lshl_add_u32 v3, v4, 1, v3
    s_lshl_b32 s53, s{sRB}, 7
    s_lshl_b32 s54, s{sKH}, 6
    s_add_u32 s53, s53, s54
    ''')
    for Tl in range(2):
        g.v(f'buffer_load_ushort v{BS+2*Tl}, v3, {S(SBS)}, s53 offen offset:{Tl*8}', 'b')
    e(f'''
    v_and_b32 v3, 15, v0
    v_lshrrev_b32 v4, 4, v0
    v_lshrrev_b32 v7, 1, v3
    v_xor_b32 v4, v4, v7
    v_lshlrev_b32 v4, 4, v4
    v_and_b32 v7, 7, v0
    v_lshl_add_u32 v4, v7, 7, v4
    v_lshrrev_b32 v3, 3, v3
    v_mul_u32_u24 v3, {REG}, v3
    v_add_u32 v4, v4, v3
    s_mul_i32 s53, s{sKH}, {4*REG + 1024}
    s_mul_i32 s54, s{sKH}, {4*REG - 1024}
    s_sub_u32 s54, {4*REG}, s54
    v_add_u32 v8, s53, v4
    v_xor_b32 v9, 64, v8
    v_add_u32 v10, s54, v4
    v_xor_b32 v11, 64, v10
    ''')
    e(f'''
    v_lshrrev_b32 v3, 3, v0
    v_and_b32 v4, 6, v3
    v_xor_b32 v4, v4, v0
    v_and_b32 v4, 7, v4
    v_lshlrev_b32 v4, 4, v4
    v_mad_u32_u24 v12, v3, 896, v4
    s_cmp_eq_u32 s{sCB}, 3
    s_cselect_b32 s53, 3, 7
    v_and_b32 v3, s53, v3
    v_mad_u32_u24 v13, v3, 896, v4
    s_mul_i32 s50, s{sCB}, {8*896}
    s_lshl_b32 s53, s{sJ}, 7
    s_add_u32 s50, s50, s53
    s_mul_i32 s51, s{sKH}, {32*896}
    s_add_u32 s51, s51, s50
    s_mul_i32 s53, s{sKH}, {28*896}
    s_add_u32 s50, s50, s53
    ''' .replace('896, v4', 's60, v4').replace('v_lshrrev_b32 v3, 3, v0', 's_movk_i32 s60, 896\n    v_lshrrev_b32 v3, 3, v0'))
    def w3slot(yy): return yy if yy < 20 else yy - 16
    def w3_dma(yy):
        if yy < 8:
            t = f's_add_u32 s61, s50, {yy*56*896}\ns_add_u32 m0, s{sREG}, {w3slot(yy)*1024}\nbuffer_load_dwordx4 v13, {S(SWO)}, s61 offen lds'
        else:
            t = f's_add_u32 s61, s51, {(yy-8)*64*896}\ns_add_u32 m0, s{sREG}, {w3slot(yy)*1024}\nbuffer_load_dwordx4 v12, {S(SWT)}, s61 offen lds'
        return (t, f'y{yy}')
    def z_loads(n):
        r = ZB + (n % 3) * 32
        L = []
        for k in range(8):
            pre = f's_add_u32 s57, s49, {n*16384}\ns_and_b32 s57, s57, 0x1ffff\ns_add_u32 s57, s57, s48\n' if k == 0 else ''
            L.append((pre + f'buffer_load_dwordx4 {vr(r+4*k,4)}, v{5 + k//4}, {S(SWS)}, s57 offen offset:{(k%4)*1024} sc1', f'z{n}_{k//2}'))
        return L
    g.stamp(12)
    poll1(g, 2, 52)
    g.stamp(13)
    e('s_waitcnt lgkmcnt(0)\ns_barrier')
    for n in (0, 1):
        for it in z_loads(n): g.item(it)
    g.stamp(14)
    e(f'''
    s_lshr_b32 s53, s{sCB}, 1
    s_lshl_b32 s53, s53, 1
    s_add_u32 s53, s53, s{sKH}
    s_mul_i32 s53, s53, {REG}
    s_and_b32 s54, s{sCB}, 1
    s_lshl_b32 s54, s54, 10
    s_add_u32 s53, s53, s54
    v_add_u32 v3, s53, v5
    ds_read_b128 {vr(Z1R,4)}, v3 offset:16384
    ds_read_b128 {vr(Z1R+4,4)}, v3 offset:{16384+2048}
    ''')
    def bacc(ft, Tl): return BACC + (Tl * 2 + ft) * 4
    def ba_reads(n, q):
        s = BA + 16 * (q & 1)
        slot = (4 * n + 2 * (q >> 1)) % 16
        return [f'ds_read_b128 {vr(s+4*Tl,4)}, v{8 + (Tl>>1)*2 + (q&1)} offset:{(Tl&1)*2*REG + slot*1024}' for Tl in range(4)]
    for r in ba_reads(0, 0): e(r)
    for n in range(8):
        sec = []
        if n >= 1:
            if n - 1 < 4: sec += wsp_dma(n + 3)
            else: sec += [w3_dma(yy) for yy in range(4 * (n - 5), 4 * (n - 5) + 4)]
        if n + 2 < 8: sec += z_loads(n + 2)
        if n == 7:
            pass
        per = (len(sec) + 3) // 4
        for q in range(4):
            g.wait(f'z{n}_{q}', 'lgkmcnt(0)')
            s = BA + 16 * (q & 1)
            zr = ZB + (n % 3) * 32 + q * 8
            order = (2, 3, 0, 1) if (n == 7 and q == 3) else (0, 1, 2, 3)
            M_ = [f'{MF} {vr(bacc(ft,Tl),4)}, {vr(zr+4*ft,4)}, {vr(s+4*Tl,4)}, {"0" if (n == 0 and q == 0) else vr(bacc(ft,Tl),4)}'
                  for Tl in order for ft in range(2)]
            nxt = ba_reads(n, q + 1) if q < 3 else (ba_reads(n + 1, 0) if n < 7 else [])
            mine = sec[q * per:(q + 1) * per]
            weave(g, M_[:4], nxt)
            weave(g, M_[4:], mine)
        if n < 7:
            if g.has(f'w{n+2}'): g.wait(f'w{n+2}')
            e('s_barrier')
        g.stamp(15 + n)
    e(f'''
    s_add_u32 s53, s{sREG}, 16384
    v_add_u32 v3, s53, v5
    s_xor_b32 s54, s{sW}, 4
    s_mul_i32 s54, s54, {REG}
    s_add_u32 s54, s54, 16384
    v_add_u32 v4, s54, v5
    ''')
    for i in range(4):
        e(f'ds_write_b128 v3, {vr(BACC+16+4*i,4)} offset:{i*1024}')
    UT = 16
    for Tl in range(2):
        e(f'v_lshlrev_b32 v{BS+2*Tl}, 16, v{BS+2*Tl}\nv_mov_b32 v{BS+2*Tl+1}, v{BS+2*Tl}')
        for jx in range(4):
            e(f'v_lshlrev_b32 v{UT+8*Tl+2*jx}, 16, v{Z1R+4*Tl+jx}')
            e(f'v_and_b32 v{UT+8*Tl+2*jx+1}, 0xffff0000, v{Z1R+4*Tl+jx}')
    for Tl in range(2):
        for jx in range(4):
            r = BACC + 8 * Tl + 2 * jx
            e(f'v_pk_add_f32 {vr(r,2)}, {vr(r,2)}, {vr(BS+2*Tl,2)}')
    if g.has('y7'): g.wait('y7', 'lgkmcnt(0)')
    else: e('s_waitcnt lgkmcnt(0)')
    e('s_barrier')
    for i in range(4):
        e(f'ds_read_b128 {vr(BACC+16+4*i,4)}, v4 offset:{i*1024}')
    e(f'''
    s_lshl_b32 s53, s{sRB}, 2
    s_lshl_b32 s54, s{sKH}, 1
    s_add_u32 s53, s53, s54
    s_mul_i32 s53, s53, 44
    s_add_u32 s53, s53, s47
    s_lshl_b32 s53, s53, 10
    s_add_u32 s53, s53, {ACT_OFF + 16*1024}
    s_add_u32 s54, s53, {44*1024}
    s_waitcnt lgkmcnt(0)
    ''')
    for Tl in range(2):
        for jx in range(4):
            r = BACC + 8 * Tl + 2 * jx
            e(f'v_pk_add_f32 {vr(r,2)}, {vr(r,2)}, {vr(r+16,2)}')
        for jx in range(4):
            r = BACC + 8 * Tl + 2 * jx
            e(f'v_pk_mul_f32 {vr(r,2)}, {vr(r,2)}, {vr(UT+8*Tl+2*jx,2)}')
        pack(g, Z1R + 4 * Tl, BACC + 8 * Tl, BACC + 8 * Tl + 4)
        g.v(f'buffer_store_dwordx4 {vr(Z1R+4*Tl,4)}, v5, {S(SWS)}, s{53+Tl} offen sc1', 'U')
    for yy in range(12, 16): g.item(w3_dma(yy))
    if g.has('y11'): g.wait('y11')
    e('s_barrier')
    for yy in range(16, 20): g.item(w3_dma(yy))
    e(f'''
    s_mul_i32 s52, s{sRB}, {8*FS}
    s_add_u32 s52, s52, {FU_OFF}
    s_mul_i32 s54, s{sJ}, {FS}
    s_add_u32 s54, s54, s52
    s_lshr_b32 s53, s{sRB}, 1
    s_mul_i32 s53, s53, {16*FS}
    s_add_u32 s53, s53, {FO_OFF}
    v_and_b32 v3, 15, v0
    v_mul_u32_u24 v3, {FS}, v3
    v_min_u32 v4, 6, v0
    v_mul_u32_u24 v4, {FS}, v4
    s_lshl_b32 s48, s{sRB}, 2
    s_add_u32 s48, s48, s{sCB}
    s_mul_i32 s48, s48, 44
    s_add_u32 s48, s48, s{sKH}
    s_lshl_b32 s48, s48, 10
    s_add_u32 s48, s48, {ACT_OFF}
    ''')
    g.wait('U')
    e('s_barrier')
    g.stamp(23)
    poll1(g, 3, 53, flag=54)
    e('s_barrier')
    g.stamp(24)
    CF = 16; CACC = 128; CW = 160
    def act_load(yy):
        pre = f's_add_u32 s57, s48, {yy*2048}\n' if yy % 2 == 0 else ''
        return (pre + f'buffer_load_dwordx4 {vr(CF+4*yy,4)}, v5, {S(SWS)}, s57 offen offset:{(yy%2)*2048} sc1', f'a{yy}')
    for yy in range(8): g.item(act_load(yy))
    e(f'''
    v_lshrrev_b32 v6, 5, v0
    v_lshlrev_b32 v6, 3, v6
    v_bfe_u32 v7, v0, 3, 2
    v_add_u32 v6, v6, v7
    v_mul_u32_u24 v6, 896, v6
    v_and_b32 v7, 7, v0
    v_lshl_add_u32 v6, v7, 4, v6
    s_lshr_b32 s49, s55, 12
    s_mul_i32 s49, s49, 896
    s_lshl_b32 s57, s{sJ}, 7
    s_add_u32 s49, s49, s57
    ''')
    g.v(f'buffer_load_dwordx4 {vr(XRES,4)}, v6, {S(SX)}, s49 offen', 'xr')
    e(f'''
    v_bfe_u32 v2, v0, 2, 3
    v_lshrrev_b32 v7, 5, v0
    v_mul_u32_u24 v7, {REG}, v7
    v_lshl_add_u32 v7, v2, 7, v7
    v_and_b32 v3, 3, v0
    v_lshl_add_u32 v7, v3, 3, v7
    s_mul_i32 s57, s{sKH}, {4*REG}
    v_add_u32 v7, s57, v7
    v_lshrrev_b32 v2, 1, v2
    v_lshlrev_b32 v2, 5, v2
    ''')
    for t in range(4):
        e(f'v_xor_b32 v3, {t*32}, v2\nv_add_u32 v{8+t}, v7, v3')
    def cw_reads(yy):
        s = CW + 16 * (yy & 1)
        return [f'ds_read_b64_tr_b16 {vr(s+4*t+2*h,2)}, v{8+t} offset:{h*2*REG + w3slot(yy)*1024}' for t in range(4) for h in range(2)]
    def c_part(y0, y1):
        for r in cw_reads(y0): e(r)
        for yy in range(y0, y1):
            g.wait(f'a{yy}', 'lgkmcnt(0)')
            s = CW + 16 * (yy & 1)
            M_ = [f'{MF} {vr(CACC+4*nt,4)}, {vr(s+4*nt,4)}, {vr(CF+4*yy,4)}, {"0" if yy == 0 else vr(CACC+4*nt,4)}' for nt in range(4)]
            weave(g, M_, cw_reads(yy + 1) if yy + 1 < y1 else [], per=2)
    c_part(0, 8)
    e('s_barrier')
    g.stamp(25)
    for yy in (20, 21): g.item(w3_dma(yy))
    poll1(g, 4, 52)
    e('s_barrier')
    g.stamp(26)
    for yy in range(8, 22): g.item(act_load(yy))
    c_part(8, 22)
    g.stamp(27)
    e(f'''
    v_and_b32 v2, 15, v0
    v_lshrrev_b32 v3, 4, v0
    v_xor_b32 v3, v3, v2
    v_lshlrev_b32 v3, 4, v3
    v_lshl_add_u32 v3, v2, 8, v3
    v_add_u32 v3, s{sREG}, v3
    ''')
    for nt in range(4):
        e(f'v_xor_b32 v{8+nt}, {nt*64}, v3')
    for nt in range(4):
        e(f'ds_write_b128 v{8+nt}, {vr(CACC+4*nt,4)}')
    e(f'''
    s_and_b32 s57, s{sW}, 1
    s_lshl_b32 s57, s57, 3
    v_lshrrev_b32 v2, 3, v0
    v_add_u32 v2, s57, v2
    v_and_b32 v3, 7, v0
    v_lshlrev_b32 v3, 1, v3
    v_xor_b32 v3, v3, v2
    v_lshlrev_b32 v3, 4, v3
    v_lshl_add_u32 v3, v2, 8, v3
    s_lshr_b32 s57, s{sW}, 1
    s_mul_i32 s57, s57, {REG}
    v_add_u32 v3, s57, v3
    v_xor_b32 v4, 16, v3
    v_add_u32 v12, {4*REG}, v3
    v_add_u32 v13, {4*REG}, v4
    ''')
    for jx in range(4):
        e(f'v_lshlrev_b32 v{16+2*jx}, 16, v{XRES+jx}\nv_and_b32 v{17+2*jx}, 0xffff0000, v{XRES+jx}')
    e(f'''
    s_waitcnt lgkmcnt(0)
    s_barrier
    ds_read_b128 v[24:27], v3
    ds_read_b128 v[28:31], v4
    ds_read_b128 v[32:35], v12
    ds_read_b128 v[36:39], v13
    s_waitcnt lgkmcnt(2)
    ''')
    for jx in range(4):
        e(f'v_pk_add_f32 {vr(16+2*jx,2)}, {vr(16+2*jx,2)}, {vr(24+2*jx,2)}')
    e('s_waitcnt lgkmcnt(0)')
    for jx in range(4):
        e(f'v_pk_add_f32 {vr(16+2*jx,2)}, {vr(16+2*jx,2)}, {vr(32+2*jx,2)}')
    pack(g, 24, 16, 20)
    g.v(f'buffer_store_dwordx4 v[24:27], v6, {S(SOUT)}, s49 offen', 'out')
    e(f'''
    s_or_b32 s57, s{sRB}, s{sJ}
    s_or_b32 s57, s57, s{sW}
    s_cmp_lg_u32 s57, 0
    s_cbranch_scc1 L_END
    ''')
    e(f'v_lshlrev_b32 v2, 7, v0')
    for q in range(4):
        e(f's_mov_b32 s57, {FO_OFF + q*64*FS}')
        gpoll(g, 2, 57)
    e(f's_mov_b32 s57, {EPOCH_OFF}')
    gflag(g, 57)
    e('s_branch L_END')
    a.label('L_ATT'); a.fence(2)
    g.vm = []
    sH, sOFF, sT0 = 47, 48, 49
    e(f'''
    s_waitcnt lgkmcnt(0)
    s_load_dword s{sTAG}, s[{SWS}:{SWS+1}], {EPOCH_OFF}
    s_lshr_b32 s{sH}, s{sRB}, 1
    s_and_b32 s{sKH}, s{sRB}, 1
    s_mul_i32 s50, s{sH}, 7
    s_and_b32 s{sOFF}, s50, 3
    s_lshr_b32 s{sT0}, s50, 2
    v_lshlrev_b32 v5, 4, v0
    ''')
    if Opt.pf:
        e(f'''
        s_lshl_b32 s51, s{sRB}, 3
        s_add_u32 s51, s51, s{sW}
        s_lshl_b32 s51, s51, 15
        s_sleep 32
        ''')
        for i in range(32):
            e(f'buffer_load_dwordx4 {vr(16+4*i,4)}, v5, {S(SSP)}, s51 offen offset:{(i%4)*1024}')
            if i % 4 == 3: e('s_add_u32 s51, s51, 4096')
    e(f'''
    v_bfe_u32 v2, v0, 2, 2
    v_cmp_gt_u32 vcc, s{sOFF}, v2
    v_cndmask_b32_e64 v3, 0, 1, vcc
    v_add_u32 v3, s{sT0}, v3
    v_lshl_add_u32 v8, v3, 16, v5
    v_add_u32 v9, 0x10000, v8
    ''')
    e(f'''
    s_mul_i32 s50, s{sH}, 28
    s_lshr_b32 s51, s50, 6
    s_add_u32 s52, s50, 27
    s_lshr_b32 s52, s52, 6
    s_sub_u32 s52, s52, s51
    v_bfe_u32 v3, v0, 4, 1
    v_mul_u32_u24 v3, s52, v3
    v_add_u32 v3, s51, v3
    v_lshlrev_b32 v4, 5, v3
    v_and_b32 v7, 3, v0
    v_add_u32 v6, v4, v7
    v_mul_u32_u24 v6, {FS}, v6
    v_and_b32 v7, 1, v0
    v_add_u32 v4, v4, v7
    v_mul_u32_u24 v7, {FS}, v4
    s_mul_i32 s53, s{sW}, {4*FS}
    s_add_u32 s54, s53, {FK_OFF}
    s_mul_i32 s55, s{sKH}, {16*FS}
    s_mul_i32 s53, s{sW}, {2*FS}
    s_add_u32 s55, s55, s53
    s_add_u32 s55, s55, {FQ_OFF}
    s_lshl_b32 s56, s{sW}, 13
    s_add_u32 s57, s56, {VD_OFF}
    s_add_u32 s56, s56, {KD_OFF}
    s_waitcnt lgkmcnt(0)
    s_add_u32 s{sTAG}, s{sTAG}, {TAGC}
    ''')
    g.stamp(1)
    gpoll(g, 6, 54)
    g.stamp(2)
    KB = 16; VB = 80; QB = 144; KA = 176; ONE = 200
    for kk in range(8):
        if kk == 4: e('s_add_u32 s56, s56, 4096\ns_add_u32 s57, s57, 4096')
        for X in range(2):
            g.v(f'buffer_load_dwordx4 {vr(KB+(kk*2+X)*4,4)}, v{8+X}, {S(SWS)}, s56 offen offset:{(kk%4)*1024} sc1', f'k{kk}')
        for X in range(2):
            g.v(f'buffer_load_dwordx4 {vr(VB+(kk*2+X)*4,4)}, v{8+X}, {S(SWS)}, s57 offen offset:{(kk%4)*1024} sc1', f'k{kk}')
    for jx in range(4): e(f'v_mov_b32 v{ONE+jx}, 0x3f803f80')
    e(f'''
    v_lshrrev_b32 v2, 4, v0
    v_cmp_gt_u32 vcc, s{sOFF}, v2
    v_cndmask_b32_e64 v3, 0, 1, vcc
    v_add_u32 v3, s{sT0}, v3
    v_lshrrev_b32 v4, 1, v3
    v_lshl_add_u32 v10, v4, 10, v5
    v_and_b32 v4, 1, v3
    v_lshl_add_u32 v10, v4, 3, v10
    v_add_u32 v3, 1, v3
    v_lshrrev_b32 v4, 1, v3
    v_lshl_add_u32 v11, v4, 10, v5
    v_and_b32 v4, 1, v3
    v_lshl_add_u32 v11, v4, 3, v11
    s_add_u32 s50, s{sOFF}, 3
    s_and_b32 s50, s50, 3
    v_cmp_eq_u32 s[58:59], s50, v2
    v_bfe_u32 v3, v0, 2, 2
    v_cmp_eq_u32 s[60:61], s50, v3
    v_cndmask_b32_e64 v11, v11, v10, s[58:59]
    v_subrev_u32 v3, s{sOFF}, v2
    v_and_b32 v3, 3, v3
    v_lshlrev_b32 v3, 8, v3
    v_and_b32 v4, 15, v0
    v_lshl_add_u32 v12, v4, 4, v3
    ''')
    for kk in range(8):
        g.wait(f'k{kk}')
        for Xd in range(2):
            for Xe in range(3):
                d = vr(KA + (Xd * 3 + Xe) * 4, 4)
                b = vr(VB + (kk*2+Xe)*4, 4) if Xe < 2 else vr(ONE, 4)
                e(f'{MF} {d}, {vr(KB+(kk*2+Xd)*4,4)}, {b}, {"0" if kk == 0 else d}')
    e(f's_mul_i32 s50, s{sW}, 6144\nv_add_u32 v2, s50, v5')
    for i in range(6):
        e(f'ds_write_b128 v2, {vr(KA+4*i,4)} offset:{i*1024}')
    g.stamp(3)
    gpoll(g, 7, 55)
    g.stamp(4)
    e(f'''
    s_lshl_b32 s50, s{sKH}, 6
    s_lshl_b32 s51, s{sW}, 3
    s_add_u32 s50, s50, s51
    s_mul_i32 s51, s50, 14336
    s_add_u32 s51, s51, {PQ_OFF}
    s_mul_i32 s52, s50, 44
    s_add_u32 s52, s52, s{sH}
    s_lshl_b32 s52, s52, 10
    s_add_u32 s52, s52, {ACT_OFF}
    s_lshl_b32 s53, s50, 1
    s_add_u32 s53, s53, s{sH}
    s_mul_i32 s53, s53, {FS}
    s_add_u32 s53, s53, {FO_OFF}
    ''')
    for i in range(8):
        for X in range(2):
            g.v(f'buffer_load_dwordx2 {vr(QB+4*i+2*X,2)}, v{10+X}, {S(SWS)}, s51 offen sc1', f'q{i}')
        if i < 7: e('s_add_u32 s51, s51, 14336')
    e('s_waitcnt lgkmcnt(0)\ns_barrier')
    R = 16
    for hf in range(2):
        for w in range(4):
            for i in range(6):
                e(f'ds_read_b128 {vr(R+(w*6+i)*4,4)}, v5 offset:{(hf*4+w)*6144 + i*1024}')
            if w % 2 == 1: e('s_waitcnt lgkmcnt(0)')
        for i in range(12):
            e(f'v_pk_add_f32 {vr(R+2*i,2)}, {vr(R+2*i,2)}, {vr(R+24+2*i,2)}')
            e(f'v_pk_add_f32 {vr(R+48+2*i,2)}, {vr(R+48+2*i,2)}, {vr(R+72+2*i,2)}')
        for i in range(12):
            if hf == 0:
                e(f'v_pk_add_f32 {vr(KA+2*i,2)}, {vr(R+2*i,2)}, {vr(R+48+2*i,2)}')
            else:
                e(f'v_pk_add_f32 {vr(R+2*i,2)}, {vr(R+2*i,2)}, {vr(R+48+2*i,2)}')
                e(f'v_pk_add_f32 {vr(KA+2*i,2)}, {vr(KA+2*i,2)}, {vr(R+2*i,2)}')
    KF = 204
    for Xe in range(3):
        pack(g, KF + 4 * Xe, KA + Xe * 4, KA + (3 + Xe) * 4)
    for Xe in range(3):
        for jx in (2, 3):
            e(f'v_cndmask_b32_e64 v{KF+4*Xe+jx}, v{KF+4*Xe+jx}, 0, s[58:59]')
    for jx in range(4):
        e(f'v_cndmask_b32_e64 v{KF+4+jx}, v{KF+4+jx}, 0, s[60:61]')
    g.stamp(5)
    OB = 16
    for i in range(8):
        g.wait(f'q{i}')
        for Xe in range(3):
            e(f'{MF} {vr(OB+i*12+4*Xe,4)}, {vr(KF+4*Xe,4)}, {vr(QB+4*i,4)}, 0')
    for i in range(8):
        o = OB + i * 12
        e(f'v_add_f32 v{o+8}, {f32(1e-6)}, v{o+8}\nv_rcp_f32 v{o+8}, v{o+8}\nv_mov_b32 v{o+9}, v{o+8}')
        for p in range(4):
            e(f'v_pk_mul_f32 {vr(o+2*p,2)}, {vr(o+2*p,2)}, {vr(o+8,2)}')
        pack(g, QB + 4 * i, o, o + 4)
        g.v(f'buffer_store_dwordx4 {vr(QB+4*i,4)}, v12, {S(SWS)}, s52 offen sc1', 'o')
        if i < 7: e(f's_add_u32 s52, s52, {44*1024}')
    g.wait('o')
    gflag(g, 53)
    a.label('L_END')
    if Opt.hold >= 0:
        g.stamp(30)
        e('''
        L_HOLD:
        s_sleep 4
        s_memrealtime s[96:97]
        s_waitcnt lgkmcnt(0)
        s_sub_u32 s96, s96, s94
        s_cmp_lt_u32 s96, 6000
        s_cbranch_scc1 L_HOLD
        ''')
    if Opt.stamp:
        g.stamp(30)
        e('s_waitcnt vmcnt(0)')
        g.stamp(31)
        e(f'''
        s_memrealtime s[96:97]
        s_waitcnt lgkmcnt(0)
        v_writelane_b32 v15, s94, 0
        v_writelane_b32 v15, s98, 32
        v_writelane_b32 v15, s96, 33
        s_lshl_b32 s96, s2, 3
        s_add_u32 s96, s96, s{sW}
        s_lshl_b32 s96, s96, 8
        s_add_u32 s96, s96, {DBG_OFF}
        v_lshlrev_b32 v14, 2, v0
        buffer_store_dword v15, v14, {S(SWS)}, s96 offen
        ''')
    a.label('L_EXIT')
    e('s_endpgm')
    head = '; @launch grid=(256,1,1) block=(512,1,1) lds=163840\n'
    tail = f'''.section .rodata,"a"
.p2align 6
.amdhsa_kernel {KNAME}
  .amdhsa_next_free_vgpr 256
  .amdhsa_next_free_sgpr 102
  .amdhsa_accum_offset 256
  .amdhsa_group_segment_fixed_size 0
  .amdhsa_kernarg_size 88
  .amdhsa_user_sgpr_count 2
  .amdhsa_user_sgpr_kernarg_segment_ptr 1
  .amdhsa_system_sgpr_workgroup_id_x 1
.end_amdhsa_kernel
'''
    return head + a.text() + tail

if __name__ == '__main__':
    for o in sys.argv[2:]:
        k, _, v = o.partition('=')
        setattr(Opt, k, int(v) if v else True)
    open(sys.argv[1], 'w').write(gen())
```

```python
import sys, math
from asmlib import *

KNAME = 'parallel_sum__linear_attn_block__mixer_gmlp__prompt_kernel'
FS = 128
FZ_OFF = 0; FK_OFF = 0x8000; FU_OFF = 0x18000; FO_OFF = 0x20000
EPOCH_OFF = 0x40000
ST_OFF  = 0x80000
Z2_OFF  = 0x100000
KD_OFF  = 0x480000
VD_OFF  = 0x640000
PQ_OFF  = 0x800000
ACT_OFF = 0x9C0000
DBG_OFF = 0x1000000
WS_SIZE = 0x1100000
SL = 8192; NS = 19; MISC = NS * SL; XNS = 12
TAGC = 0x9E3779B9

LOG2E = 1.4426950408889634
GC0 = -2.0 * math.sqrt(2.0 / math.pi) * LOG2E
GC1 = GC0 * 0.044715

SX, SQ, SI, SWS, SSP, SBS, SWO, SWT, SOUT = 4, 8, 12, 16, 20, 24, 28, 32, 36
def S(b): return f's[{b}:{b+3}]'
sW, sRB, sJ, sTAG, sCQ, sKH, sW1K, sHB = 40, 41, 42, 43, 44, 45, 46, 47
sZB, sQB, sSP, sROT, sKS, sP = 48, 49, 50, 51, 52, 53
sO3, sU3, sZ2B, sACT, sXO = 54, 55, 56, 57, 58

class Opt:
    stamp = 0
    pk = 1
    rot = 1
    pf = 1
    slp = 8
    hold = -1
    sgi = 10
    sgc = 12
    sfz = 16
    spi = 19
    zd = 16
    iw3 = 20
    bal = 0

class G:
    def __init__(self):
        self.a = Asm(); self.vm = []; self.nl = 0
    def e(self, t): self.a.e(t)
    def v(self, text, tag=None):
        self.a.e(text); self.vm.append((tag, 1))
    def mark(self, tag): self.vm.append((tag, 0))
    def count(self, tag):
        idx = max(i for i, t in enumerate(self.vm) if t[0] == tag)
        return idx, sum(t[1] for t in self.vm[idx + 1:])
    def wait(self, tag, extra='', keep=False):
        if not self.has(tag):
            if extra: self.a.e(f's_waitcnt {extra}')
            return
        idx, n = self.count(tag)
        assert n <= 63, n
        self.a.e(f's_waitcnt vmcnt({n}) {extra}')
        if not keep: self.vm = self.vm[idx + 1:]
    def has(self, tag): return any(t[0] == tag for t in self.vm)
    def item(self, it):
        if callable(it): it()
        elif isinstance(it, tuple): self.v(it[0], it[1])
        else: self.e(it)
    def items(self, L):
        for it in L: self.item(it)
    def lab(self, p):
        self.nl += 1; return f'{p}_{self.nl}'
    def stamp(self, idx):
        if Opt.hold == idx:
            self.e('s_memrealtime s[94:95]\ns_waitcnt lgkmcnt(0)')
        if Opt.stamp:
            self.e(f's_memtime s[96:97]\ns_waitcnt lgkmcnt(0)\nv_writelane_b32 v15, s96, {idx}')

def spread(g, prim, sec):
    sec = list(sec); n = len(prim)
    for i, p in enumerate(prim):
        g.item(p)
        k = -(-len(sec) // (n - i))
        for _ in range(k): g.item(sec.pop(0))

class only:
    def __init__(self, g, w): self.g = g; self.w = w
    def __enter__(self):
        self.K = self.g.lab('OW')
        self.g.e(f's_cmp_lg_u32 s{sW}, {self.w}\ns_cbranch_scc1 {self.K}')
        self.h = list(self.g.a.hist)
    def __exit__(self, *a):
        self.g.a.fence(5); self.g.a.label(self.K); self.g.a.hist = self.h

def flag_store(g, soff):
    g.e(f's_mov_b64 exec, 1\nv_mov_b32 v14, s{sTAG}\nbuffer_store_dword v14, off, {S(SWS)}, s{soff} sc1\ns_mov_b64 exec, -1')

def poll_loop(g, voff, soff, reg=14, first=True):
    L = g.lab('PL'); D = g.lab('PD'); C = g.lab('PC')
    g.e('s_movk_i32 s62, 0x1000')
    if not first: g.e(f's_branch {C}')
    g.a.label(L)
    g.e(f'buffer_load_dword v{reg}, v{voff}, {S(SWS)}, s{soff} offen sc1\ns_waitcnt vmcnt(0)')
    g.a.label(C)
    g.e(f'''
    v_cmp_ne_u32 vcc, s{sTAG}, v{reg}
    s_nop 1
    s_cbranch_vccz {D}
    s_sleep {Opt.slp}
    s_sub_u32 s62, s62, 1
    s_cbranch_scc0 {L}
    ''')
    g.a.label(D)

CON = 252
def gelu_l(regs, T, pk):
    z = list(zip(regs, [T + 2 * i for i in range(len(regs))])); L = []
    if pk:
        L += [f'v_pk_mul_f32 {vr(t,2)}, {vr(x,2)}, {vr(x,2)}' for x, t in z]
        L += [f'v_pk_fma_f32 {vr(t,2)}, {vr(t,2)}, {vr(CON+2,2)}, {vr(CON,2)}' for x, t in z]
        L += [f'v_pk_mul_f32 {vr(t,2)}, {vr(t,2)}, {vr(x,2)}' for x, t in z]
    else:
        L += [f'v_mul_f32 v{t+d}, v{x+d}, v{x+d}' for x, t in z for d in (0, 1)]
        L += [f'v_fma_f32 v{t+d}, v{t+d}, v{CON+2}, v{CON}' for x, t in z for d in (0, 1)]
        L += [f'v_mul_f32 v{t+d}, v{t+d}, v{x+d}' for x, t in z for d in (0, 1)]
    L += [f'v_exp_f32 v{t+d}, v{t+d}' for x, t in z for d in (0, 1)]
    if pk: L += [f'v_pk_add_f32 {vr(t,2)}, {vr(t,2)}, 1.0 op_sel_hi:[1,0]' for x, t in z]
    else: L += [f'v_add_f32 v{t+d}, 1.0, v{t+d}' for x, t in z for d in (0, 1)]
    L += [f'v_rcp_f32 v{t+d}, v{t+d}' for x, t in z for d in (0, 1)]
    if pk: L += [f'v_pk_mul_f32 {vr(x,2)}, {vr(x,2)}, {vr(t,2)}' for x, t in z]
    else: L += [f'v_mul_f32 v{x+d}, v{x+d}, v{t+d}' for x, t in z for d in (0, 1)]
    return L

def phi_l(x0, n, T):
    r = range(n); L = []
    L += [f'v_mul_f32 v{T+i}, {f32(LOG2E)}, v{x0+i}' for i in r]
    L += [f'v_exp_f32_e64 v{T+i}, v{T+i} clamp' for i in r]
    L += [f'v_max_f32 v{x0+i}, 0, v{x0+i}' for i in r]
    L += [f'v_add_f32 v{x0+i}, v{x0+i}, v{T+i}' for i in r]
    L += [f'v_add_f32 v{x0+i}, {f32(1e-6)}, v{x0+i}' for i in r]
    return L

def pack_l(dst, r0, r1):
    return [f'v_cvt_pk_bf16_f32 v{dst}, v{r0}, v{r0+1}', f'v_cvt_pk_bf16_f32 v{dst+1}, v{r0+2}, v{r0+3}',
            f'v_cvt_pk_bf16_f32 v{dst+2}, v{r1}, v{r1+1}', f'v_cvt_pk_bf16_f32 v{dst+3}, v{r1+2}, v{r1+3}']
def lines(t): return [x.strip() for x in t.strip().split('\n') if x.strip()]

MF = 'v_mfma_f32_16x16x32_bf16'

def gen():
    g = G(); a = g.a; e = g.e
    a.raw('.amdgcn_target "amdgcn-amd-amdhsa--gfx950"\n.text')
    a.raw(f'.globl {KNAME}\n.p2align 8\n.type {KNAME},@function\n{KNAME}:')
    if Opt.stamp:
        e('s_memrealtime s[98:99]\ns_memtime s[94:95]')
    if Opt.hold >= 0:
        e('s_memrealtime s[94:95]')
    e(f'''
    s_cmp_ge_u32 s2, 256
    s_cbranch_scc1 L_EXIT
    s_load_dwordx2 s[{SX}:{SX+1}], s[0:1], 0
    s_load_dwordx2 s[{SI}:{SI+1}], s[0:1], 32
    s_load_dwordx2 s[{SQ}:{SQ+1}], s[0:1], 8
    s_load_dwordx2 s[{SWS}:{SWS+1}], s[0:1], 80
    s_load_dwordx2 s[{SSP}:{SSP+1}], s[0:1], 40
    s_load_dwordx2 s[{SBS}:{SBS+1}], s[0:1], 48
    s_load_dwordx2 s[{SWO}:{SWO+1}], s[0:1], 16
    s_load_dwordx2 s[{SWT}:{SWT+1}], s[0:1], 56
    s_load_dwordx2 s[{SOUT}:{SOUT+1}], s[0:1], 64
    v_lshrrev_b32 v1, 6, v0
    v_and_b32 v0, 63, v0
    v_readfirstlane_b32 s{sW}, v1
    ''')
    for b, sz in ((SX, 2048*896), (SQ, 448*2688), (SI, 448*3584), (SWS, WS_SIZE), (SSP, 2048*4096), (SBS, 4096),
                  (SWO, 448*896), (SWT, 896*896), (SOUT, 2048*896)):
        e(f's_mov_b32 s{b+2}, {sz}\ns_mov_b32 s{b+3}, 0x20000')
    e(f'''
    s_and_b32 s60, s2, 3
    s_lshl_b32 s60, s60, 3
    s_bfe_u32 s61, s2, 0x30003
    s_add_u32 s{sRB}, s60, s61
    s_and_b32 s60, s2, 4
    s_lshr_b32 s61, s2, 6
    ''')
    if Opt.bal:
        e(f'''
        s_lshr_b32 s63, s2, 3
        s_and_b32 s63, s63, 4
        s_cmp_eq_u32 s61, 3
        s_cselect_b32 s63, s63, 0
        s_xor_b32 s60, s60, s63
        ''')
    e(f'''
    s_add_u32 s{sJ}, s60, s61
    s_lshl_b32 s{sW1K}, s{sW}, 10
    v_lshrrev_b32 v12, 3, v0
    v_and_b32 v13, 7, v0
    v_lshlrev_b32 v5, 4, v0
    ''')
    if Opt.stamp:
        e('v_mov_b32 v15, 0')
    e(f'''
    s_cmp_eq_u32 s{sJ}, 7
    s_cbranch_scc1 L_ATT
    v_mul_u32_u24 v4, 896, v12
    v_lshl_add_u32 v4, v13, 4, v4
    s_lshl_b32 s60, s{sRB}, 3
    s_add_u32 s60, s60, s{sW}
    s_mul_i32 s60, s60, {8*896}
    s_and_b32 s{sCQ}, s{sW}, 3
    s_lshr_b32 s{sKH}, s{sW}, 2
    s_lshr_b32 s{sHB}, s{sCQ}, 1
    v_and_b32 v6, 3, v12
    v_lshrrev_b32 v7, 2, v12
    v_lshl_add_u32 v6, v7, 3, v6
    v_and_b32 v7, 6, v12
    v_xor_b32 v7, v7, v13
    v_lshlrev_b32 v7, 4, v7
    v_mul_u32_u24 v1, 3584, v6
    v_add_u32 v1, v1, v7
    v_mul_u32_u24 v2, 2688, v6
    v_add_u32 v2, v2, v7
    s_lshl_b32 s61, s{sKH}, 5
    s_lshl_b32 s63, s{sHB}, 4
    s_add_u32 s61, s61, s63
    s_and_b32 s63, s{sW}, 1
    s_lshl_b32 s63, s63, 2
    s_add_u32 s61, s61, s63
    s_mul_i32 s{sZB}, s61, 3584
    s_lshl_b32 s63, s{sJ}, 8
    s_add_u32 s{sZB}, s{sZB}, s63
    s_mul_i32 s{sQB}, s61, 2688
    s_lshl_b32 s63, s{sJ}, 7
    s_add_u32 s{sQB}, s{sQB}, s63
    s_waitcnt lgkmcnt(0)
    ''')
    XR = 16
    for i in range(7):
        g.v(f'buffer_load_dwordx4 {vr(XR+4*i,4)}, v4, {S(SX)}, s60 offen offset:{i*128}', f'x{i}')
    e(f's_load_dword s{sTAG}, s[{SWS}:{SWS+1}], {EPOCH_OFF}')
    blocks = []
    for s in range(7): blocks += [('z', 1792 + cb * 128, s) for cb in range(2)]
    for s in range(7): blocks += [('q', off, s) for off in (896, 1792, 0)]
    for s in range(7): blocks += [('z', cb * 128, s) for cb in range(2)]
    NW = len(blocks)
    blocks += [('s', i) for i in range(32)]
    N3 = len(blocks)
    blocks += [('y', yy) for yy in range(22)]
    free = list(range(XNS)); slot = {}; st = {'next': 0}
    def dma(n):
        b = blocks[n]; sl = free.pop(0); slot[n] = sl
        m0 = f's_add_u32 m0, s{sW1K}, {sl*SL}\n'
        if b[0] == 'z':
            t = f's_add_u32 s61, s{sZB}, {b[1] + b[2]*64*3584}\n{m0}buffer_load_dwordx4 v1, {S(SI)}, s61 offen lds'
        elif b[0] == 'q':
            t = f's_add_u32 s61, s{sQB}, {b[1] + b[2]*64*2688}\n{m0}buffer_load_dwordx4 v2, {S(SQ)}, s61 offen lds'
        elif b[0] == 's':
            t = (f's_add_u32 s61, s{sROT}, {b[1]*128}\ns_and_b32 s61, s61, 0xfff\ns_add_u32 s61, s61, s{sSP}\n{m0}'
                 f'buffer_load_dwordx4 v3, {S(SSP)}, s61 offen lds')
        elif b[1] < 8:
            t = f's_add_u32 s61, s{sO3}, {b[1]*56*896}\n{m0}buffer_load_dwordx4 v2, {S(SWO)}, s61 offen lds'
        else:
            t = f's_add_u32 s61, s{sU3}, {(b[1]-8)*64*896}\n{m0}buffer_load_dwordx4 v1, {S(SWT)}, s61 offen lds'
        return (t, f'b{n}')
    def dmas(limit, maxn=99):
        L = []
        while free and st['next'] < limit and len(L) < maxn:
            L.append(dma(st['next'])); st['next'] += 1
        return L
    def bwait(n, extra=''):
        assert n < st['next'], n
        g.wait(f'b{n}', extra)
    assert Opt.sgc <= 13
    e('s_barrier')
    g.items(dmas(N3))
    XF = 48; AC = 104; M = 108
    e(f's_mov_b32 s63, 0x3f803f80')
    for jx in range(4): e(f'v_mov_b32 v{AC+jx}, 0')
    e(f'''
    s_lshl_b32 s64, s{sKH}, 5
    s_lshl_b32 s65, s{sCQ}, 2
    s_add_u32 s64, s64, s65
    v_lshrrev_b32 v6, 5, v0
    v_lshlrev_b32 v6, 4, v6
    v_and_b32 v7, 3, v12
    v_add3_u32 v6, v6, v7, s64
    v_lshlrev_b32 v7, 7, v6
    v_bfe_u32 v6, v6, 1, 3
    v_xor_b32 v6, v6, v13
    v_lshl_add_u32 v7, v6, 4, v7
    v_add_u32 v112, {XNS*SL}, v7
    ''')
    e(f'''
    v_and_b32 v8, 15, v0
    v_lshrrev_b32 v6, 4, v0
    v_lshrrev_b32 v7, 1, v8
    v_xor_b32 v6, v6, v7
    v_lshlrev_b32 v6, 4, v6
    v_lshl_add_u32 v6, v8, 7, v6
    s_lshl_b32 s64, s{sKH}, 12
    s_add_u32 s64, s64, {XNS*SL}
    v_add_u32 v6, s64, v6
    v_xor_b32 v7, 64, v6
    ''')
    e(f'''
    v_bfe_u32 v9, v0, 2, 3
    v_lshrrev_b32 v10, 5, v0
    v_lshlrev_b32 v10, 11, v10
    v_lshl_add_u32 v10, v9, 7, v10
    v_and_b32 v8, 3, v0
    v_lshl_add_u32 v10, v8, 3, v10
    v_lshrrev_b32 v9, 1, v9
    v_lshlrev_b32 v9, 5, v9
    v_or_b32 v10, v10, v9
    s_and_b32 s64, s{sCQ}, 1
    s_lshl_b32 s64, s64, 6
    v_xor_b32 v8, s64, v10
    v_xor_b32 v9, 32, v8
    s_lshl_b32 s64, s{sCQ}, 5
    v_xor_b32 v10, s64, v10
    v_mov_b32 v{CON}, {f32(GC0)}
    v_mov_b32 v{CON+1}, {f32(GC0)}
    v_mov_b32 v{CON+2}, {f32(GC1)}
    v_mov_b32 v{CON+3}, {f32(GC1)}
    ''')
    e(f'''
    s_lshl_b32 s{sSP}, s{sRB}, 6
    s_lshl_b32 s64, s{sKH}, 5
    s_add_u32 s{sSP}, s{sSP}, s64
    s_lshl_b32 s64, s{sHB}, 2
    s_add_u32 s{sSP}, s{sSP}, s64
    s_and_b32 s64, s{sW}, 1
    s_lshl_b32 s65, s64, 4
    s_add_u32 s{sSP}, s{sSP}, s65
    s_mul_i32 s{sXO}, s{sSP}, 896
    s_lshl_b32 s65, s{sJ}, 7
    s_add_u32 s{sXO}, s{sXO}, s65
    s_lshl_b32 s{sSP}, s{sSP}, 12
    s_lshl_b32 s64, s64, 2
    v_lshrrev_b32 v14, 4, v0
    v_add_u32 v14, s64, v14
    v_xor_b32 v14, v14, v0
    v_and_b32 v14, 7, v14
    v_lshlrev_b32 v14, 4, v14
    v_lshrrev_b32 v3, 5, v0
    v_lshl_add_u32 v14, v3, 15, v14
    v_bfe_u32 v3, v0, 3, 2
    v_lshl_add_u32 v3, v3, 12, v14
    s_lshl_b32 s{sKS}, s{sRB}, 1
    s_add_u32 s{sKS}, s{sKS}, s{sKH}
    s_lshl_b32 s{sP}, s{sJ}, 2
    s_add_u32 s{sP}, s{sP}, s{sCQ}
    ''')
    if Opt.rot: e(f's_and_b32 s{sROT}, s{sRB}, 7\ns_lshl_b32 s{sROT}, s{sROT}, 9')
    else: e(f's_mov_b32 s{sROT}, 0')
    for i in range(7):
        g.wait(f'x{i}')
        if i == 0: g.stamp(1)
        for jx in range(4):
            k = 4 * i + jx
            e(f'v_dot2c_f32_bf16 v{AC+(jx&1)}, s63, v{XR+k}')
            e(f'v_dot2c_f32_bf16 v{AC+2+(jx&1)}, v{XR+k}, v{XR+k}')
        if i < 6:
            for jx in range(4):
                k = 4 * i + jx
                e(f'v_lshlrev_b32 v{XF+2*k}, 16, v{XR+k}\nv_and_b32 v{XF+2*k+1}, 0xffff0000, v{XR+k}')
    un = []
    for k in range(24, 28): un += [f'v_lshlrev_b32 v{XF+2*k}, 16, v{XR+k}', f'v_and_b32 v{XF+2*k+1}, 0xffff0000, v{XR+k}']
    e(un.pop(0)); e(un.pop(0))
    e(f'v_add_f32 v{AC}, v{AC}, v{AC+1}\nv_add_f32 v{AC+2}, v{AC+2}, v{AC+3}')
    for dp in ('quad_perm:[1,0,3,2]', 'quad_perm:[2,3,0,1]', 'row_half_mirror'):
        e(un.pop(0))
        e(f'v_add_f32_dpp v{AC}, v{AC}, v{AC} {dp} row_mask:0xf bank_mask:0xf')
        e(f'v_add_f32_dpp v{AC+2}, v{AC+2}, v{AC+2} {dp} row_mask:0xf bank_mask:0xf')
    e(f'''
    v_mul_f32 v{AC}, {f32(1.0/448)}, v{AC}
    v_mul_f32 v{AC+2}, {f32(1.0/448)}, v{AC+2}
    v_fma_f32 v{AC+2}, -v{AC}, v{AC}, v{AC+2}
    v_max_f32 v{AC+2}, 0, v{AC+2}
    v_add_f32 v{AC+2}, {f32(1e-5)}, v{AC+2}
    v_rsq_f32 v{M}, v{AC+2}
    ''')
    for u_ in un: e(u_)
    e(f'v_mul_f32 v{M+2}, -v{AC}, v{M}\nv_mov_b32 v{M+1}, v{M}\nv_mov_b32 v{M+3}, v{M+2}')
    for i in range(7):
        for jx in range(4):
            k = 4 * i + jx
            if Opt.pk: e(f'v_pk_fma_f32 {vr(XF+2*k,2)}, {vr(XF+2*k,2)}, {vr(M,2)}, {vr(M+2,2)}')
            else: e(f'v_fma_f32 v{XF+2*k}, v{XF+2*k}, v{M}, v{M+2}\nv_fma_f32 v{XF+2*k+1}, v{XF+2*k+1}, v{M}, v{M+2}')
        for jx in range(4):
            k = 4 * i + jx
            e(f'v_cvt_pk_bf16_f32 v{XR+k}, v{XF+2*k}, v{XF+2*k+1}')
        e(f'ds_write_b128 v112, {vr(XR+4*i,4)} offset:{i*SL}')
    g.wait('b3', 'lgkmcnt(0)')
    e(f's_add_u32 s{sTAG}, s{sTAG}, {TAGC}')
    g.stamp(2)
    e('s_barrier')
    g.stamp(3)
    AF = 16; BF = 128; Y = 176; A1 = 192; TM = 216
    def af(ks, Tl): return AF + (ks * 2 + Tl) * 4
    def kind(S_): return S_ // 7
    def sblocks(S_):
        p, s = divmod(S_, 7)
        return [2*s, 2*s+1] if p == 0 else ([14+3*s+i for i in range(3)] if p == 1 else [35+2*s, 36+2*s])
    def bf(S_, u, f): return BF + (S_ & 1) * 24 + (u * 3 + f) * 4
    def a_reads(s):
        return [f'ds_read_b128 {vr(af(2*s+u,Tl),4)}, v{6+u} offset:{s*SL + Tl*2048}' for u in range(2) for Tl in range(2)]
    def b_reads(S_):
        bl = sblocks(S_); L = []
        if kind(S_) == 1:
            for f in range(3): L.append(f'v_add_u32 v{11+f}, {slot[bl[f]]*SL}, v10')
            nf = 3
        else:
            o0, o1 = slot[bl[0]] * SL, slot[bl[1]] * SL
            L.append(f's_mul_i32 s64, s{sHB}, {o1-o0}\ns_add_u32 s64, s64, {o0}\nv_add_u32 v11, s64, v8\nv_add_u32 v12, s64, v9')
            nf = 2
        for u in range(2):
            for f in range(nf):
                for h in range(2):
                    L.append(f'ds_read_b64_tr_b16 {vr(bf(S_,u,f)+2*h,2)}, v{11+f} offset:{u*4096 + h*1024}')
        return L
    def y(Tl, f): return Y + (Tl * 2 + f) * 4
    def mfmas(S_):
        p, s = divmod(S_, 7); L = []
        for u in range(2):
            for f in range(3 if p == 1 else 2):
                for Tl in range(2):
                    d = vr(A1 + f * 8 + Tl * 4, 4) if p == 1 else vr(y(Tl, f), 4)
                    xa = vr(af(2*s+u, Tl), 4); wb = vr(bf(S_, u, f), 4)
                    cc = '0' if (s == 0 and u == 0) else d
                    od = (p == 0) or (p == 1 and f < 2)
                    L.append(f'{MF} {d}, {xa}, {wb}, {cc}' if od else f'{MF} {d}, {wb}, {xa}, {cc}')
        return L
    pre = {}; post = {}; fill = {S_: [] for S_ in range(21)}
    def stats_pub():
        with only(g, 0):
            e(f'''
            v_lshlrev_b32 v14, 3, v0
            v_add_u32 v14, {MISC}, v14
            ds_read_b64 v[{TM}:{TM+1}], v14
            ds_read_b64 v[{TM+2}:{TM+3}], v14 offset:512
            ds_read_b64 v[{TM+4}:{TM+5}], v14 offset:1024
            ds_read_b64 v[{TM+6}:{TM+7}], v14 offset:1536
            s_lshl_b32 s64, s{sRB}, 3
            s_add_u32 s64, s64, s{sJ}
            s_lshl_b32 s64, s64, 10
            s_add_u32 s64, s64, {ST_OFF}
            s_waitcnt lgkmcnt(0)
            v_pk_add_f32 v[{TM}:{TM+1}], v[{TM}:{TM+1}], v[{TM+2}:{TM+3}]
            v_pk_add_f32 v[{TM+4}:{TM+5}], v[{TM+4}:{TM+5}], v[{TM+6}:{TM+7}]
            v_mov_b32 v{TM+2}, s{sTAG}
            v_mov_b32 v{TM+3}, s{sTAG}
            v_pk_add_f32 v[{TM}:{TM+1}], v[{TM}:{TM+1}], v[{TM+4}:{TM+5}]
            buffer_store_dwordx4 v[{TM}:{TM+3}], v5, {S(SWS)}, s64 offen sc1
            ''')
    post[7] = [stats_pub]
    def stat_loads():
        e(f's_lshl_b32 s66, s{sRB}, 13\ns_add_u32 s66, s66, {ST_OFF}\ns_add_u32 s67, s66, 4096')
        for n in range(7):
            e(f'buffer_load_dwordx4 {vr(TM+4*n,4)}, v5, {S(SWS)}, s{66 if n < 4 else 67} offen offset:{(n%4)*1024} sc1')
    def stats_issue():
        with only(g, 1): stat_loads()
        g.mark('sl')
    post.setdefault(Opt.sgi, []).append(stats_issue)
    def stats_check():
        with only(g, 1):
            LR = g.lab('SR'); LD = g.lab('SK')
            e('s_movk_i32 s62, 0x1000')
            g.wait('sl', keep=True)
            a.label(LR)
            tg = [TM + 4 * n + d for n in range(7) for d in (2, 3)]
            for op, dst in (('max', 244), ('min', 245)):
                e(f'v_{op}3_u32 v{dst}, v{tg[0]}, v{tg[1]}, v{tg[2]}')
                for i in range(3, 13, 2): e(f'v_{op}3_u32 v{dst}, v{dst}, v{tg[i]}, v{tg[i+1]}')
                e(f'v_{op}_u32 v{dst}, v{dst}, v{tg[13]}')
            e(f'''
            v_xor_b32 v244, s{sTAG}, v244
            v_xor_b32 v245, s{sTAG}, v245
            v_or_b32 v244, v244, v245
            v_cmp_ne_u32 vcc, 0, v244
            s_nop 1
            s_cbranch_vccz {LD}
            s_sub_u32 s62, s62, 1
            s_cbranch_scc1 {LD}
            s_sleep 1
            ''')
            stat_loads()
            e(f's_waitcnt vmcnt(0)\ns_branch {LR}')
            a.label(LD)
            for d in (0, 1):
                r = TM + d
                e(f'''
                v_add_f32 v{r}, v{r}, v{r+4}
                v_add_f32 v{r+8}, v{r+8}, v{r+12}
                v_add_f32 v{r+16}, v{r+16}, v{r+20}
                v_add_f32 v{r}, v{r}, v{r+24}
                v_add_f32 v{r+8}, v{r+8}, v{r+16}
                v_add_f32 v{r}, v{r}, v{r+8}
                ''')
            e(f'''
            v_mul_f32 v{TM}, {f32(1.0/896)}, v{TM}
            v_mul_f32 v{TM+1}, {f32(1.0/896)}, v{TM+1}
            v_fma_f32 v{TM+1}, -v{TM}, v{TM}, v{TM+1}
            v_max_f32 v{TM+1}, 0, v{TM+1}
            v_add_f32 v{TM+1}, {f32(1e-5)}, v{TM+1}
            v_rsq_f32 v{TM+1}, v{TM+1}
            v_lshlrev_b32 v14, 2, v0
            v_add_u32 v14, {MISC + 2048}, v14
            v_mul_f32 v{TM}, -v{TM}, v{TM+1}
            ds_write2_b32 v14, v{TM+1}, v{TM} offset1:64
            s_waitcnt lgkmcnt(0)
            ''')
        g.stamp(6)
    pre.setdefault(Opt.sgc, []).append(stats_check)
    def norm_reads():
        e(f'''
        v_lshrrev_b32 v14, 4, v0
        v_lshlrev_b32 v14, 5, v14
        s_lshl_b32 s64, s{sKH}, 7
        s_add_u32 s64, s64, {MISC + 2048}
        v_add_u32 v14, s64, v14
        ds_read_b128 {vr(TM,4)}, v14
        ds_read_b128 {vr(TM+4,4)}, v14 offset:16
        ds_read_b128 {vr(TM+8,4)}, v14 offset:256
        ds_read_b128 {vr(TM+12,4)}, v14 offset:272
        s_lshl_b32 s{sZ2B}, s{sP}, 17
        s_add_u32 s{sZ2B}, s{sZ2B}, {Z2_OFF}
        s_lshl_b32 s66, s{sKS}, 11
        s_add_u32 s66, s66, s{sZ2B}
        s_lshl_b32 s64, s{sKH}, 11
        s_add_u32 s{sZ2B}, s{sZ2B}, s64
        ''')
    post.setdefault(Opt.sgc, []).append(norm_reads)
    nl = []
    for f in range(2):
        for Tl in range(2):
            nl += [f'v_fma_f32 v{y(Tl,f)+d}, v{y(Tl,f)+d}, v{TM+4*Tl+d}, v{TM+8+4*Tl+d}' for d in range(4)]
        nl += pack_l(TM + 16 + 4 * f, y(0, f), y(1, f))
        nl.append((f'buffer_store_dwordx4 {vr(TM+16+4*f,4)}, v5, {S(SWS)}, s66 offen offset:{f*1024} sc1', 'z2'))
    first = {Opt.sgc: nl}
    pre.setdefault(Opt.sfz, []).append(lambda: g.wait('z2'))
    def zflag():
        with only(g, 2):
            e(f's_lshl_b32 s64, s{sJ}, 5\ns_add_u32 s64, s64, s{sRB}\ns_lshl_b32 s64, s64, 7\ns_add_u32 s64, s64, {FZ_OFF}')
            flag_store(g, 64)
        g.stamp(8)
    post.setdefault(Opt.sfz, []).append(zflag)
    ep = lines(f'''
    s_lshl_b32 s68, s{sP}, 16
    s_lshl_b32 s69, s{sKS}, 10
    s_add_u32 s68, s68, s69
    s_add_u32 s68, s68, {VD_OFF}
    ''')
    ep += pack_l(TM + 8, A1 + 8, A1 + 12)
    ep.append((f'buffer_store_dwordx4 {vr(TM+8,4)}, v5, {S(SWS)}, s68 offen sc1', 'kv'))
    ep += phi_l(A1, 8, TM) + pack_l(TM + 12, A1, A1 + 4)
    ep.append((f's_sub_u32 s68, s68, {VD_OFF - KD_OFF}\nbuffer_store_dwordx4 {vr(TM+12,4)}, v5, {S(SWS)}, s68 offen sc1', 'kv'))
    ep += phi_l(A1 + 16, 8, TM) + pack_l(TM + 8, A1 + 16, A1 + 20)
    ep.append((f's_mul_i32 s68, s{sKS}, 28\ns_add_u32 s68, s68, s{sP}\ns_lshl_b32 s68, s68, 10\ns_add_u32 s68, s68, {PQ_OFF}\n'
               f'buffer_store_dwordx4 {vr(TM+8,4)}, v5, {S(SWS)}, s68 offen sc1', 'kv'))
    nst = 5
    per = -(-len(ep) // nst)
    for i in range(nst): fill[14 + i] += ep[i * per:(i + 1) * per]
    BS = 240
    fill[19] += lines(f'''
    v_bfe_u32 v14, v0, 2, 2
    v_lshlrev_b32 v14, 4, v14
    v_and_b32 v4, 3, v0
    v_lshl_add_u32 v14, v4, 1, v14
    s_lshl_b32 s68, s{sKS}, 6
    ''')
    fill[19] += [(f'buffer_load_ushort v{BS+2*Tl}, v14, {S(SBS)}, s68 offen offset:{Tl*8}', 'bs') for Tl in range(2)]
    PB = 246
    fill[20] += lines(f'''
    s_lshl_b32 s68, s{sKH}, 6
    v_xor_b32 v{PB}, s68, v6
    v_subrev_u32 v{PB}, {XNS*SL}, v{PB}
    v_xor_b32 v{PB+1}, 4096, v{PB}
    v_add_u32 v{PB+2}, {7*SL}, v{PB}
    v_add_u32 v{PB+3}, {7*SL}, v{PB+1}
    v_add_u32 v{PB+4}, {14*SL}, v{PB}
    v_add_u32 v{PB+5}, {14*SL}, v{PB+1}
    s_lshl_b32 s69, s{sROT}, 5
    ''')
    def zpoll_issue():
        with only(g, 3):
            e(f'''
            v_and_b32 v244, 31, v0
            v_lshlrev_b32 v244, 7, v244
            s_lshl_b32 s59, s{sJ}, 12
            s_add_u32 s59, s59, {FZ_OFF}
            buffer_load_dword v245, v244, {S(SWS)}, s59 offen sc1
            ''')
        g.mark('zp')
    g.items(a_reads(0) + b_reads(0))
    for S_ in range(21):
        if S_ == 0:
            e('s_waitcnt lgkmcnt(0)')
        else:
            nb = sblocks(min(S_ + 1, 20))[-1]
            bwait(nb, 'lgkmcnt(0)')
            g.items(pre.get(S_, []))
            e('s_barrier')
            fr = sblocks(S_) + (sblocks(0) if S_ == 1 else [])
            free.extend(slot[n] for n in sorted(fr))
            if S_ < 7: free.extend(([XNS] if S_ == 1 else []) + [XNS + S_])
            g.items(post.get(S_, []))
        if S_ in (7, 14): g.stamp(5 if S_ == 7 else 7)
        M_ = mfmas(S_)
        rd = []
        if S_ < 20: rd = b_reads(S_ + 1)
        if S_ < 6: rd += a_reads(S_ + 1)
        dm = dmas(N3)
        if S_ in first:
            g.items(M_[:2]); e('s_waitcnt lgkmcnt(0)')
            spread(g, M_[2:], first[S_][:13] + rd[:6] + first[S_][13:] + rd[6:] + dm + fill[S_])
        else:
            sec = []
            rd2 = list(rd)
            while rd2 or dm:
                sec += rd2[:4]; rd2 = rd2[4:]
                sec += dm[:1]; dm = dm[1:]
            spread(g, M_, sec + fill[S_])
        if S_ == Opt.spi: zpoll_issue()
        if S_ == 6:
            g.stamp(4)
            g.items(gelu_l([Y + 2 * i for i in range(8)], TM, Opt.pk))
            SS = TM + 16; QQ = TM + 24 - 0
            SS = 232; QQ = 240
            for Tl in range(2):
                for pr in range(2):
                    s_ = SS + 4 * Tl + 2 * pr; q_ = QQ + 4 * Tl + 2 * pr
                    y0 = y(Tl, 0) + 2 * pr; y1 = y(Tl, 1) + 2 * pr
                    if Opt.pk:
                        e(f'''
                        v_pk_add_f32 {vr(s_,2)}, {vr(y0,2)}, {vr(y1,2)}
                        v_pk_mul_f32 {vr(q_,2)}, {vr(y0,2)}, {vr(y0,2)}
                        v_pk_fma_f32 {vr(q_,2)}, {vr(y1,2)}, {vr(y1,2)}, {vr(q_,2)}
                        ''')
                    else:
                        for d in (0, 1):
                            e(f'v_add_f32 v{s_+d}, v{y0+d}, v{y1+d}\nv_mul_f32 v{q_+d}, v{y0+d}, v{y0+d}\nv_fmac_f32 v{q_+d}, v{y1+d}, v{y1+d}')
            O1 = TM; O2 = TM + 8
            for k, base in enumerate((SS, QQ)):
                for i in range(4):
                    e(f'v_add_f32_dpp v{O1+4*k+i}, v{base+i}, v{base+i} row_ror:8 row_mask:0xf bank_mask:0x3')
                for i in range(4):
                    e(f'v_add_f32_dpp v{O1+4*k+i}, v{base+4+i}, v{base+4+i} row_ror:8 row_mask:0xf bank_mask:0xc')
            for k in range(2):
                for i in range(2):
                    e(f'v_add_f32_dpp v{O2+2*k+i}, v{O1+4*k+i}, v{O1+4*k+i} row_ror:12 row_mask:0xf bank_mask:0x5')
                for i in range(2):
                    e(f'v_add_f32_dpp v{O2+2*k+i}, v{O1+4*k+2+i}, v{O1+4*k+2+i} row_ror:4 row_mask:0xf bank_mask:0xa')
            e(f'''
            v_lshrrev_b32 v{O1+4}, 2, v0
            v_lshlrev_b32 v{O1+4}, 4, v{O1+4}
            v_and_b32 v{O1+5}, 1, v0
            ''')
            for i in range(4):
                e(f'v_add_f32_dpp v{O2+i}, v{O2+i}, v{O2+i} quad_perm:[1,0,3,2] row_mask:0xf bank_mask:0xf')
            e(f'''
            v_lshl_add_u32 v{O1+4}, v{O1+5}, 3, v{O1+4}
            v_bfe_u32 v{O1+5}, v0, 1, 1
            ''')
            for i in range(4):
                e(f'v_add_f32_dpp v{O2+i}, v{O2+i}, v{O2+i} quad_perm:[2,3,0,1] row_mask:0xf bank_mask:0xf')
            e(f'''
            s_mov_b32 s66, 0xaaaaaaaa
            s_mov_b32 s67, 0xaaaaaaaa
            s_mov_b32 vcc_lo, 0xcccccccc
            s_mov_b32 vcc_hi, 0xcccccccc
            s_lshl_b32 s64, s{sCQ}, 9
            s_lshl_b32 s65, s{sKH}, 8
            s_add_u32 s64, s64, s65
            s_add_u32 s64, s64, {MISC}
            v_lshl_add_u32 v{O1+4}, v{O1+5}, 2, v{O1+4}
            v_cndmask_b32_e64 v{O1}, v{O2}, v{O2+1}, s[66:67]
            v_cndmask_b32_e64 v{O1+2}, v{O2+2}, v{O2+3}, s[66:67]
            v_add_u32 v{O1+4}, s64, v{O1+4}
            v_cndmask_b32 v{O1}, v{O1}, v{O1+2}, vcc
            ds_write_b32 v{O1+4}, v{O1}
            ''')
    g.stamp(9)
    ZD = Opt.zd
    ZB = 16; BA = 144; BACC = 192
    assert ZB + 8 * ZD <= BA
    with only(g, 3):
        g.wait('zp', keep=True)
        poll_loop(g, 244, 59, reg=245, first=False)
    g.wait('kv')
    bwait(NW + 4)
    g.stamp(10)
    e('s_barrier')
    g.stamp(11)
    with only(g, 2):
        e(f's_lshl_b32 s64, s{sJ}, 5\ns_add_u32 s64, s64, s{sRB}\ns_lshl_b32 s64, s64, 7\ns_add_u32 s64, s64, {FK_OFF}')
        flag_store(g, 64)
    def z_loads(i):
        r = ZB + (i % ZD) * 8
        return [(f's_add_u32 s60, s69, {i*4096}\ns_and_b32 s60, s60, 0x1ffff\ns_add_u32 s60, s60, s{sZ2B}\n'
                 f'buffer_load_dwordx4 {vr(r,4)}, v5, {S(SWS)}, s60 offen sc1', f'z{i}'),
                (f'buffer_load_dwordx4 {vr(r+4,4)}, v5, {S(SWS)}, s60 offen offset:1024 sc1', f'z{i}')]
    def ba_reads(i):
        s = BA + 16 * (i & 1); sl = slot[NW + i]
        return [f'ds_read_b128 {vr(s+4*Tl,4)}, v{PB + (sl//7)*2 + (Tl>>1)} offset:{(sl%7)*SL + (Tl&1)*2048}' for Tl in range(4)]
    def bacc(ft, Tl): return BACC + (Tl * 2 + ft) * 4
    for i in range(4): g.items(z_loads(i))
    g.items(ba_reads(0))
    zl = []
    for i in range(4, ZD): zl += z_loads(i)
    spread(g, gelu_l([Y + 2 * i for i in range(8)], 224, Opt.pk), zl)
    e(f'''
    s_movk_i32 s60, 896
    v_lshrrev_b32 v12, 3, v0
    v_and_b32 v4, 6, v12
    v_xor_b32 v4, v4, v0
    v_and_b32 v4, 7, v4
    v_lshlrev_b32 v4, 4, v4
    v_mad_u32_u24 v1, v12, s60, v4
    s_cmp_eq_u32 s{sCQ}, 3
    s_cselect_b32 s64, 3, 7
    v_and_b32 v12, s64, v12
    v_mad_u32_u24 v2, v12, s60, v4
    s_mul_i32 s{sO3}, s{sCQ}, {8*896}
    s_lshl_b32 s64, s{sJ}, 7
    s_add_u32 s{sO3}, s{sO3}, s64
    s_mul_i32 s{sU3}, s{sKH}, {32*896}
    s_add_u32 s{sU3}, s{sU3}, s{sO3}
    s_mul_i32 s64, s{sKH}, {28*896}
    s_add_u32 s{sO3}, s{sO3}, s64
    ''')
    g.stamp(12)
    ex = None
    pend = []
    def opoll_issue():
        with only(g, 3):
            e(f'''
            v_and_b32 v244, 15, v0
            v_lshlrev_b32 v244, 7, v244
            s_lshr_b32 s59, s{sRB}, 1
            s_lshl_b32 s59, s59, 11
            s_add_u32 s59, s59, {FO_OFF}
            buffer_load_dword v245, v244, {S(SWS)}, s59 offen sc1
            ''')
        g.mark('op')
    for i in range(32):
        g.wait(f'z{i}', 'lgkmcnt(0)')
        if i % 4 == 0 and i > 0:
            bwait(NW + min(i + 4, 31))
            e('s_barrier')
            fr = [slot[NW + k] for k in range(i - 3 - (1 if i == 4 else 0), i + 1)]
            if i == 28: ex = fr
            else: free.extend(fr)
            g.stamp(12 + i // 4)
        s = BA + 16 * (i & 1); zr = ZB + (i % ZD) * 8
        order = (2, 3, 0, 1) if i == 31 else (0, 1, 2, 3)
        M_ = [f'{MF} {vr(bacc(ft,Tl),4)}, {vr(zr+4*ft,4)}, {vr(s+4*Tl,4)}, {"0" if i == 0 else vr(bacc(ft,Tl),4)}'
              for Tl in order for ft in range(2)]
        nxt = ba_reads(i + 1) if i < 31 else []
        dm = dmas(N3 if i < Opt.iw3 else len(blocks), 2 if i >= Opt.iw3 else 1 + (i == 4))
        spread(g, M_[:4], nxt)
        spread(g, M_[4:], pend + dm)
        pend = z_loads(i + ZD) if i + ZD < 32 else []
        if i == 29: opoll_issue()
    g.stamp(20)
    def lds_base(vbase, vdst, sl):
        return None
    e(f'''
    v_add_u32 v6, s{sW1K}, v5
    v_xor_b32 v7, 4096, v6
    ''')
    for i in range(4):
        e(f'v_add_u32 v{8+i}, {ex[i]*SL}, v6')
        e(f'ds_write_b128 v{8+i}, {vr(BACC+16+4*i,4)}')
    g.wait('bs')
    for Tl in range(2):
        e(f'v_lshlrev_b32 v{BS+2*Tl}, 16, v{BS+2*Tl}\nv_mov_b32 v{BS+2*Tl+1}, v{BS+2*Tl}')
    for i in range(4):
        e(f'v_add_u32 v{8+i}, {ex[i]*SL}, v7')
    for Tl in range(2):
        for jx in range(4):
            r = BACC + 8 * Tl + 2 * jx
            e(f'v_pk_add_f32 {vr(r,2)}, {vr(r,2)}, {vr(BS+2*Tl,2)}')
    with only(g, 3):
        g.wait('op', keep=True)
        poll_loop(g, 244, 59, reg=245, first=False)
    bwait(N3 + 7, 'lgkmcnt(0)')
    e('s_barrier')
    g.stamp(21)
    free.extend(slot[NW + k] for k in range(29, 32))
    for i in range(4):
        e(f'ds_read_b128 {vr(BACC+16+4*i,4)}, v{8+i}')
    e(f'''
    s_mul_i32 s64, s{sKS}, 88
    s_add_u32 s64, s64, s{sP}
    s_lshl_b32 s64, s64, 10
    s_add_u32 s64, s64, {ACT_OFF + 16*1024}
    s_add_u32 s65, s64, {44*1024}
    s_lshl_b32 s{sACT}, s{sRB}, 2
    s_add_u32 s{sACT}, s{sACT}, s{sCQ}
    s_mul_i32 s{sACT}, s{sACT}, 44
    s_add_u32 s{sACT}, s{sACT}, s{sKH}
    s_lshl_b32 s{sACT}, s{sACT}, 10
    s_add_u32 s{sACT}, s{sACT}, {ACT_OFF}
    ''')
    UP = 232
    for Tl in range(2):
        e(f's_waitcnt lgkmcnt({2 - 2*Tl})')
        for jx in range(4):
            r = BACC + 8 * Tl + 2 * jx
            e(f'v_pk_add_f32 {vr(r,2)}, {vr(r,2)}, {vr(r+16,2)}')
        for jx in range(4):
            r = BACC + 8 * Tl + 2 * jx
            e(f'v_pk_mul_f32 {vr(r,2)}, {vr(r,2)}, {vr(Y+8*Tl+2*jx,2)}')
        g.items(pack_l(UP + 4 * Tl, BACC + 8 * Tl, BACC + 8 * Tl + 4))
        g.v(f'buffer_store_dwordx4 {vr(UP+4*Tl,4)}, v5, {S(SWS)}, s{64+Tl} offen sc1', 'U')
    CF = 16; CACC = 128; CW = 144; XRES = 124; CB = 104
    def act_load(yy):
        pre_ = f's_add_u32 s60, s{sACT}, {yy*2048}\n' if yy % 2 == 0 else ''
        return (pre_ + f'buffer_load_dwordx4 {vr(CF+4*yy,4)}, v5, {S(SWS)}, s60 offen offset:{(yy%2)*2048} sc1', f'a{yy}')
    for yy in range(8): g.item(act_load(yy))
    g.items(dmas(len(blocks)))
    e(f'''
    v_lshrrev_b32 v6, 5, v0
    v_lshlrev_b32 v6, 3, v6
    v_bfe_u32 v7, v0, 3, 2
    v_add_u32 v6, v6, v7
    v_mul_u32_u24 v6, 896, v6
    v_and_b32 v7, 7, v0
    v_lshl_add_u32 v6, v7, 4, v6
    ''')
    g.v(f'buffer_load_dwordx4 {vr(XRES,4)}, v6, {S(SX)}, s{sXO} offen', 'xr')
    e(f'''
    v_bfe_u32 v12, v0, 2, 3
    v_lshrrev_b32 v7, 5, v0
    v_lshlrev_b32 v7, 10, v7
    v_lshl_add_u32 v7, v12, 7, v7
    v_and_b32 v13, 3, v0
    v_lshl_add_u32 v7, v13, 3, v7
    s_lshl_b32 s64, s{sKH}, 12
    v_add_u32 v7, s64, v7
    v_lshrrev_b32 v12, 1, v12
    v_lshl_or_b32 v{CB}, v12, 5, v7
    ''')
    for t in range(1, 4): e(f'v_xor_b32 v{CB+t}, {t*32}, v{CB}')
    for b in (1, 2):
        for t in range(4): e(f'v_add_u32 v{CB+4*b+t}, {7*SL*b}, v{CB+t}')
    e(f'''
    v_min_u32 v244, 6, v0
    v_lshlrev_b32 v244, 7, v244
    s_lshl_b32 s59, s{sRB}, 10
    s_add_u32 s59, s59, {FU_OFF}
    s_lshl_b32 s64, s{sJ}, 7
    s_add_u32 s64, s64, s59
    ''')
    def cw_reads(yy):
        s = CW + 16 * (yy & 1); sl = slot[N3 + yy]
        return [f'ds_read_b64_tr_b16 {vr(s+4*t+2*h,2)}, v{CB + (sl//7)*4 + t} offset:{(sl%7)*SL + h*2048}' for t in range(4) for h in range(2)]
    def c_part(y0, y1, hook={}):
        for yy in range(y0, y1):
            g.wait(f'a{yy}', 'lgkmcnt(0)')
            if yy in hook: hook[yy]()
            s = CW + 16 * (yy & 1)
            M_ = [f'{MF} {vr(CACC+4*nt,4)}, {vr(s+4*nt,4)}, {vr(CF+4*yy,4)}, {"0" if yy == 0 else vr(CACC+4*nt,4)}' for nt in range(4)]
            spread(g, M_, cw_reads(yy + 1) if yy + 1 < y1 else [])
    g.items(cw_reads(0))
    g.wait('U')
    g.stamp(22)
    e('s_barrier')
    with only(g, 2): flag_store(g, 64)
    free.extend(ex)
    g.items(dmas(len(blocks)))
    g.stamp(23)
    c_part(0, 8)
    g.stamp(24)
    nlate = st['next']
    with only(g, 3): poll_loop(g, 244, 59)
    g.wait(f'b{nlate-1}')
    e('s_barrier')
    g.stamp(25)
    osl = sorted(slot[N3 + yy] for yy in range(8))
    frs = osl[:4]; free.extend(osl[4:])
    g.items([act_load(yy) for yy in range(8, 12)])
    g.items(cw_reads(8))
    g.items(dmas(len(blocks)))
    assert st['next'] == len(blocks)
    g.items([act_load(yy) for yy in range(12, 22)])
    def sel4(dst, idx):
        e(f'v_mov_b32 v{dst}, {frs[0]*SL}')
        for k in (1, 2, 3):
            e(f'v_cmp_eq_u32 vcc, {k}, v{idx}\nv_mov_b32 v14, {frs[k]*SL}\nv_cndmask_b32 v{dst}, v{dst}, v14, vcc')
    e('v_bfe_u32 v13, v0, 2, 2')
    sel4(12, 13)
    e(f'''
    v_and_b32 v2, 15, v0
    v_lshrrev_b32 v3, 4, v0
    v_xor_b32 v3, v3, v2
    v_lshl_add_u32 v3, v3, 4, v12
    v_and_b32 v2, 3, v0
    v_lshl_add_u32 v3, v2, 8, v3
    v_add_u32 v8, s{sW1K}, v3
    ''')
    for nt in range(1, 4): e(f'v_xor_b32 v{8+nt}, {nt*64}, v8')
    e(f'''
    s_and_b32 s64, s{sW}, 1
    s_lshl_b32 s64, s64, 3
    v_lshrrev_b32 v2, 3, v0
    v_add_u32 v2, s64, v2
    v_lshrrev_b32 v13, 2, v2
    ''')
    sel4(12, 13)
    e(f'''
    v_and_b32 v3, 7, v0
    v_lshlrev_b32 v3, 1, v3
    v_xor_b32 v3, v3, v2
    v_lshl_add_u32 v3, v3, 4, v12
    v_and_b32 v2, 3, v2
    v_lshl_add_u32 v3, v2, 8, v3
    s_lshr_b32 s64, s{sW}, 1
    s_lshl_b32 s64, s64, 10
    v_add_u32 v3, s64, v3
    v_xor_b32 v4, 16, v3
    ''')
    FX = 176
    for jx in range(4):
        e(f'v_lshlrev_b32 v{FX+2*jx}, 16, v{XRES+jx}\nv_and_b32 v{FX+1+2*jx}, 0xffff0000, v{XRES+jx}')
    def x3():
        g.wait(f'b{len(blocks)-1}')
        e('s_barrier')
    c_part(8, 22, hook={nlate - N3 - 1: x3})
    g.stamp(26)
    for nt in range(4):
        e(f'ds_write_b128 v{8+nt}, {vr(CACC+4*nt,4)}')
    e(f'''
    s_waitcnt lgkmcnt(0)
    s_barrier
    ds_read_b128 v[24:27], v3
    ds_read_b128 v[28:31], v4
    ds_read_b128 v[32:35], v3 offset:4096
    ds_read_b128 v[36:39], v4 offset:4096
    s_waitcnt lgkmcnt(2)
    ''')
    for jx in range(4):
        e(f'v_pk_add_f32 {vr(FX+2*jx,2)}, {vr(FX+2*jx,2)}, {vr(24+2*jx,2)}')
    e('s_waitcnt lgkmcnt(0)')
    for jx in range(4):
        e(f'v_pk_add_f32 {vr(FX+2*jx,2)}, {vr(FX+2*jx,2)}, {vr(32+2*jx,2)}')
    g.items(pack_l(24, FX, FX + 4))
    g.v(f'buffer_store_dwordx4 v[24:27], v6, {S(SOUT)}, s{sXO} offen', 'out')
    e('s_branch L_END')
    a.label('L_ATT'); a.fence(2)
    g.vm = []
    sH, sOFF, sT0 = 47, 48, 49
    e(f'''
    s_waitcnt lgkmcnt(0)
    s_load_dword s{sTAG}, s[{SWS}:{SWS+1}], {EPOCH_OFF}
    s_lshr_b32 s{sH}, s{sRB}, 1
    s_and_b32 s{sKH}, s{sRB}, 1
    s_mul_i32 s50, s{sH}, 7
    s_and_b32 s{sOFF}, s50, 3
    s_lshr_b32 s{sT0}, s50, 2
    ''')
    if Opt.pf:
        e(f'''
        s_lshl_b32 s51, s{sRB}, 3
        s_add_u32 s51, s51, s{sW}
        s_mul_i32 s52, s51, 3136
        s_lshr_b32 s53, s52, 1
        s_lshl_b32 s51, s51, 15
        ''')
        for rep in range(2 if Opt.bal else 1):
            if rep: e(f's_sub_u32 s51, s51, 32768\ns_xor_b32 s51, s51, {4<<18}\ns_waitcnt vmcnt(16)')
            for i in range(32):
                e(f'buffer_load_dwordx4 {vr(16+4*i,4)}, v5, {S(SSP)}, s51 offen offset:{(i%4)*1024}')
                if i % 4 == 3: e('s_add_u32 s51, s51, 4096')
        for i in range(4): e(f'buffer_load_dwordx4 {vr(144+4*i,4)}, v5, {S(SWT)}, s52 offen offset:{i*1024 - (960 if i == 3 else 0)}')
        for i in range(2): e(f'buffer_load_dwordx4 {vr(160+4*i,4)}, v5, {S(SWO)}, s53 offen offset:{i*544}')
    e(f'''
    v_bfe_u32 v2, v0, 2, 2
    v_cmp_gt_u32 vcc, s{sOFF}, v2
    v_cndmask_b32_e64 v3, 0, 1, vcc
    v_add_u32 v3, s{sT0}, v3
    v_lshl_add_u32 v8, v3, 16, v5
    v_add_u32 v9, 0x10000, v8
    s_mul_i32 s50, s{sH}, 28
    s_lshr_b32 s51, s50, 6
    s_add_u32 s52, s50, 27
    s_lshr_b32 s52, s52, 6
    s_sub_u32 s52, s52, s51
    v_lshrrev_b32 v3, 5, v0
    v_mul_u32_u24 v3, s52, v3
    v_add_u32 v3, s51, v3
    v_lshlrev_b32 v4, 5, v3
    v_and_b32 v7, 31, v0
    v_add_u32 v6, v4, v7
    v_lshlrev_b32 v6, 7, v6
    s_mov_b32 s54, {FK_OFF}
    s_lshl_b32 s56, s{sW}, 13
    s_add_u32 s57, s56, {VD_OFF}
    s_add_u32 s56, s56, {KD_OFF}
    ''')
    e(f'''
    v_lshrrev_b32 v2, 4, v0
    v_cmp_gt_u32 vcc, s{sOFF}, v2
    v_cndmask_b32_e64 v3, 0, 1, vcc
    v_add_u32 v3, s{sT0}, v3
    v_lshl_add_u32 v10, v3, 10, v5
    v_add_u32 v11, 1024, v10
    s_add_u32 s50, s{sOFF}, 3
    s_and_b32 s50, s50, 3
    v_cmp_eq_u32 s[58:59], s50, v2
    v_bfe_u32 v3, v0, 2, 2
    v_cmp_eq_u32 s[60:61], s50, v3
    v_cndmask_b32_e64 v11, v11, v10, s[58:59]
    v_subrev_u32 v3, s{sOFF}, v2
    v_and_b32 v3, 3, v3
    v_lshlrev_b32 v3, 8, v3
    v_and_b32 v4, 15, v0
    v_lshl_add_u32 v12, v4, 4, v3
    s_lshl_b32 s50, s{sKH}, 6
    s_lshl_b32 s51, s{sW}, 3
    s_add_u32 s50, s50, s51
    s_mul_i32 s51, s50, 14336
    s_add_u32 s51, s51, {PQ_OFF}
    s_mul_i32 s52, s50, 44
    s_add_u32 s52, s52, s{sH}
    s_lshl_b32 s52, s52, 10
    s_add_u32 s52, s52, {ACT_OFF}
    s_lshl_b32 s53, s50, 1
    s_add_u32 s53, s53, s{sH}
    s_lshl_b32 s53, s53, 7
    s_add_u32 s53, s53, {FO_OFF}
    s_waitcnt lgkmcnt(0)
    s_add_u32 s{sTAG}, s{sTAG}, {TAGC}
    ''')
    g.stamp(1)
    with only(g, 0): poll_loop(g, 6, 54)
    e('s_waitcnt vmcnt(0)\ns_barrier')
    g.stamp(2)
    KB = 16; VB = 80; QB = 144; KA = 176; ONE = 200
    for kk in range(8):
        if kk == 4: e('s_add_u32 s56, s56, 4096\ns_add_u32 s57, s57, 4096')
        for X in range(2):
            g.v(f'buffer_load_dwordx4 {vr(KB+(kk*2+X)*4,4)}, v{8+X}, {S(SWS)}, s56 offen offset:{(kk%4)*1024} sc1', f'k{kk}')
        for X in range(2):
            g.v(f'buffer_load_dwordx4 {vr(VB+(kk*2+X)*4,4)}, v{8+X}, {S(SWS)}, s57 offen offset:{(kk%4)*1024} sc1', f'k{kk}')
    for i in range(4):
        for X in range(2):
            g.v(f'buffer_load_dwordx4 {vr(QB+8*i+4*X,4)}, v{10+X}, {S(SWS)}, s51 offen sc1', f'q{i}')
        if i < 3: e('s_add_u32 s51, s51, 28672')
    for jx in range(4): e(f'v_mov_b32 v{ONE+jx}, 0x3f803f80')
    for kk in range(8):
        g.wait(f'k{kk}')
        for Xd in range(2):
            for Xe in range(3):
                d = vr(KA + (Xd * 3 + Xe) * 4, 4)
                b = vr(VB + (kk*2+Xe)*4, 4) if Xe < 2 else vr(ONE, 4)
                e(f'{MF} {d}, {vr(KB+(kk*2+Xd)*4,4)}, {b}, {"0" if kk == 0 else d}')
    e(f's_mul_i32 s50, s{sW}, 6144\nv_add_u32 v2, s50, v5')
    for i in range(6):
        e(f'ds_write_b128 v2, {vr(KA+4*i,4)} offset:{i*1024}')
    g.stamp(3)
    e(f'''
    v_add_u32 v2, s{sW1K}, v5
    s_cmp_ge_u32 s{sW}, 3
    s_cselect_b32 s50, {3072 - 8}, 0
    s_sub_u32 s50, 49152, s50
    v_add_u32 v3, s50, v2
    s_waitcnt lgkmcnt(0)
    s_barrier
    s_cmp_ge_u32 s{sW}, 6
    s_cbranch_scc1 L_ANR
    ''')
    R = 16
    for w in range(8): e(f'ds_read_b128 {vr(R+4*w,4)}, v2 offset:{w*6144}')
    for st_, n_ in ((16, 4), (8, 2), (4, 1)):
        if st_ == 16: e('s_waitcnt lgkmcnt(0)')
        for i in range(n_):
            for p in (0, 2):
                e(f'v_pk_add_f32 {vr(R+4*i+p,2)}, {vr(R+4*i+p,2)}, {vr(R+4*i+p+st_,2)}')
    e(f'''
    v_cvt_pk_bf16_f32 v{R}, v{R}, v{R+1}
    v_cvt_pk_bf16_f32 v{R+1}, v{R+2}, v{R+3}
    ds_write_b64 v3, v[{R}:{R+1}]
    s_waitcnt lgkmcnt(0)
    ''')
    a.label('L_ANR'); a.fence(2)
    e('s_barrier')
    KF = 204
    for Xe in range(3): e(f'ds_read_b128 {vr(KF+4*Xe,4)}, v5 offset:{49152 + Xe*1024}')
    for i in range(4):
        g.wait(f'q{i}')
        e(f'v_swap_b32 v{QB+8*i+2}, v{QB+8*i+4}\nv_swap_b32 v{QB+8*i+3}, v{QB+8*i+5}')
    e('s_waitcnt lgkmcnt(0)')
    for Xe in range(3):
        for jx in (2, 3):
            e(f'v_cndmask_b32_e64 v{KF+4*Xe+jx}, v{KF+4*Xe+jx}, 0, s[58:59]')
    for jx in range(4):
        e(f'v_cndmask_b32_e64 v{KF+4+jx}, v{KF+4+jx}, 0, s[60:61]')
    g.stamp(5)
    OB = 16
    a.fence(2)
    for i in range(8):
        for Xe in range(3):
            e(f'{MF} {vr(OB+i*12+4*Xe,4)}, {vr(KF+4*Xe,4)}, {vr(QB+4*i,4)}, 0')
    for i in range(8):
        o = OB + i * 12
        e(f'v_add_f32 v{o+8}, {f32(1e-6)}, v{o+8}\nv_rcp_f32 v{o+8}, v{o+8}\nv_mov_b32 v{o+9}, v{o+8}')
        for p in range(4):
            e(f'v_pk_mul_f32 {vr(o+2*p,2)}, {vr(o+2*p,2)}, {vr(o+8,2)}')
        g.items(pack_l(QB + 4 * i, o, o + 4))
        g.v(f'buffer_store_dwordx4 {vr(QB+4*i,4)}, v12, {S(SWS)}, s52 offen sc1', 'o')
        if i < 7: e(f's_add_u32 s52, s52, {44*1024}')
    g.wait('o')
    flag_store(g, 53)
    g.stamp(6)
    e(f'''
    s_or_b32 s57, s{sRB}, s{sW}
    s_cmp_lg_u32 s57, 0
    s_cbranch_scc1 L_END
    v_lshlrev_b32 v2, 7, v0
    ''')
    for q in range(4):
        e(f's_mov_b32 s57, {FO_OFF + q*64*FS}')
        poll_loop(g, 2, 57)
    e(f's_mov_b32 s57, {EPOCH_OFF}')
    flag_store(g, 57)
    a.label('L_END')
    if Opt.hold >= 0:
        g.stamp(30)
        e('''
        L_HOLD:
        s_sleep 4
        s_memrealtime s[96:97]
        s_waitcnt lgkmcnt(0)
        s_sub_u32 s96, s96, s94
        s_cmp_lt_u32 s96, 6000
        s_cbranch_scc1 L_HOLD
        ''')
    if Opt.stamp:
        g.stamp(30)
        e('s_waitcnt vmcnt(0)')
        g.stamp(31)
        e(f'''
        s_memrealtime s[96:97]
        s_waitcnt lgkmcnt(0)
        v_writelane_b32 v15, s94, 0
        v_writelane_b32 v15, s98, 32
        v_writelane_b32 v15, s96, 33
        s_lshl_b32 s96, s2, 3
        s_add_u32 s96, s96, s{sW}
        s_lshl_b32 s96, s96, 8
        s_add_u32 s96, s96, {DBG_OFF}
        v_lshlrev_b32 v14, 2, v0
        buffer_store_dword v15, v14, {S(SWS)}, s96 offen
        ''')
    a.label('L_EXIT')
    e('s_endpgm')
    head = '; @launch grid=(256,1,1) block=(512,1,1) lds=163840\n'
    tail = f'''.section .rodata,"a"
.p2align 6
.amdhsa_kernel {KNAME}
  .amdhsa_next_free_vgpr 256
  .amdhsa_next_free_sgpr 102
  .amdhsa_accum_offset 256
  .amdhsa_group_segment_fixed_size 0
  .amdhsa_kernarg_size 88
  .amdhsa_user_sgpr_count 2
  .amdhsa_user_sgpr_kernarg_segment_ptr 1
  .amdhsa_system_sgpr_workgroup_id_x 1
.end_amdhsa_kernel
'''
    return head + a.text() + tail

if __name__ == '__main__':
    for o in sys.argv[2:]:
        k, _, v = o.partition('=')
        assert hasattr(Opt, k), k
        setattr(Opt, k, int(v) if v else 1)
    open(sys.argv[1], 'w').write(gen())
```

```python
import sys, math
from asmlib import *

KNAME = 'parallel_sum__linear_attn_block__mixer_gmlp__prompt_kernel'
FS = 128
FZ_OFF = 0; FK_OFF = 0x8000; FU_OFF = 0x18000; FM_OFF = 0x20000
EPOCH_OFF = 0x40000
ZT_OFF  = 0x48000
ST_OFF  = 0x80000
Z2_OFF  = 0x100000
KD_OFF  = 0x480000
VD_OFF  = 0x640000
PQ_OFF  = 0x800000
ACT_OFF = 0x9C0000
M_OFF   = 0xD40000
DBG_OFF = 0x1000000
WS_SIZE = 0x1100000
SL = 8192; NS = 19; MISC = NS * SL; XNS = 12
TAGC = 0x9E3779B9

LOG2E = 1.4426950408889634
GC0 = -2.0 * math.sqrt(2.0 / math.pi) * LOG2E
GC1 = GC0 * 0.044715

SX, SQ, SI, SWS, SSP, SBS, SWO, SWT, SOUT = 4, 8, 12, 16, 20, 24, 28, 32, 36
def S(b): return f's[{b}:{b+3}]'
sW, sRB, sJ, sTAG, sCQ, sKH, sW1K, sHB = 40, 41, 42, 43, 44, 45, 46, 47
sZB, sQB, sSP, sROT, sKS, sP = 48, 49, 50, 51, 52, 53
sO3, sU3, sZ2B, sACT, sXO = 54, 55, 56, 57, 58
sRC, sJC = 70, 71

class Opt:
    stamp = 0
    pk = 1
    rot = 0
    pf = 1
    slp = 8
    hold = -1
    sgi = 10
    sgc = 12
    sfz = 16
    spi = 19
    zd = 8
    n3 = 1
    ipq = 27
    npq = 0
    upi = 2
    cm = 1
    im = 24
    nm = 3
    iwm = 29
    uw = 4
    od0 = 0
    odn = 3
    wpre = 7
    fc = 0
    ad = 6
    iw3 = 28
    bal = 0
    ord = 1
    w0 = 4
    prio = 0
    rt = 0
    eg = 1
    d0 = 0
    bs = ''
    rpg = 4
    ft = -1
    fs = -1

class G:
    def __init__(self):
        self.a = Asm(); self.vm = []; self.nl = 0; self.sg = None
    def e(self, t): self.a.e(t)
    def v(self, text, tag=None):
        self.a.e(text); self.vm.append((tag, 1, self.sg, ' lds' in text))
    def mark(self, tag): self.vm.append((tag, 0, self.sg, False))
    def count(self, tag):
        idx = max(i for i, t in enumerate(self.vm) if t[0] == tag)
        T = self.vm[idx]
        return idx, sum(t[1] for t in self.vm[idx + 1:] if not (T[2] is not None and t[2] == T[2] and t[3] != T[3]))
    def wait(self, tag, extra='', keep=False):
        if not self.has(tag):
            if extra: self.a.e(f's_waitcnt {extra}')
            return
        idx, n = self.count(tag)
        assert n <= 63, n
        self.a.e(f's_waitcnt vmcnt({n}) {extra}')
        if not keep:
            T = self.vm[idx]
            self.vm = [t for t in self.vm[:idx] if T[2] is not None and t[2] == T[2] and t[3] != T[3]] + self.vm[idx + 1:]
    def has(self, tag): return any(t[0] == tag for t in self.vm)
    def item(self, it):
        if callable(it): it()
        elif isinstance(it, tuple): self.v(it[0], it[1])
        else: self.e(it)
    def items(self, L):
        for it in L: self.item(it)
    def lab(self, p):
        self.nl += 1; return f'{p}_{self.nl}'
    def stamp(self, idx):
        if Opt.hold == idx:
            self.e('s_memrealtime s[94:95]\ns_waitcnt lgkmcnt(0)')
        if Opt.stamp:
            self.e(f's_memtime s[96:97]\ns_waitcnt lgkmcnt(0)\nv_writelane_b32 v15, s96, {idx}')

def spread(g, prim, sec):
    sec = list(sec); n = len(prim)
    for i, p in enumerate(prim):
        g.item(p)
        k = -(-len(sec) // (n - i))
        for _ in range(k): g.item(sec.pop(0))

class only:
    def __init__(self, g, w): self.g = g; self.w = w
    def __enter__(self):
        self.K = self.g.lab('OW')
        self.g.e(f's_cmp_lg_u32 s{sW}, {self.w}\ns_cbranch_scc1 {self.K}')
        self.h = list(self.g.a.hist)
    def __exit__(self, *a):
        self.g.a.fence(5); self.g.a.label(self.K); self.g.a.hist = self.h

def flag_store(g, soff):
    g.e(f's_mov_b64 exec, 1\nv_mov_b32 v14, s{sTAG}\nbuffer_store_dword v14, off, {S(SWS)}, s{soff} sc1\ns_mov_b64 exec, -1')

def poll_loop(g, voff, soff, reg=14, first=True):
    L = g.lab('PL'); D = g.lab('PD'); C = g.lab('PC')
    g.e('s_movk_i32 s62, 0x1000')
    if not first: g.e(f's_branch {C}')
    g.a.label(L)
    g.e(f'buffer_load_dword v{reg}, v{voff}, {S(SWS)}, s{soff} offen sc1\ns_waitcnt vmcnt(0)')
    g.a.label(C)
    g.e(f'''
    v_cmp_ne_u32 vcc, s{sTAG}, v{reg}
    s_nop 1
    s_cbranch_vccz {D}
    s_sleep {Opt.slp}
    s_sub_u32 s62, s62, 1
    s_cbranch_scc0 {L}
    ''')
    g.a.label(D)

CON = 252
def gelu_l(regs, T, pk):
    z = list(zip(regs, [T + 2 * i for i in range(len(regs))])); L = []
    if pk:
        L += [f'v_pk_mul_f32 {vr(t,2)}, {vr(x,2)}, {vr(x,2)}' for x, t in z]
        L += [f'v_pk_fma_f32 {vr(t,2)}, {vr(t,2)}, {vr(CON+2,2)}, {vr(CON,2)}' for x, t in z]
        L += [f'v_pk_mul_f32 {vr(t,2)}, {vr(t,2)}, {vr(x,2)}' for x, t in z]
    else:
        L += [f'v_mul_f32 v{t+d}, v{x+d}, v{x+d}' for x, t in z for d in (0, 1)]
        L += [f'v_fma_f32 v{t+d}, v{t+d}, v{CON+2}, v{CON}' for x, t in z for d in (0, 1)]
        L += [f'v_mul_f32 v{t+d}, v{t+d}, v{x+d}' for x, t in z for d in (0, 1)]
    L += [f'v_exp_f32 v{t+d}, v{t+d}' for x, t in z for d in (0, 1)]
    if pk: L += [f'v_pk_add_f32 {vr(t,2)}, {vr(t,2)}, 1.0 op_sel_hi:[1,0]' for x, t in z]
    else: L += [f'v_add_f32 v{t+d}, 1.0, v{t+d}' for x, t in z for d in (0, 1)]
    L += [f'v_rcp_f32 v{t+d}, v{t+d}' for x, t in z for d in (0, 1)]
    if pk: L += [f'v_pk_mul_f32 {vr(x,2)}, {vr(x,2)}, {vr(t,2)}' for x, t in z]
    else: L += [f'v_mul_f32 v{x+d}, v{x+d}, v{t+d}' for x, t in z for d in (0, 1)]
    return L

def phi_l(x0, n, T):
    r = range(n); L = []
    L += [f'v_mul_f32 v{T+i}, {f32(LOG2E)}, v{x0+i}' for i in r]
    L += [f'v_exp_f32_e64 v{T+i}, v{T+i} clamp' for i in r]
    L += [f'v_max_f32 v{x0+i}, 0, v{x0+i}' for i in r]
    L += [f'v_add_f32 v{x0+i}, v{x0+i}, v{T+i}' for i in r]
    L += [f'v_add_f32 v{x0+i}, {f32(1e-6)}, v{x0+i}' for i in r]
    return L

def pack_l(dst, r0, r1):
    return [f'v_cvt_pk_bf16_f32 v{dst}, v{r0}, v{r0+1}', f'v_cvt_pk_bf16_f32 v{dst+1}, v{r0+2}, v{r0+3}',
            f'v_cvt_pk_bf16_f32 v{dst+2}, v{r1}, v{r1+1}', f'v_cvt_pk_bf16_f32 v{dst+3}, v{r1+2}, v{r1+3}']
def lines(t): return [x.strip() for x in t.strip().split('\n') if x.strip()]

MF = 'v_mfma_f32_16x16x32_bf16'

def gen():
    g = G(); a = g.a; e = g.e
    a.raw('.amdgcn_target "amdgcn-amd-amdhsa--gfx950"\n.text')
    a.raw(f'.globl {KNAME}\n.p2align 8\n.type {KNAME},@function\n{KNAME}:')
    if Opt.stamp:
        e('s_memrealtime s[98:99]\ns_memtime s[94:95]')
    if Opt.hold >= 0:
        e('s_memrealtime s[94:95]')
    e(f'''
    s_cmp_ge_u32 s2, 256
    s_cbranch_scc1 L_EXIT
    s_load_dwordx2 s[{SX}:{SX+1}], s[0:1], 0
    s_load_dwordx2 s[{SI}:{SI+1}], s[0:1], 32
    s_load_dwordx2 s[{SQ}:{SQ+1}], s[0:1], 8
    s_load_dwordx2 s[{SWS}:{SWS+1}], s[0:1], 80
    s_load_dwordx2 s[{SSP}:{SSP+1}], s[0:1], 40
    s_load_dwordx2 s[{SBS}:{SBS+1}], s[0:1], 48
    s_load_dwordx2 s[{SWO}:{SWO+1}], s[0:1], 16
    s_load_dwordx2 s[{SWT}:{SWT+1}], s[0:1], 56
    s_load_dwordx2 s[{SOUT}:{SOUT+1}], s[0:1], 64
    v_lshrrev_b32 v1, 6, v0
    v_and_b32 v0, 63, v0
    v_readfirstlane_b32 s{sW}, v1
    ''')
    for b, sz in ((SX, 2048*896), (SQ, 448*2688), (SI, 448*3584), (SWS, WS_SIZE), (SSP, 2048*4096), (SBS, 4096),
                  (SWO, 448*896), (SWT, 896*896), (SOUT, 2048*896)):
        e(f's_mov_b32 s{b+2}, {sz}\ns_mov_b32 s{b+3}, 0x20000')
    e(f'''
    s_and_b32 s60, s2, 3
    s_lshl_b32 s60, s60, 3
    s_bfe_u32 s61, s2, 0x30003
    s_add_u32 s{sRB}, s60, s61
    s_and_b32 s60, s2, 4
    s_lshr_b32 s61, s2, 6
    ''')
    if Opt.bal:
        e(f'''
        s_lshr_b32 s63, s2, 3
        s_and_b32 s63, s63, 4
        s_cmp_eq_u32 s61, 3
        s_cselect_b32 s63, s63, 0
        s_xor_b32 s60, s60, s63
        ''')
    e(f'''
    s_add_u32 s{sJ}, s60, s61
    ''')
    if Opt.cm:
        assert not Opt.bal
        e(f'''
        s_lshl_b32 s60, s60, 3
        s_lshr_b32 s61, s2, 3
        s_add_u32 s60, s60, s61
        s_mul_i32 s61, s60, 37
        s_lshr_b32 s61, s61, 8
        s_mul_i32 s63, s61, 7
        s_sub_u32 s{sJC}, s60, s63
        s_and_b32 s{sRC}, s{sRB}, 24
        s_add_u32 s{sRC}, s{sRC}, s61
        ''')
    else:
        e(f's_mov_b32 s{sRC}, s{sRB}\ns_mov_b32 s{sJC}, s{sJ}')
    e(f'''
    s_lshl_b32 s{sW1K}, s{sW}, 10
    v_lshrrev_b32 v12, 3, v0
    v_and_b32 v13, 7, v0
    v_lshlrev_b32 v5, 4, v0
    ''')
    if Opt.stamp:
        e('v_mov_b32 v15, 0')
    e(f'''
    s_cmp_eq_u32 s{sJ}, 7
    s_cbranch_scc1 L_ATT
    v_mul_u32_u24 v4, 896, v12
    v_lshl_add_u32 v4, v13, 4, v4
    s_lshl_b32 s60, s{sRB}, 3
    s_add_u32 s60, s60, s{sW}
    s_mul_i32 s60, s60, {8*896}
    s_and_b32 s{sCQ}, s{sW}, 3
    s_lshr_b32 s{sKH}, s{sW}, 2
    s_lshr_b32 s{sHB}, s{sCQ}, 1
    v_and_b32 v6, 3, v12
    v_lshrrev_b32 v7, 2, v12
    v_lshl_add_u32 v6, v7, 3, v6
    v_and_b32 v7, 6, v12
    v_xor_b32 v7, v7, v13
    v_lshlrev_b32 v7, 4, v7
    v_mul_u32_u24 v1, 3584, v6
    v_add_u32 v1, v1, v7
    v_mul_u32_u24 v2, 2688, v6
    v_add_u32 v2, v2, v7
    s_lshl_b32 s61, s{sKH}, 5
    s_lshl_b32 s63, s{sHB}, 4
    s_add_u32 s61, s61, s63
    s_and_b32 s63, s{sW}, 1
    s_lshl_b32 s63, s63, 2
    s_add_u32 s61, s61, s63
    s_mul_i32 s{sZB}, s61, 3584
    s_lshl_b32 s63, s{sJ}, 8
    s_add_u32 s{sZB}, s{sZB}, s63
    s_mul_i32 s{sQB}, s61, 2688
    s_lshl_b32 s63, s{sJ}, 7
    s_add_u32 s{sQB}, s{sQB}, s63
    s_waitcnt lgkmcnt(0)
    ''')
    XR = 16
    for i in range(7):
        g.v(f'buffer_load_dwordx4 {vr(XR+4*i,4)}, v4, {S(SX)}, s60 offen offset:{i*128}', f'x{i}')
    e(f's_load_dword s{sTAG}, s[{SWS}:{SWS+1}], {EPOCH_OFF}')
    blocks = []
    for s in range(7): blocks += [('z', 1792 + cb * 128, s) for cb in range(2)]
    for s in range(7): blocks += [('q', off, s) for off in (896, 1792, 0)]
    for s in range(7): blocks += [('z', cb * 128, s) for cb in range(2)]
    NW = len(blocks)
    blocks += [('s', i) for i in range(32)]
    N3 = len(blocks)
    blocks += [('y', yy) for yy in range(14)]
    free = list(range(XNS)); slot = {}; st = {'next': 0}
    def dma(n):
        b = blocks[n]; sl = free.pop(0); slot[n] = sl
        m0 = f's_add_u32 m0, s{sW1K}, {sl*SL}\n'
        if b[0] == 'z':
            t = f'{m0}s_add_u32 s61, s{sZB}, {b[1] + b[2]*64*3584}\nbuffer_load_dwordx4 v1, {S(SI)}, s61 offen lds'
        elif b[0] == 'q':
            t = f'{m0}s_add_u32 s61, s{sQB}, {b[1] + b[2]*64*2688}\nbuffer_load_dwordx4 v2, {S(SQ)}, s61 offen lds'
        elif b[0] == 's':
            t = (f'{m0}s_add_u32 s61, s{sROT}, {b[1]*128}\ns_and_b32 s61, s61, 0xfff\ns_add_u32 s61, s61, s{sSP}\n'
                 f'buffer_load_dwordx4 v3, {S(SSP)}, s61 offen lds')
        else:
            t = f'{m0}s_add_u32 s61, s{sU3}, {b[1]*64*896}\nbuffer_load_dwordx4 v1, {S(SWT)}, s61 offen lds'
        return (t, f'b{n}')
    def dmas(limit, maxn=99):
        L = []
        while free and st['next'] < limit and len(L) < maxn:
            L.append(dma(st['next'])); st['next'] += 1
        return L
    def bwait(n, extra=''):
        assert n < st['next'], n
        g.wait(f'b{n}', extra)
    assert Opt.sgc <= 13
    g.stamp(27)
    e('s_barrier')
    g.items(dmas(N3, Opt.w0))
    g.stamp(28)
    XF = 48; AC = 104; M = 108
    e(f's_mov_b32 s63, 0x3f803f80')
    for jx in range(4): e(f'v_mov_b32 v{AC+jx}, 0')
    e(f'''
    s_lshl_b32 s64, s{sKH}, 5
    s_lshl_b32 s65, s{sCQ}, 2
    s_add_u32 s64, s64, s65
    v_lshrrev_b32 v6, 5, v0
    v_lshlrev_b32 v6, 4, v6
    v_and_b32 v7, 3, v12
    v_add3_u32 v6, v6, v7, s64
    v_lshlrev_b32 v7, 7, v6
    v_bfe_u32 v6, v6, 1, 3
    v_xor_b32 v6, v6, v13
    v_lshl_add_u32 v7, v6, 4, v7
    v_add_u32 v112, {XNS*SL}, v7
    ''')
    e(f'''
    v_and_b32 v8, 15, v0
    v_lshrrev_b32 v6, 4, v0
    v_lshrrev_b32 v7, 1, v8
    v_xor_b32 v6, v6, v7
    v_lshlrev_b32 v6, 4, v6
    v_lshl_add_u32 v6, v8, 7, v6
    s_lshl_b32 s64, s{sKH}, 12
    s_add_u32 s64, s64, {XNS*SL}
    v_add_u32 v6, s64, v6
    v_xor_b32 v7, 64, v6
    ''')
    e(f'''
    v_bfe_u32 v9, v0, 2, 3
    v_lshrrev_b32 v10, 5, v0
    v_lshlrev_b32 v10, 11, v10
    v_lshl_add_u32 v10, v9, 7, v10
    v_and_b32 v8, 3, v0
    v_lshl_add_u32 v10, v8, 3, v10
    v_lshrrev_b32 v9, 1, v9
    v_lshlrev_b32 v9, 5, v9
    v_or_b32 v10, v10, v9
    s_and_b32 s64, s{sCQ}, 1
    s_lshl_b32 s64, s64, 6
    v_xor_b32 v8, s64, v10
    v_xor_b32 v9, 32, v8
    s_lshl_b32 s64, s{sCQ}, 5
    v_xor_b32 v10, s64, v10
    v_mov_b32 v{CON}, {f32(GC0)}
    v_mov_b32 v{CON+1}, {f32(GC0)}
    v_mov_b32 v{CON+2}, {f32(GC1)}
    v_mov_b32 v{CON+3}, {f32(GC1)}
    ''')
    e(f'''
    s_lshl_b32 s{sSP}, s{sRB}, 6
    s_lshl_b32 s64, s{sKH}, 5
    s_add_u32 s{sSP}, s{sSP}, s64
    s_lshl_b32 s64, s{sHB}, 2
    s_add_u32 s{sSP}, s{sSP}, s64
    s_and_b32 s64, s{sW}, 1
    s_lshl_b32 s65, s64, 4
    s_add_u32 s{sSP}, s{sSP}, s65
    s_and_b32 s{sXO}, s{sSP}, 63
    s_lshl_b32 s65, s{sRC}, 6
    s_add_u32 s{sXO}, s{sXO}, s65
    s_mul_i32 s{sXO}, s{sXO}, 896
    s_lshl_b32 s65, s{sJC}, 7
    s_add_u32 s{sXO}, s{sXO}, s65
    s_lshl_b32 s{sSP}, s{sSP}, 12
    s_lshl_b32 s64, s64, 2
    v_lshrrev_b32 v14, 4, v0
    v_add_u32 v14, s64, v14
    v_xor_b32 v14, v14, v0
    v_and_b32 v14, 7, v14
    v_lshlrev_b32 v14, 4, v14
    v_lshrrev_b32 v3, 5, v0
    v_lshl_add_u32 v14, v3, 15, v14
    v_bfe_u32 v3, v0, 3, 2
    v_lshl_add_u32 v3, v3, 12, v14
    s_lshl_b32 s{sKS}, s{sRB}, 1
    s_add_u32 s{sKS}, s{sKS}, s{sKH}
    s_lshl_b32 s{sP}, s{sJ}, 2
    s_add_u32 s{sP}, s{sP}, s{sCQ}
    ''')
    if Opt.rot: e(f's_and_b32 s{sROT}, s{sRB}, 7\ns_lshl_b32 s{sROT}, s{sROT}, 9')
    else: e(f's_mov_b32 s{sROT}, 0')
    for i in range(7):
        g.wait(f'x{i}')
        if i == 0: g.stamp(1)
        for jx in range(4):
            k = 4 * i + jx
            e(f'v_dot2c_f32_bf16 v{AC+(jx&1)}, s63, v{XR+k}')
            e(f'v_dot2c_f32_bf16 v{AC+2+(jx&1)}, v{XR+k}, v{XR+k}')
        if i < 6:
            for jx in range(4):
                k = 4 * i + jx
                e(f'v_lshlrev_b32 v{XF+2*k}, 16, v{XR+k}\nv_and_b32 v{XF+2*k+1}, 0xffff0000, v{XR+k}')
        if i >= 2: g.items(dmas(N3, 1))
    un = []
    for k in range(24, 28): un += [f'v_lshlrev_b32 v{XF+2*k}, 16, v{XR+k}', f'v_and_b32 v{XF+2*k+1}, 0xffff0000, v{XR+k}']
    e(un.pop(0)); e(un.pop(0))
    e(f'v_add_f32 v{AC}, v{AC}, v{AC+1}\nv_add_f32 v{AC+2}, v{AC+2}, v{AC+3}')
    for dp in ('quad_perm:[1,0,3,2]', 'quad_perm:[2,3,0,1]', 'row_half_mirror'):
        e(un.pop(0))
        e(f'v_add_f32_dpp v{AC}, v{AC}, v{AC} {dp} row_mask:0xf bank_mask:0xf')
        e(f'v_add_f32_dpp v{AC+2}, v{AC+2}, v{AC+2} {dp} row_mask:0xf bank_mask:0xf')
    e(f'''
    v_mul_f32 v{AC}, {f32(1.0/448)}, v{AC}
    v_mul_f32 v{AC+2}, {f32(1.0/448)}, v{AC+2}
    v_fma_f32 v{AC+2}, -v{AC}, v{AC}, v{AC+2}
    v_max_f32 v{AC+2}, 0, v{AC+2}
    v_add_f32 v{AC+2}, {f32(1e-5)}, v{AC+2}
    v_rsq_f32 v{M}, v{AC+2}
    ''')
    for u_ in un: e(u_)
    e(f'v_mul_f32 v{M+2}, -v{AC}, v{M}\nv_mov_b32 v{M+1}, v{M}\nv_mov_b32 v{M+3}, v{M+2}')
    for i in range(7):
        for jx in range(4):
            k = 4 * i + jx
            if Opt.pk: e(f'v_pk_fma_f32 {vr(XF+2*k,2)}, {vr(XF+2*k,2)}, {vr(M,2)}, {vr(M+2,2)}')
            else: e(f'v_fma_f32 v{XF+2*k}, v{XF+2*k}, v{M}, v{M+2}\nv_fma_f32 v{XF+2*k+1}, v{XF+2*k+1}, v{M}, v{M+2}')
        for jx in range(4):
            k = 4 * i + jx
            e(f'v_cvt_pk_bf16_f32 v{XR+k}, v{XF+2*k}, v{XF+2*k+1}')
        e(f'ds_write_b128 v112, {vr(XR+4*i,4)} offset:{i*SL}')
        g.items(dmas(N3, 1))
    fb = 1 if not Opt.bs else min(int(x) for x in Opt.bs.split(','))
    g.wait(f'b{2*fb+1}', 'lgkmcnt(0)')
    e(f's_add_u32 s{sTAG}, s{sTAG}, {TAGC}')
    g.stamp(2)
    e('s_barrier')
    g.stamp(3)
    AF = 16; BF = 128; Y = 176; A1 = 192; TM = 216
    def af(ks, Tl): return AF + (ks * 2 + Tl) * 4
    def kind(S_): return S_ // 7
    def sblocks(S_):
        p, s = divmod(S_, 7)
        return [2*s, 2*s+1] if p == 0 else ([14+3*s+i for i in range(3)] if p == 1 else [35+2*s, 36+2*s])
    def bf(S_, u, f): return BF + (S_ & 1) * 24 + (u * 3 + f) * 4
    def a_reads(s):
        return [f'ds_read_b128 {vr(af(2*s+u,Tl),4)}, v{6+u} offset:{s*SL + Tl*2048}' for u in range(2) for Tl in range(2)]
    def b_addr(S_):
        bl = sblocks(S_)
        if kind(S_) == 1:
            return [f'v_add_u32 v{11+f}, {slot[bl[f]]*SL}, v10' for f in range(3)]
        o0, o1 = slot[bl[0]] * SL, slot[bl[1]] * SL
        return [f's_mul_i32 s64, s{sHB}, {o1-o0}\ns_add_u32 s64, s64, {o0}\nv_add_u32 v11, s64, v8\nv_add_u32 v12, s64, v9']
    def b_reads(S_):
        L = []; nf = 3 if kind(S_) == 1 else 2
        for u in range(2):
            for f in range(nf):
                for h in range(2):
                    L.append(f'ds_read_b64_tr_b16 {vr(bf(S_,u,f)+2*h,2)}, v{11+f} offset:{u*4096 + h*1024}')
        return L
    def y(Tl, f): return Y + (Tl * 2 + f) * 4
    def mfmas(S_):
        p, s = divmod(S_, 7); L = []
        for u in range(2):
            for f in range(3 if p == 1 else 2):
                for Tl in range(2):
                    d = vr(A1 + f * 8 + Tl * 4, 4) if p == 1 else vr(y(Tl, f), 4)
                    xa = vr(af(2*s+u, Tl), 4); wb = vr(bf(S_, u, f), 4)
                    cc = '0' if (s == 0 and u == 0) else d
                    od = (p == 0) or (p == 1 and f < 2)
                    L.append(f'{MF} {d}, {xa}, {wb}, {cc}' if od else f'{MF} {d}, {wb}, {xa}, {cc}')
        return L
    pre = {}; post = {}; fill = {S_: [] for S_ in range(21)}
    def stats_pub():
        with only(g, 0):
            e(f'''
            v_lshlrev_b32 v14, 3, v0
            v_add_u32 v14, {MISC}, v14
            ds_read_b64 v[{TM}:{TM+1}], v14
            ds_read_b64 v[{TM+2}:{TM+3}], v14 offset:512
            ds_read_b64 v[{TM+4}:{TM+5}], v14 offset:1024
            ds_read_b64 v[{TM+6}:{TM+7}], v14 offset:1536
            s_lshl_b32 s64, s{sRB}, 3
            s_add_u32 s64, s64, s{sJ}
            s_lshl_b32 s64, s64, 10
            s_add_u32 s64, s64, {ST_OFF}
            s_waitcnt lgkmcnt(0)
            v_pk_add_f32 v[{TM}:{TM+1}], v[{TM}:{TM+1}], v[{TM+2}:{TM+3}]
            v_pk_add_f32 v[{TM+4}:{TM+5}], v[{TM+4}:{TM+5}], v[{TM+6}:{TM+7}]
            v_mov_b32 v{TM+2}, s{sTAG}
            v_mov_b32 v{TM+3}, s{sTAG}
            v_pk_add_f32 v[{TM}:{TM+1}], v[{TM}:{TM+1}], v[{TM+4}:{TM+5}]
            buffer_store_dwordx4 v[{TM}:{TM+3}], v5, {S(SWS)}, s64 offen sc1
            ''')
    post[7] = [stats_pub]
    def stat_loads():
        e(f's_lshl_b32 s66, s{sRB}, 13\ns_add_u32 s66, s66, {ST_OFF}\ns_add_u32 s67, s66, 4096')
        for n in range(7):
            e(f'buffer_load_dwordx4 {vr(TM+4*n,4)}, v5, {S(SWS)}, s{66 if n < 4 else 67} offen offset:{(n%4)*1024} sc1')
    def stats_issue():
        with only(g, 1): stat_loads()
        g.mark('sl')
    post.setdefault(Opt.sgi, []).append(stats_issue)
    def stats_check():
        with only(g, 1):
            LR = g.lab('SR'); LD = g.lab('SK')
            e('s_movk_i32 s62, 0x1000')
            g.wait('sl', keep=True)
            a.label(LR)
            tg = [TM + 4 * n + d for n in range(7) for d in (2, 3)]
            for op, dst in (('max', 244), ('min', 245)):
                e(f'v_{op}3_u32 v{dst}, v{tg[0]}, v{tg[1]}, v{tg[2]}')
                for i in range(3, 13, 2): e(f'v_{op}3_u32 v{dst}, v{dst}, v{tg[i]}, v{tg[i+1]}')
                e(f'v_{op}_u32 v{dst}, v{dst}, v{tg[13]}')
            e(f'''
            v_xor_b32 v244, s{sTAG}, v244
            v_xor_b32 v245, s{sTAG}, v245
            v_or_b32 v244, v244, v245
            v_cmp_ne_u32 vcc, 0, v244
            s_nop 1
            s_cbranch_vccz {LD}
            s_sub_u32 s62, s62, 1
            s_cbranch_scc1 {LD}
            s_sleep 1
            ''')
            stat_loads()
            e(f's_waitcnt vmcnt(0)\ns_branch {LR}')
            a.label(LD)
            for d in (0, 1):
                r = TM + d
                e(f'''
                v_add_f32 v{r}, v{r}, v{r+4}
                v_add_f32 v{r+8}, v{r+8}, v{r+12}
                v_add_f32 v{r+16}, v{r+16}, v{r+20}
                v_add_f32 v{r}, v{r}, v{r+24}
                v_add_f32 v{r+8}, v{r+8}, v{r+16}
                v_add_f32 v{r}, v{r}, v{r+8}
                ''')
            e(f'''
            v_mul_f32 v{TM}, {f32(1.0/896)}, v{TM}
            v_mul_f32 v{TM+1}, {f32(1.0/896)}, v{TM+1}
            v_fma_f32 v{TM+1}, -v{TM}, v{TM}, v{TM+1}
            v_max_f32 v{TM+1}, 0, v{TM+1}
            v_add_f32 v{TM+1}, {f32(1e-5)}, v{TM+1}
            v_rsq_f32 v{TM+1}, v{TM+1}
            v_lshlrev_b32 v14, 2, v0
            v_add_u32 v14, {MISC + 2048}, v14
            v_mul_f32 v{TM}, -v{TM}, v{TM+1}
            ds_write2_b32 v14, v{TM+1}, v{TM} offset1:64
            s_waitcnt lgkmcnt(0)
            ''')
        g.stamp(6)
    pre.setdefault(Opt.sgc, []).append(stats_check)
    def norm_reads():
        e(f'''
        v_lshrrev_b32 v14, 4, v0
        v_lshlrev_b32 v14, 5, v14
        s_lshl_b32 s64, s{sKH}, 7
        s_add_u32 s64, s64, {MISC + 2048}
        v_add_u32 v14, s64, v14
        ds_read_b128 {vr(TM,4)}, v14
        ds_read_b128 {vr(TM+4,4)}, v14 offset:16
        ds_read_b128 {vr(TM+8,4)}, v14 offset:256
        ds_read_b128 {vr(TM+12,4)}, v14 offset:272
        s_lshl_b32 s{sZ2B}, s{sP}, 17
        s_add_u32 s{sZ2B}, s{sZ2B}, {Z2_OFF}
        s_lshl_b32 s66, s{sKS}, 11
        s_add_u32 s66, s66, s{sZ2B}
        s_lshl_b32 s64, s{sKH}, 11
        s_add_u32 s{sZ2B}, s{sZ2B}, s64
        ''')
    post.setdefault(Opt.sgc, []).append(norm_reads)
    nl = []
    for f in range(2):
        for Tl in range(2):
            nl += [f'v_fma_f32 v{y(Tl,f)+d}, v{y(Tl,f)+d}, v{TM+4*Tl+d}, v{TM+8+4*Tl+d}' for d in range(4)]
        nl += pack_l(TM + 16 + 4 * f, y(0, f), y(1, f))
        nl.append((f'buffer_store_dwordx4 {vr(TM+16+4*f,4)}, v5, {S(SWS)}, s66 offen offset:{f*1024} sc1', 'z2'))
    first = {Opt.sgc: nl}
    pre.setdefault(Opt.sfz, []).append(lambda: g.wait('z2'))
    def zflag():
        with only(g, 2):
            e(f's_lshl_b32 s64, s{sJ}, 5\ns_add_u32 s64, s64, s{sRB}\ns_lshl_b32 s64, s64, 7\ns_add_u32 s64, s64, {FZ_OFF}')
            flag_store(g, 64)
        g.stamp(8)
    post.setdefault(Opt.sfz, []).append(zflag)
    ep = lines(f'''
    s_lshl_b32 s68, s{sP}, 16
    s_lshl_b32 s69, s{sKS}, 10
    s_add_u32 s68, s68, s69
    s_add_u32 s68, s68, {VD_OFF}
    ''')
    ep += pack_l(TM + 8, A1 + 8, A1 + 12)
    ep.append((f'buffer_store_dwordx4 {vr(TM+8,4)}, v5, {S(SWS)}, s68 offen sc1', 'kv'))
    ep += phi_l(A1, 8, TM) + pack_l(TM + 12, A1, A1 + 4)
    ep.append((f's_sub_u32 s68, s68, {VD_OFF - KD_OFF}\nbuffer_store_dwordx4 {vr(TM+12,4)}, v5, {S(SWS)}, s68 offen sc1', 'kv'))
    ep += phi_l(A1 + 16, 8, TM) + pack_l(TM + 8, A1 + 16, A1 + 20)
    ep += lines(f'''
    v_bfe_u32 v4, v0, 4, 1
    v_mul_u32_u24 v4, 14336, v4
    v_lshrrev_b32 v14, 5, v0
    v_lshl_add_u32 v4, v14, 8, v4
    v_and_b32 v14, 15, v0
    v_lshl_add_u32 v4, v14, 4, v4
    v_permlane16_swap_b32 v{TM+8}, v{TM+10}
    v_permlane16_swap_b32 v{TM+9}, v{TM+11}
    ''')
    ep.append((f's_mul_i32 s68, s{sKS}, 56\ns_add_u32 s68, s68, s{sP}\ns_lshl_b32 s68, s68, 9\ns_add_u32 s68, s68, {PQ_OFF}\n'
               f'buffer_store_dwordx4 {vr(TM+8,4)}, v4, {S(SWS)}, s68 offen sc1', 'kv'))
    nst = 5
    per = -(-len(ep) // nst)
    for i in range(nst): fill[14 + i] += ep[i * per:(i + 1) * per]
    BS = 240
    fill[19] += lines(f'''
    v_bfe_u32 v14, v0, 2, 2
    v_lshlrev_b32 v14, 4, v14
    v_and_b32 v4, 3, v0
    v_lshl_add_u32 v14, v4, 1, v14
    s_lshl_b32 s68, s{sKS}, 6
    ''')
    fill[19] += [(f'buffer_load_ushort v{BS+2*Tl}, v14, {S(SBS)}, s68 offen offset:{Tl*8}', 'bs') for Tl in range(2)]
    PB = 246
    fill[20] += lines(f'''
    s_lshl_b32 s68, s{sKH}, 6
    v_xor_b32 v{PB}, s68, v6
    v_subrev_u32 v{PB}, {XNS*SL}, v{PB}
    v_xor_b32 v{PB+1}, 4096, v{PB}
    v_add_u32 v{PB+2}, {7*SL}, v{PB}
    v_add_u32 v{PB+3}, {7*SL}, v{PB+1}
    v_add_u32 v{PB+4}, {14*SL}, v{PB}
    v_add_u32 v{PB+5}, {14*SL}, v{PB+1}
    s_lshl_b32 s69, s{sROT}, 5
    ''')
    def zpoll_issue():
        with only(g, 3):
            e(f'''
            v_and_b32 v244, 31, v0
            v_lshlrev_b32 v244, 7, v244
            s_lshl_b32 s59, s{sJ}, 12
            s_add_u32 s59, s59, {FZ_OFF}
            buffer_load_dword v245, v244, {S(SWS)}, s59 offen sc1
            ''')
        g.mark('zp')
    g.items(b_addr(0) + a_reads(0) + b_reads(0) + b_addr(1))
    BS_ = set(range(1, 21)) if not Opt.bs else set(int(x) for x in Opt.bs.split(','))
    assert {7, Opt.sgc, Opt.sfz} <= BS_
    lastb = -1
    for S_ in range(21):
        nbs = min([b for b in BS_ if b > S_] + [20])
        if S_ not in BS_:
            e('s_waitcnt lgkmcnt(0)')
            assert S_ not in pre
            g.items(post.get(S_, []))
        else:
            nb = sblocks(nbs)[-1]
            fine = Opt.fs >= 0 and Opt.fs <= S_ < Opt.fs + 10
            if fine: g.stamp(34 + 3 * (S_ - Opt.fs))
            bwait(nb, 'lgkmcnt(0)')
            g.items(pre.get(S_, []))
            if fine: g.stamp(35 + 3 * (S_ - Opt.fs))
            e('s_barrier')
            if fine: g.stamp(36 + 3 * (S_ - Opt.fs))
            for t in range(lastb + 1, S_ + 1):
                free.extend(slot[n] for n in sblocks(t))
                if t < 7: free.append(XNS + t)
            lastb = S_
            g.items(post.get(S_, []))
        if S_ in (7, 14): g.stamp(5 if S_ == 7 else 7)
        M_ = mfmas(S_)
        rd = []
        if S_ < 20: rd = b_reads(S_ + 1)
        if S_ < 6: rd += a_reads(S_ + 1)
        dm = dmas(N3, -(-len(free) // max(1, min([b for b in BS_ if b > S_] + [21]) - S_)))
        ad = b_addr(S_ + 2) if S_ < 19 else []
        fl = list(fill[S_])
        hd = []
        if Opt.ord == 5:
            pass
        elif S_ in first:
            hd = M_[:1] + rd[:4] + M_[1:2] + rd[4:8] + [f's_waitcnt lgkmcnt({min(len(rd), 8)})']
            M_ = M_[2:]; rd = rd[8:]; fl = first[S_] + fl
        while rd and Opt.ord != 5:
            hd += M_[:1] + rd[:Opt.rpg]; M_ = M_[1:]; rd = rd[Opt.rpg:]
        def grp(cond, L):
            if not L: return
            K = g.lab('AS')
            e(f's_bitcmp1_b32 s{sW}, 2\ns_cbranch_scc{cond} {K}')
            h = list(a.hist)
            for t in L: e(t if isinstance(t, str) else t[0])
            a.label(K); a.hist = h
        if Opt.ord == 1:
            tp = []
            def T(nm):
                if Opt.ft == S_ and len(tp) < 11:
                    e(f's_memtime s[{72+2*len(tp)}:{73+2*len(tp)}]'); tp.append(nm)
            T('start')
            g.items(hd)
            T('hd')
            k = -(-len(fl) // len(M_)); sec = []
            for i, m_ in enumerate(M_):
                g.item(m_)
                if dm and (i < len(M_) - 1):
                    T('m'); g.item(dm.pop(0)); T('d')
                g.items(fl[:k]); fl = fl[k:]
            g.items(dm + ad)
            T('end')
            if tp:
                print(tp)
                e('s_waitcnt lgkmcnt(0)')
                T('lg')
                e('s_waitcnt lgkmcnt(0)')
                for i in range(len(tp)): e(f'v_writelane_b32 v15, s{72+2*i}, {34+i}')
        elif Opt.ord == 2:
            g.sg = S_
            g.items(hd)
            grp(0, dm)
            spread(g, M_, fl)
            grp(1, dm)
            for t in dm: g.vm.append((t[1], 1, S_, True))
            g.items(ad)
            g.sg = None
        elif Opt.ord == 3:
            out = []
            for it in hd:
                if isinstance(it, str) and it.startswith('v_mfma') and dm: out.append(dm.pop(0))
                out.append(it)
            g.items(out)
            spread(g, M_, dm + fl)
            g.items(ad)
        elif Opt.ord == 5:
            tp = []
            def T(nm):
                if Opt.ft == S_ and len(tp) < 11:
                    e(f's_memtime s[{72+2*len(tp)}:{73+2*len(tp)}]'); tp.append(nm)
            T('start')
            if S_ in first:
                g.items(M_[:2]); M_ = M_[2:]
                e('s_waitcnt lgkmcnt(0)')
                fl = first[S_] + fl
            grp(1 - Opt.eg, rd)
            T('r0')
            n = len(M_); nd = len(dm)
            dpos = [min(n - 1, Opt.d0 + (i * (n - Opt.d0)) // nd) for i in range(nd)]
            k = -(-len(fl) // n)
            for i, m_ in enumerate(M_):
                if i == n - Opt.rt:
                    T('m'); grp(Opt.eg, rd); T('r1')
                g.item(m_)
                for p in dpos:
                    if p == i:
                        T('m'); g.item(dm.pop(0)); T('d')
                g.items(fl[:k]); fl = fl[k:]
            if Opt.rt == 0:
                T('m'); grp(Opt.eg, rd); T('r1')
            g.items(ad)
            if tp:
                print(tp)
                e('s_waitcnt lgkmcnt(0)')
                T('lg')
                e('s_waitcnt lgkmcnt(0)')
                for i in range(len(tp)): e(f'v_writelane_b32 v15, s{72+2*i}, {34+i}')
        elif Opt.ord == 4:
            g.items(hd)
            spread(g, M_, fl)
            g.items(dm + ad)
        if S_ == Opt.spi: zpoll_issue()
        if S_ == 6:
            g.stamp(4)
            g.items(gelu_l([Y + 2 * i for i in range(8)], TM, Opt.pk))
            SS = TM + 16; QQ = TM + 24 - 0
            SS = 232; QQ = 240
            for Tl in range(2):
                for pr in range(2):
                    s_ = SS + 4 * Tl + 2 * pr; q_ = QQ + 4 * Tl + 2 * pr
                    y0 = y(Tl, 0) + 2 * pr; y1 = y(Tl, 1) + 2 * pr
                    if Opt.pk:
                        e(f'''
                        v_pk_add_f32 {vr(s_,2)}, {vr(y0,2)}, {vr(y1,2)}
                        v_pk_mul_f32 {vr(q_,2)}, {vr(y0,2)}, {vr(y0,2)}
                        v_pk_fma_f32 {vr(q_,2)}, {vr(y1,2)}, {vr(y1,2)}, {vr(q_,2)}
                        ''')
                    else:
                        for d in (0, 1):
                            e(f'v_add_f32 v{s_+d}, v{y0+d}, v{y1+d}\nv_mul_f32 v{q_+d}, v{y0+d}, v{y0+d}\nv_fmac_f32 v{q_+d}, v{y1+d}, v{y1+d}')
            O1 = TM; O2 = TM + 8
            for k, base in enumerate((SS, QQ)):
                for i in range(4):
                    e(f'v_add_f32_dpp v{O1+4*k+i}, v{base+i}, v{base+i} row_ror:8 row_mask:0xf bank_mask:0x3')
                for i in range(4):
                    e(f'v_add_f32_dpp v{O1+4*k+i}, v{base+4+i}, v{base+4+i} row_ror:8 row_mask:0xf bank_mask:0xc')
            for k in range(2):
                for i in range(2):
                    e(f'v_add_f32_dpp v{O2+2*k+i}, v{O1+4*k+i}, v{O1+4*k+i} row_ror:12 row_mask:0xf bank_mask:0x5')
                for i in range(2):
                    e(f'v_add_f32_dpp v{O2+2*k+i}, v{O1+4*k+2+i}, v{O1+4*k+2+i} row_ror:4 row_mask:0xf bank_mask:0xa')
            e(f'''
            v_lshrrev_b32 v{O1+4}, 2, v0
            v_lshlrev_b32 v{O1+4}, 4, v{O1+4}
            v_and_b32 v{O1+5}, 1, v0
            ''')
            for i in range(4):
                e(f'v_add_f32_dpp v{O2+i}, v{O2+i}, v{O2+i} quad_perm:[1,0,3,2] row_mask:0xf bank_mask:0xf')
            e(f'''
            v_lshl_add_u32 v{O1+4}, v{O1+5}, 3, v{O1+4}
            v_bfe_u32 v{O1+5}, v0, 1, 1
            ''')
            for i in range(4):
                e(f'v_add_f32_dpp v{O2+i}, v{O2+i}, v{O2+i} quad_perm:[2,3,0,1] row_mask:0xf bank_mask:0xf')
            e(f'''
            s_mov_b32 s66, 0xaaaaaaaa
            s_mov_b32 s67, 0xaaaaaaaa
            s_mov_b32 vcc_lo, 0xcccccccc
            s_mov_b32 vcc_hi, 0xcccccccc
            s_lshl_b32 s64, s{sCQ}, 9
            s_lshl_b32 s65, s{sKH}, 8
            s_add_u32 s64, s64, s65
            s_add_u32 s64, s64, {MISC}
            v_lshl_add_u32 v{O1+4}, v{O1+5}, 2, v{O1+4}
            v_cndmask_b32_e64 v{O1}, v{O2}, v{O2+1}, s[66:67]
            v_cndmask_b32_e64 v{O1+2}, v{O2+2}, v{O2+3}, s[66:67]
            v_add_u32 v{O1+4}, s64, v{O1+4}
            v_cndmask_b32 v{O1}, v{O1}, v{O1+2}, vcc
            ds_write_b32 v{O1+4}, v{O1}
            ''')
    g.stamp(9)
    ZD = Opt.zd
    ZB = 16; BA = 144; BACC = 192; PQR = 112
    assert ZB + 8 * ZD <= PQR
    with only(g, 3):
        g.wait('zp', keep=True)
        poll_loop(g, 244, 59, reg=245, first=False)
    g.wait('kv')
    bwait(NW + 4)
    g.stamp(10)
    e('s_barrier')
    for t in range(lastb + 1, 21): free.extend(slot[n] for n in sblocks(t))
    g.stamp(11)
    with only(g, 2):
        e(f's_lshl_b32 s64, s{sJ}, 5\ns_add_u32 s64, s64, s{sRB}\ns_lshl_b32 s64, s64, 7\ns_add_u32 s64, s64, {FK_OFF}')
        flag_store(g, 64)
    def z_loads(i):
        r = ZB + (i % ZD) * 8
        return [(f's_add_u32 s60, s69, {i*4096}\ns_and_b32 s60, s60, 0x1ffff\ns_add_u32 s60, s60, s{sZ2B}\n'
                 f'buffer_load_dwordx4 {vr(r,4)}, v5, {S(SWS)}, s60 offen sc1', f'z{i}'),
                (f'buffer_load_dwordx4 {vr(r+4,4)}, v5, {S(SWS)}, s60 offen offset:1024 sc1', f'z{i}')]
    def ba_reads(i):
        s = BA + 16 * (i & 1); sl = slot[NW + i]
        return [f'ds_read_b128 {vr(s+4*Tl,4)}, v{PB + (sl//7)*2 + (Tl>>1)} offset:{(sl%7)*SL + (Tl&1)*2048}' for Tl in range(4)]
    def bacc(ft, Tl): return BACC + (Tl * 2 + ft) * 4
    for i in range(4): g.items(z_loads(i))
    g.items(ba_reads(0))
    zl = []
    for i in range(4, ZD): zl += z_loads(i)
    spread(g, gelu_l([Y + 2 * i for i in range(8)], 224, Opt.pk), zl)
    e(f"""
    s_movk_i32 s60, 896
    v_lshrrev_b32 v12, 3, v0
    v_and_b32 v4, 6, v12
    v_xor_b32 v4, v4, v0
    v_and_b32 v4, 7, v4
    v_lshlrev_b32 v4, 4, v4
    v_mad_u32_u24 v1, v12, s60, v4
    s_mul_i32 s{sU3}, s{sW}, {8*896}
    s_lshl_b32 s64, s{sJC}, 7
    s_add_u32 s{sU3}, s{sU3}, s64
    s_lshl_b32 s{sO3}, s{sRC}, 2
    s_add_u32 s{sO3}, s{sO3}, s{sCQ}
    s_mul_i32 s{sACT}, s{sO3}, 28
    s_add_u32 s{sACT}, s{sACT}, s{sKH}
    s_lshl_b32 s{sACT}, s{sACT}, 10
    s_add_u32 s{sACT}, s{sACT}, {ACT_OFF}
    s_mul_i32 s{sO3}, s{sO3}, 14336
    s_mul_i32 s64, s{sKH}, 768
    s_add_u32 s{sO3}, s{sO3}, s64
    s_add_u32 s{sO3}, s{sO3}, {PQ_OFF}
    s_lshl_b32 s66, s{sJC}, 16
    s_add_u32 s66, s66, s{sW1K}
    s_add_u32 s66, s66, {M_OFF}
    v_add_u32 v6, s{sW1K}, v5
    v_xor_b32 v7, 4096, v6
    v_add_u32 v2, {7*SL}, v6
    v_add_u32 v4, {14*SL}, v6
    """)
    MWB = (6, 2, 4)
    CF = 16; MS = 80; CACC = 176; TT = 192; DN = 224; XRES = 240; CB = 80; MR = 246; ZR = 249; ZS = 228
    assert ZB + 8 * ZD <= MS
    ml = [(f'buffer_load_dwordx4 {vr(MS+4*yy,4)}, v5, {S(SWS)}, s66 offen sc1\ns_add_u32 s66, s66, 8192', f'm{yy}') for yy in range(8)]
    def z_issue():
        with only(g, 1):
            e(f"""
            v_lshrrev_b32 v12, 1, v0
            v_lshlrev_b32 v12, 7, v12
            v_and_b32 v13, 1, v0
            v_lshl_add_u32 v12, v13, 4, v12
            s_mov_b32 s64, {ZT_OFF}
            buffer_load_dwordx4 {vr(ZS,4)}, v12, {S(SWS)}, s64 offen sc1
            """)
    ml.insert(0, z_issue)
    g.stamp(12)
    pql = []
    for yy in range(8):
        pre_ = f's_add_u32 s65, s{sO3}, {yy*1792}\n' if yy % 2 == 0 else ''
        pql.append((pre_ + f'buffer_load_dwordx4 {vr(PQR+4*yy,4)}, v5, {S(SWS)}, s65 offen offset:{(yy%2)*1792} sc1', 'pq'))
    ex = None
    pend = []
    def poll_issue(setup, tag):
        with only(g, 3):
            e(setup + f'\nbuffer_load_dword v245, v244, {S(SWS)}, s59 offen sc1')
        g.mark(tag)
    def poll_check(tag):
        with only(g, 3):
            g.wait(tag, keep=True)
            poll_loop(g, 244, 59, reg=245, first=False)
    msl = []; mw = []
    def m_write(yy):
        def f():
            g.wait(f'm{yy}')
            e(f'ds_write_b128 v{MWB[msl[yy]//7]}, {vr(MS+4*yy,4)} offset:{(msl[yy]%7)*SL}')
            if yy == 0:
                with only(g, 1):
                    e(f'v_add_u32 v12, {MISC + 4096}, v5\nds_write_b128 v12, {vr(ZS,4)}')
        return f
    for i in range(32):
        g.wait(f'z{i}', 'lgkmcnt(0)')
        if i % 4 == 0 and i > 0:
            bwait(NW + min(i + 4, 31))
            if i == Opt.im: poll_check('mp')
            e('s_barrier')
            fr = [slot[NW + k] for k in range(i - 3 - (1 if i == 4 else 0), i + 1)]
            if i == 28: ex = fr
            else: free.extend(fr)
            if i == 24:
                msl = [free.pop() for _ in range(8)]
                mw = [m_write(yy) for yy in range(8)]
            g.stamp(12 + i // 4)
        s = BA + 16 * (i & 1); zr = ZB + (i % ZD) * 8
        order = (2, 3, 0, 1) if i == 31 else (0, 1, 2, 3)
        M_ = [f'{MF} {vr(bacc(ft,Tl),4)}, {vr(zr+4*ft,4)}, {vr(s+4*Tl,4)}, {"0" if i == 0 else vr(bacc(ft,Tl),4)}'
              for Tl in order for ft in range(2)]
        nxt = ba_reads(i + 1) if i < 31 else []
        dm = dmas(N3, 1 + (i == 4))
        if i >= Opt.iw3 and st['next'] >= N3: dm += dmas(len(blocks), min(Opt.n3, N3 + 4 - st['next']))
        if i >= Opt.ipq:
            k = -(-len(pql) // max(1, 31 - i))
            dm = pql[:k] + dm; pql = pql[k:]
        if i >= Opt.im:
            dm = ml[:Opt.nm] + dm; ml = ml[Opt.nm:]
        if i >= Opt.iwm:
            k = -(-len(mw) // (32 - i))
            dm = mw[:k] + dm; mw = mw[k:]
        spread(g, M_[:4], nxt)
        spread(g, M_[4:], pend + dm)
        pend = z_loads(i + ZD) if i + ZD < 32 else []
        if i == Opt.im - 3:
            poll_issue(f"""v_subrev_u32 v244, 32, v0
            v_min_u32 v244, 6, v244
            v_lshlrev_b32 v244, 12, v244
            s_lshl_b32 s59, s{sRC}, 7
            v_add_u32 v244, s59, v244
            v_lshlrev_b32 v245, 7, v0
            s_lshl_b32 s59, s{sRB}, 12
            s_add_u32 s59, s59, {FM_OFF - FK_OFF}
            v_add_u32 v245, s59, v245
            v_cmp_gt_u32 vcc, 32, v0
            v_cndmask_b32 v244, v244, v245, vcc
            s_mov_b32 s59, {FK_OFF}""", 'mp')
    assert not pql and not ml and Opt.ipq >= Opt.im
    g.stamp(20)
    for i in range(4):
        e(f'v_add_u32 v{8+i}, {ex[i]*SL}, v6')
        e(f'ds_write_b128 v{8+i}, {vr(BACC+16+4*i,4)}')
    g.items(mw)
    g.wait('bs')
    for Tl in range(2):
        e(f'v_lshlrev_b32 v{BS+2*Tl}, 16, v{BS+2*Tl}\nv_mov_b32 v{BS+2*Tl+1}, v{BS+2*Tl}')
    for i in range(4):
        e(f'v_add_u32 v{8+i}, {ex[i]*SL}, v7')
    for Tl in range(2):
        for jx in range(4):
            r = BACC + 8 * Tl + 2 * jx
            e(f'v_pk_add_f32 {vr(r,2)}, {vr(r,2)}, {vr(BS+2*Tl,2)}')
    e(f"""
    s_mul_i32 s64, s{sKS}, 56
    s_add_u32 s64, s64, s{sP}
    s_lshl_b32 s64, s64, 10
    s_add_u32 s64, s64, {ACT_OFF}
    s_add_u32 s65, s64, {28*1024}
    s_lshl_b32 s66, s{sKH}, 12
    v_lshlrev_b32 v{MR}, 3, v0
    v_add_u32 v{MR}, s66, v{MR}
    v_add_u32 v{MR+1}, {7*SL}, v{MR}
    v_add_u32 v{MR+2}, {14*SL}, v{MR}
    v_lshrrev_b32 v{ZR}, 4, v0
    v_lshlrev_b32 v{ZR}, 1, v{ZR}
    v_subrev_u32 v{ZR}, s{sKH}, v{ZR}
    v_add_u32 v{ZR+1}, 1, v{ZR}
    v_and_b32 v{ZR}, 7, v{ZR}
    s_lshl_b32 s66, s{sKH}, 6
    s_add_u32 s66, s66, {MISC + 4096}
    v_lshl_add_u32 v{ZR}, v{ZR}, 3, s66
    v_lshl_add_u32 v{ZR+1}, v{ZR+1}, 3, s66
    s_lshl_b32 s67, s{sRB}, 10
    s_lshl_b32 s66, s{sJ}, 7
    s_add_u32 s67, s67, s66
    s_add_u32 s67, s67, {FU_OFF}
    s_waitcnt lgkmcnt(0)
    s_barrier
    """)
    g.stamp(21)
    free.extend([slot[NW + k] for k in range(29, 32)])
    for i in range(4):
        e(f'ds_read_b128 {vr(BACC+16+4*i,4)}, v{8+i}')
    OD = 3
    def oent(yy): return (144, 160, 92)[yy % OD]
    def zent(yy): return (72, 76, 108)[yy % OD]
    def m_reads(yy):
        s = oent(yy); sl = msl[yy]
        return ([f'ds_read_b64 {vr(zent(yy)+2*h,2)}, v{ZR+h} offset:{yy*128}' for h in range(2)] +
                [f'ds_read_b64 {vr(s+4*t+2*h,2)}, v{MR + sl//7} offset:{(sl%7)*SL + h*2048 + t*512}' for t in range(4) for h in range(2)])
    g.items(m_reads(0))
    UP = 232
    for Tl in range(2):
        e(f's_waitcnt lgkmcnt({12 - 2*Tl})')
        for jx in range(4):
            r = BACC + 8 * Tl + 2 * jx
            e(f'v_pk_add_f32 {vr(r,2)}, {vr(r,2)}, {vr(r+16,2)}')
        for jx in range(4):
            r = BACC + 8 * Tl + 2 * jx
            e(f'v_pk_mul_f32 {vr(r,2)}, {vr(r,2)}, {vr(Y+8*Tl+2*jx,2)}')
        g.items(pack_l(UP + 4 * Tl, BACC + 8 * Tl, BACC + 8 * Tl + 4))
        g.v(f'buffer_store_dwordx4 {vr(UP+4*Tl,4)}, v5, {S(SWS)}, s{64+Tl} offen sc1', 'U')
    g.stamp(22)
    def o_fin(yy):
        d = DN + 4 * (yy & 1); t = TT + 16 * (yy & 1)
        L = [f'v_add_f32 v{d}, {f32(1e-6)}, v{d}', f'v_rcp_f32 v{d}, v{d}']
        for p in range(8):
            if yy == 0: L.append(f'v_pk_mul_f32 {vr(CACC+2*p,2)}, {vr(t+2*p,2)}, {vr(d,2)} op_sel_hi:[1,0]')
            else: L.append(f'v_pk_fma_f32 {vr(CACC+2*p,2)}, {vr(t+2*p,2)}, {vr(d,2)}, {vr(CACC+2*p,2)} op_sel_hi:[1,0,1]')
        return L
    g.items(m_reads(1))
    e(f"""
    v_bfe_u32 v12, v0, 2, 3
    v_lshrrev_b32 v7, 5, v0
    v_lshlrev_b32 v7, 10, v7
    v_lshl_add_u32 v7, v12, 7, v7
    v_and_b32 v13, 3, v0
    v_lshl_add_u32 v7, v13, 3, v7
    s_lshl_b32 s64, s{sKH}, 12
    v_add_u32 v7, s64, v7
    v_lshrrev_b32 v12, 1, v12
    v_lshl_or_b32 v{CB}, v12, 5, v7
    """)
    for t in range(1, 4): e(f'v_xor_b32 v{CB+t}, {t*32}, v{CB}')
    for b in (1, 2):
        for t in range(4): e(f'v_add_u32 v{CB+4*b+t}, {7*SL*b}, v{CB+t}')
    e(f"""
    v_lshrrev_b32 v6, 5, v0
    v_lshlrev_b32 v6, 3, v6
    v_bfe_u32 v7, v0, 3, 2
    v_add_u32 v6, v6, v7
    v_mul_u32_u24 v6, 896, v6
    v_and_b32 v7, 7, v0
    v_lshl_add_u32 v6, v7, 4, v6
    """)
    g.wait('pq')
    def act_load(yy):
        pre_ = f's_add_u32 s60, s{sACT}, {yy*2048}\n' if yy % 2 == 0 else ''
        return (pre_ + f'buffer_load_dwordx4 {vr(CF+4*yy,4)}, v5, {S(SWS)}, s60 offen offset:{(yy%2)*2048} sc1', f'a{yy}')
    WE = [112, 128, 144, 92, 160, 192, 208]; WD = len(WE)
    for yy in range(8):
        if yy == Opt.uw:
            g.wait('U')
            g.stamp(23)
            e('s_barrier')
            with only(g, 2): flag_store(g, 67)
            assert Opt.uw >= 3
            free.extend(ex + msl[:3])
            g.stamp(24)
        e(f's_waitcnt lgkmcnt({10 if yy < 7 else 0})')
        s = oent(yy); q = vr(PQR + 4 * yy, 4)
        M_ = [f'{MF} {vr(DN+4*(yy&1),4)}, {vr(zent(yy),4)}, {q}, 0']
        M_ += [f'{MF} {vr(TT+16*(yy&1)+4*nt,4)}, {vr(s+4*nt,4)}, {q}, 0' for nt in range(4)]
        spread(g, M_, (m_reads(yy + 2) if yy < 6 else []) + (o_fin(yy - 1) if yy else []))
        if yy >= Opt.od0: g.items(dmas(len(blocks), Opt.odn))
    g.items(dmas(len(blocks)))
    assert st['next'] == len(blocks)
    g.v(f'buffer_load_dwordx4 {vr(XRES,4)}, v6, {S(SX)}, s{sXO} offen', 'xr')
    g.items(o_fin(7))
    g.wait(f'b{N3 + WD - 1}')
    e('s_barrier')
    g.stamp(25)
    frs = msl[4:]
    def cw_reads(yy):
        s = WE[yy % WD]; sl = slot[N3 + yy]
        return [f'ds_read_b64_tr_b16 {vr(s+4*t+2*h,2)}, v{CB + (sl//7)*4 + t} offset:{(sl%7)*SL + h*2048}' for t in range(4) for h in range(2)]
    for yy in range(Opt.wpre):
        if yy == Opt.upi:
            poll_issue(f"""v_min_u32 v244, 6, v0
            v_lshlrev_b32 v244, 7, v244
            s_lshl_b32 s59, s{sRC}, 10
            s_add_u32 s59, s59, {FU_OFF}""", 'up')
        g.items(cw_reads(yy))
    poll_check('up')
    g.wait(f'b{len(blocks)-1}')
    e('s_barrier')
    g.stamp(26)
    g.items([act_load(yy) for yy in range(Opt.ad)])
    for yy in range(Opt.wpre, WD): g.items(cw_reads(yy))
    def c_part():
        for yy in range(14):
            nl_ = 8 * (min(13, yy - 1 + WD - 1) - yy)
            g.wait(f'a{yy}', f'lgkmcnt({max(0, min(15, nl_))})')
            if Opt.fc: g.stamp(34 + yy)
            s = WE[yy % WD]
            M_ = [f'{MF} {vr(CACC+4*nt,4)}, {vr(s+4*nt,4)}, {vr(CF+4*yy,4)}, {vr(CACC+4*nt,4)}' for nt in range(4)]
            if yy + Opt.ad < 14: g.item(act_load(yy + Opt.ad))
            spread(g, M_, cw_reads(yy - 1 + WD) if yy >= 1 and yy - 1 + WD < 14 else [])
    def sel4(dst, idx):
        e(f'v_mov_b32 v{dst}, {frs[0]*SL}')
        for k in (1, 2, 3):
            e(f'v_cmp_eq_u32 vcc, {k}, v{idx}\nv_mov_b32 v14, {frs[k]*SL}\nv_cndmask_b32 v{dst}, v{dst}, v14, vcc')
    e('v_bfe_u32 v13, v0, 2, 2')
    sel4(12, 13)
    e(f'''
    v_and_b32 v2, 15, v0
    v_lshrrev_b32 v3, 4, v0
    v_xor_b32 v3, v3, v2
    v_lshl_add_u32 v3, v3, 4, v12
    v_and_b32 v2, 3, v0
    v_lshl_add_u32 v3, v2, 8, v3
    v_add_u32 v8, s{sW1K}, v3
    ''')
    for nt in range(1, 4): e(f'v_xor_b32 v{8+nt}, {nt*64}, v8')
    e(f'''
    s_and_b32 s64, s{sW}, 1
    s_lshl_b32 s64, s64, 3
    v_lshrrev_b32 v2, 3, v0
    v_add_u32 v2, s64, v2
    v_lshrrev_b32 v13, 2, v2
    ''')
    sel4(12, 13)
    e(f'''
    v_and_b32 v3, 7, v0
    v_lshlrev_b32 v3, 1, v3
    v_xor_b32 v3, v3, v2
    v_lshl_add_u32 v3, v3, 4, v12
    v_and_b32 v2, 3, v2
    v_lshl_add_u32 v3, v2, 8, v3
    s_lshr_b32 s64, s{sW}, 1
    s_lshl_b32 s64, s64, 10
    v_add_u32 v3, s64, v3
    v_xor_b32 v4, 16, v3
    ''')
    FX = 232
    g.wait('xr')
    for jx in range(4):
        e(f'v_lshlrev_b32 v{FX+2*jx}, 16, v{XRES+jx}\nv_and_b32 v{FX+1+2*jx}, 0xffff0000, v{XRES+jx}')
    c_part()
    g.stamp(29)
    for nt in range(4):
        e(f'ds_write_b128 v{8+nt}, {vr(CACC+4*nt,4)}')
    e(f'''
    s_waitcnt lgkmcnt(0)
    s_barrier
    ds_read_b128 v[24:27], v3
    ds_read_b128 v[28:31], v4
    ds_read_b128 v[32:35], v3 offset:4096
    ds_read_b128 v[36:39], v4 offset:4096
    s_waitcnt lgkmcnt(2)
    ''')
    for jx in range(4):
        e(f'v_pk_add_f32 {vr(FX+2*jx,2)}, {vr(FX+2*jx,2)}, {vr(24+2*jx,2)}')
    e('s_waitcnt lgkmcnt(0)')
    for jx in range(4):
        e(f'v_pk_add_f32 {vr(FX+2*jx,2)}, {vr(FX+2*jx,2)}, {vr(32+2*jx,2)}')
    g.items(pack_l(24, FX, FX + 4))
    g.v(f'buffer_store_dwordx4 v[24:27], v6, {S(SOUT)}, s{sXO} offen', 'out')
    e('s_branch L_END')
    a.label('L_ATT'); a.fence(2)
    g.vm = []
    sH, sOFF, sT0, sDH = 47, 48, 49, 45
    WOL = 65536
    e(f'''
    s_waitcnt lgkmcnt(0)
    s_load_dword s{sTAG}, s[{SWS}:{SWS+1}], {EPOCH_OFF}
    s_lshr_b32 s{sH}, s{sRB}, 1
    s_and_b32 s{sDH}, s{sRB}, 1
    s_mul_i32 s50, s{sH}, 7
    s_and_b32 s{sOFF}, s50, 3
    s_lshr_b32 s{sT0}, s50, 2
    v_and_b32 v4, 6, v12
    v_xor_b32 v4, v4, v13
    v_lshlrev_b32 v4, 4, v4
    v_lshrrev_b32 v2, 5, v0
    v_and_b32 v3, 3, v12
    s_min_u32 s51, s{sW}, 6
    s_lshl_b32 s51, s51, 7
    s_mul_i32 s52, s{sH}, {28*896}
    s_add_u32 s51, s51, s52
    s_lshl_b32 s52, s{sW}, 12
    s_add_u32 s52, s52, {WOL}
    s_movk_i32 s53, 896
    ''')
    for p in range(4):
        e(f'''
        v_add_u32 v6, {2*(p&1)}, v2
        v_subrev_u32 v6, s{sOFF}, v6
        v_and_b32 v6, 3, v6
        v_lshl_add_u32 v6, v6, 2, v3
        v_add_u32 v6, {16*(p>>1)}, v6
        v_min_u32 v6, 27, v6
        v_mad_u32_u24 v6, v6, s53, v4
        s_add_u32 m0, s52, {p*1024}
        buffer_load_dwordx4 v6, {S(SWO)}, s51 offen lds
        ''')
    if Opt.pf:
        e(f'''
        s_lshl_b32 s51, s{sRB}, 3
        s_add_u32 s51, s51, s{sW}
        s_mul_i32 s53, s51, 3136
        s_lshl_b32 s51, s51, 15
        ''')
        for rep in range(2 if Opt.bal else 1):
            if rep: e(f's_sub_u32 s51, s51, 32768\ns_xor_b32 s51, s51, {4<<18}\ns_waitcnt vmcnt(16)')
            for i in range(32):
                e(f'buffer_load_dwordx4 {vr(16+4*i,4)}, v5, {S(SSP)}, s51 offen offset:{(i%4)*1024}')
                if i % 4 == 3: e('s_add_u32 s51, s51, 4096')
        for i in range(4): e(f'buffer_load_dwordx4 {vr(144+4*i,4)}, v5, {S(SWT)}, s53 offen offset:{i*1024 - (960 if i == 3 else 0)}')
    e(f'''
    v_bfe_u32 v2, v0, 2, 2
    v_cmp_gt_u32 vcc, s{sOFF}, v2
    v_cndmask_b32_e64 v3, 0, 1, vcc
    v_add_u32 v3, s{sT0}, v3
    v_lshl_add_u32 v8, v3, 16, v5
    v_add_u32 v9, 0x10000, v8
    s_mul_i32 s50, s{sH}, 28
    s_lshr_b32 s51, s50, 6
    s_add_u32 s53, s50, 27
    s_lshr_b32 s53, s53, 6
    s_sub_u32 s53, s53, s51
    v_lshrrev_b32 v3, 5, v0
    v_mul_u32_u24 v3, s53, v3
    v_add_u32 v3, s51, v3
    v_lshlrev_b32 v4, 5, v3
    v_and_b32 v7, 31, v0
    v_add_u32 v6, v4, v7
    v_lshlrev_b32 v6, 7, v6
    s_mov_b32 s54, {FK_OFF}
    s_lshl_b32 s56, s{sW}, 13
    s_add_u32 s57, s56, {VD_OFF}
    s_lshl_b32 s50, s{sDH}, 16
    s_add_u32 s56, s56, s50
    s_add_u32 s56, s56, {KD_OFF}
    v_lshrrev_b32 v7, 4, v0
    s_add_u32 s50, s{sOFF}, 3
    s_and_b32 s50, s50, 3
    v_cmp_eq_u32 s[58:59], s50, v7
    v_cmp_eq_u32 s[60:61], s50, v2
    v_subrev_u32 v3, s{sOFF}, v7
    v_and_b32 v3, 3, v3
    v_lshlrev_b32 v11, 3, v3
    s_lshl_b32 s50, s{sDH}, 2
    s_and_b32 s53, s{sH}, 1
    s_add_u32 s50, s50, s53
    v_add_u32 v3, s50, v3
    v_and_b32 v4, 1, v3
    v_bfe_u32 v3, v3, 1, 2
    v_lshlrev_b32 v3, 7, v3
    v_lshl_add_u32 v3, v4, 11, v3
    v_and_b32 v4, 15, v0
    v_lshl_add_u32 v10, v4, 3, v3
    s_cmp_eq_u32 s{sDH}, 1
    s_cselect_b64 s[60:61], s[60:61], 0
    s_cselect_b64 s[64:65], s[58:59], 0
    v_bfe_u32 v12, v0, 2, 3
    v_lshrrev_b32 v7, 5, v0
    v_lshlrev_b32 v7, 10, v7
    v_lshl_add_u32 v7, v12, 7, v7
    v_and_b32 v13, 3, v0
    v_lshl_add_u32 v7, v13, 3, v7
    v_add_u32 v7, s52, v7
    v_lshrrev_b32 v12, 1, v12
    v_lshl_or_b32 v7, v12, 5, v7
    s_lshl_b32 s52, s{sW}, 16
    s_lshl_b32 s50, s{sH}, 12
    s_add_u32 s52, s52, s50
    s_add_u32 s52, s52, {M_OFF}
    s_waitcnt vmcnt(0) lgkmcnt(0)
    s_add_u32 s{sTAG}, s{sTAG}, {TAGC}
    ''')
    WF = 208
    for t in range(4):
        e(f'v_xor_b32 v12, {t*32}, v7')
        for h in range(2): e(f'ds_read_b64_tr_b16 {vr(WF+4*t+2*h,2)}, v12 offset:{h*2048}')
    g.stamp(1)
    with only(g, 0): poll_loop(g, 6, 54)
    e('s_barrier')
    g.stamp(2)
    KB = 16; VB = 80; KA = 176; ONE = 200
    for kk in range(8):
        if kk == 4: e('s_add_u32 s56, s56, 4096\ns_add_u32 s57, s57, 4096')
        g.v(f'buffer_load_dwordx4 {vr(KB+kk*4,4)}, v8, {S(SWS)}, s56 offen offset:{(kk%4)*1024} sc1', f'k{kk}')
        for X in range(2):
            g.v(f'buffer_load_dwordx4 {vr(VB+(kk*2+X)*4,4)}, v{8+X}, {S(SWS)}, s57 offen offset:{(kk%4)*1024} sc1', f'k{kk}')
    for jx in range(4): e(f'v_mov_b32 v{ONE+jx}, 0x3f803f80')
    e(f'''
    s_mul_i32 s50, s{sW}, 3072
    v_add_u32 v2, s50, v5
    s_cmp_eq_u32 s{sW}, 7
    s_cselect_b32 s50, 2048, 0
    v_add_u32 v3, s50, v5
    ''')
    for kk in range(8):
        g.wait(f'k{kk}')
        for Xe in range(3):
            d = vr(KA + Xe * 4, 4); kf = vr(KB + kk * 4, 4)
            ops = f'{vr(VB+(kk*2+Xe)*4,4)}, {kf}' if Xe < 2 else f'{kf}, {vr(ONE,4)}'
            e(f'{MF} {d}, {ops}, {"0" if kk == 0 else d}')
    for i in range(3):
        e(f'ds_write_b128 v2, {vr(KA+4*i,4)} offset:{i*1024}')
    g.stamp(3)
    e('s_waitcnt lgkmcnt(0)\ns_barrier')
    R = 16
    for w in range(8):
        for t in range(2): e(f'ds_read_b128 {vr(R+8*w+4*t,4)}, v3 offset:{w*3072 + t*1024}')
    for st_, n_ in ((32, 4), (16, 2), (8, 1)):
        for i in range(n_):
            if st_ == 32: e(f's_waitcnt lgkmcnt({6 - 2*i})')
            for p in (0, 2, 4, 6):
                e(f'v_pk_add_f32 {vr(R+8*i+p,2)}, {vr(R+8*i+p,2)}, {vr(R+8*i+p+st_,2)}')
    KF = 32
    g.items(pack_l(KF, R, R + 4))
    g.stamp(5)
    e(f's_cmp_eq_u32 s{sW}, 7\ns_cbranch_scc1 L_AZ')
    for jx in (2, 3): e(f'v_cndmask_b32_e64 v{KF+jx}, v{KF+jx}, 0, s[58:59]')
    for jx in range(4): e(f'v_cndmask_b32_e64 v{KF+jx}, v{KF+jx}, 0, s[60:61]')
    for nt in range(4): e(f'{MF} {vr(48+4*nt,4)}, {vr(KF,4)}, {vr(WF+4*nt,4)}, 0')
    for nt in range(4):
        r = 48 + 4 * nt
        e(f'v_cvt_pk_bf16_f32 v{r}, v{r}, v{r+1}\nv_cvt_pk_bf16_f32 v{r+1}, v{r+2}, v{r+3}')
        e(f'buffer_store_dwordx2 {vr(r,2)}, v10, {S(SWS)}, s52 offen offset:{nt*512} sc1')
    e('s_branch L_AF')
    a.label('L_AZ'); a.fence(2)
    e(f'''
    v_cndmask_b32_e64 v{KF}, v{KF}, 0, s[64:65]
    v_cndmask_b32_e64 v{KF+1}, v{KF+1}, 0, s[64:65]
    s_lshl_b32 s50, s{sRB}, 7
    s_add_u32 s50, s50, {ZT_OFF}
    s_mov_b32 exec_lo, 0x00010001
    s_mov_b32 exec_hi, 0x00010001
    buffer_store_dwordx2 {vr(KF,2)}, v11, {S(SWS)}, s50 offen sc1
    s_mov_b64 exec, -1
    ''')
    a.label('L_AF'); a.fence(2)
    e(f'''
    s_waitcnt vmcnt(0)
    s_barrier
    s_cmp_lg_u32 s{sW}, 0
    s_cbranch_scc1 L_END
    v_lshlrev_b32 v2, 12, v0
    v_mov_b32 v14, s{sTAG}
    s_lshl_b32 s53, s{sRB}, 7
    s_add_u32 s53, s53, {FM_OFF}
    s_mov_b32 exec_hi, 0
    buffer_store_dword v14, v2, {S(SWS)}, s53 offen sc1
    s_mov_b64 exec, -1
    ''')
    g.stamp(6)
    e(f'''
    s_cmp_lg_u32 s{sRB}, 0
    s_cbranch_scc1 L_END
    v_and_b32 v2, 31, v0
    v_lshlrev_b32 v2, 7, v2
    s_mov_b32 s57, {FM_OFF}
    ''')
    poll_loop(g, 2, 57)
    e(f's_mov_b32 s57, {EPOCH_OFF}')
    flag_store(g, 57)
    a.label('L_END')
    if Opt.hold >= 0:
        g.stamp(30)
        e('''
        L_HOLD:
        s_sleep 4
        s_memrealtime s[96:97]
        s_waitcnt lgkmcnt(0)
        s_sub_u32 s96, s96, s94
        s_cmp_lt_u32 s96, 6000
        s_cbranch_scc1 L_HOLD
        ''')
    if Opt.stamp:
        g.stamp(30)
        e('s_waitcnt vmcnt(0)')
        g.stamp(31)
        e(f'''
        s_memrealtime s[96:97]
        s_waitcnt lgkmcnt(0)
        v_writelane_b32 v15, s94, 0
        v_writelane_b32 v15, s98, 32
        v_writelane_b32 v15, s96, 33
        s_lshl_b32 s96, s2, 3
        s_add_u32 s96, s96, s{sW}
        s_lshl_b32 s96, s96, 8
        s_add_u32 s96, s96, {DBG_OFF}
        v_lshlrev_b32 v14, 2, v0
        buffer_store_dword v15, v14, {S(SWS)}, s96 offen
        ''')
    a.label('L_EXIT')
    e('s_endpgm')
    head = '; @launch grid=(256,1,1) block=(512,1,1) lds=163840\n'
    tail = f'''.section .rodata,"a"
.p2align 6
.amdhsa_kernel {KNAME}
  .amdhsa_next_free_vgpr 256
  .amdhsa_next_free_sgpr 102
  .amdhsa_accum_offset 256
  .amdhsa_group_segment_fixed_size 0
  .amdhsa_kernarg_size 88
  .amdhsa_user_sgpr_count 2
  .amdhsa_user_sgpr_kernarg_segment_ptr 1
  .amdhsa_system_sgpr_workgroup_id_x 1
.end_amdhsa_kernel
'''
    return head + a.text() + tail

if __name__ == '__main__':
    for o in sys.argv[2:]:
        k, _, v = o.partition('=')
        assert hasattr(Opt, k), k
        setattr(Opt, k, v if isinstance(getattr(Opt, k), str) else (int(v) if v else 1))
    open(sys.argv[1], 'w').write(gen())
```

```python
import sys, math
from asmlib import *

KNAME = 'parallel_sum__linear_attn_block__mixer_gmlp__prompt_kernel'
FS = 128
FZ_OFF = 0; FK_OFF = 0x8000; FU_OFF = 0x18000; FM_OFF = 0x20000
EPOCH_OFF = 0x40000
ZT_OFF  = 0x48000
ST_OFF  = 0x80000
Z2_OFF  = 0x100000
KD_OFF  = 0x480000
VD_OFF  = 0x640000
PQ_OFF  = 0x800000
ACT_OFF = 0x9C0000
M_OFF   = 0xD40000
DBG_OFF = 0x1000000
WS_SIZE = 0x1100000
SL = 8192; NS = 19; MISC = NS * SL; XNS = 12
TAGC = 0x9E3779B9

LOG2E = 1.4426950408889634
GC0 = -2.0 * math.sqrt(2.0 / math.pi) * LOG2E
GC1 = GC0 * 0.044715

SX, SQ, SI, SWS, SSP, SBS, SWO, SWT, SOUT = 4, 8, 12, 16, 20, 24, 28, 32, 36
def S(b): return f's[{b}:{b+3}]'
sW, sRB, sJ, sTAG, sCQ, sKH, sW1K, sHB = 40, 41, 42, 43, 44, 45, 46, 47
sZB, sQB, sSP, sROT, sKS, sP = 48, 49, 50, 51, 52, 53
sO3, sU3, sZ2B, sACT, sXO = 54, 55, 56, 57, 58
sRC, sJC = 70, 71

class Opt:
    stamp = 0
    pk = 1
    rot = 0
    pf = 1
    slp = 8
    hold = -1
    sgi = 9
    sgc = 11
    sfz = 14
    spi = 18
    zd = 8
    n3 = 1
    ipq = 27
    npq = 0
    upi = 1
    cm = 1
    im = 24
    nm = 3
    iwm = 29
    uw = 4
    od0 = 0
    odn = 3
    wpre = 5
    dbg = 0
    fc = 0
    ad = 6
    iw3 = 28
    bal = 0
    ord = 1
    w0 = 4
    prio = 0
    rt = 0
    eg = 1
    d0 = 0
    bs = ''
    rpg = 4
    ft = -1
    fs = -1

class G:
    def __init__(self):
        self.a = Asm(); self.vm = []; self.nl = 0; self.sg = None
    def e(self, t): self.a.e(t)
    def v(self, text, tag=None):
        self.a.e(text); self.vm.append((tag, 1, self.sg, ' lds' in text))
    def mark(self, tag): self.vm.append((tag, 0, self.sg, False))
    def count(self, tag):
        idx = max(i for i, t in enumerate(self.vm) if t[0] == tag)
        T = self.vm[idx]
        return idx, sum(t[1] for t in self.vm[idx + 1:] if not (T[2] is not None and t[2] == T[2] and t[3] != T[3]))
    def wait(self, tag, extra='', keep=False):
        if not self.has(tag):
            if extra: self.a.e(f's_waitcnt {extra}')
            return
        idx, n = self.count(tag)
        assert n <= 63, n
        self.a.e(f's_waitcnt vmcnt({n}) {extra}')
        if not keep:
            T = self.vm[idx]
            self.vm = [t for t in self.vm[:idx] if T[2] is not None and t[2] == T[2] and t[3] != T[3]] + self.vm[idx + 1:]
    def has(self, tag): return any(t[0] == tag for t in self.vm)
    def item(self, it):
        if callable(it): it()
        elif isinstance(it, tuple): self.v(it[0], it[1])
        else: self.e(it)
    def items(self, L):
        for it in L: self.item(it)
    def lab(self, p):
        self.nl += 1; return f'{p}_{self.nl}'
    def stamp(self, idx):
        if Opt.hold == idx:
            self.e('s_memrealtime s[94:95]\ns_waitcnt lgkmcnt(0)')
        if Opt.stamp:
            self.e(f's_memtime s[96:97]\ns_waitcnt lgkmcnt(0)\nv_writelane_b32 v15, s96, {idx}')

def spread(g, prim, sec):
    sec = list(sec); n = len(prim)
    for i, p in enumerate(prim):
        g.item(p)
        k = -(-len(sec) // (n - i))
        for _ in range(k): g.item(sec.pop(0))

class only:
    def __init__(self, g, w): self.g = g; self.w = w
    def __enter__(self):
        self.K = self.g.lab('OW')
        self.g.e(f's_cmp_lg_u32 s{sW}, {self.w}\ns_cbranch_scc1 {self.K}')
        self.h = list(self.g.a.hist)
    def __exit__(self, *a):
        self.g.a.fence(5); self.g.a.label(self.K); self.g.a.hist = self.h

def flag_store(g, soff):
    g.e(f's_mov_b64 exec, 1\nv_mov_b32 v14, s{sTAG}\nbuffer_store_dword v14, off, {S(SWS)}, s{soff} sc1\ns_mov_b64 exec, -1')

def poll_loop(g, voff, soff, reg=14, first=True):
    L = g.lab('PL'); D = g.lab('PD'); C = g.lab('PC')
    g.e('s_movk_i32 s62, 0x1000')
    if not first: g.e(f's_branch {C}')
    g.a.label(L)
    g.e(f'buffer_load_dword v{reg}, v{voff}, {S(SWS)}, s{soff} offen sc1\ns_waitcnt vmcnt(0)')
    g.a.label(C)
    g.e(f'''
    v_cmp_ne_u32 vcc, s{sTAG}, v{reg}
    s_nop 1
    s_cbranch_vccz {D}
    s_sleep {Opt.slp}
    s_sub_u32 s62, s62, 1
    s_cbranch_scc0 {L}
    ''')
    g.a.label(D)

CON = 252
def gelu_l(regs, T, pk):
    z = list(zip(regs, [T + 2 * i for i in range(len(regs))])); L = []
    if pk:
        L += [f'v_pk_mul_f32 {vr(t,2)}, {vr(x,2)}, {vr(x,2)}' for x, t in z]
        L += [f'v_pk_fma_f32 {vr(t,2)}, {vr(t,2)}, {vr(CON+2,2)}, {vr(CON,2)}' for x, t in z]
        L += [f'v_pk_mul_f32 {vr(t,2)}, {vr(t,2)}, {vr(x,2)}' for x, t in z]
    else:
        L += [f'v_mul_f32 v{t+d}, v{x+d}, v{x+d}' for x, t in z for d in (0, 1)]
        L += [f'v_fma_f32 v{t+d}, v{t+d}, v{CON+2}, v{CON}' for x, t in z for d in (0, 1)]
        L += [f'v_mul_f32 v{t+d}, v{t+d}, v{x+d}' for x, t in z for d in (0, 1)]
    L += [f'v_exp_f32 v{t+d}, v{t+d}' for x, t in z for d in (0, 1)]
    if pk: L += [f'v_pk_add_f32 {vr(t,2)}, {vr(t,2)}, 1.0 op_sel_hi:[1,0]' for x, t in z]
    else: L += [f'v_add_f32 v{t+d}, 1.0, v{t+d}' for x, t in z for d in (0, 1)]
    L += [f'v_rcp_f32 v{t+d}, v{t+d}' for x, t in z for d in (0, 1)]
    if pk: L += [f'v_pk_mul_f32 {vr(x,2)}, {vr(x,2)}, {vr(t,2)}' for x, t in z]
    else: L += [f'v_mul_f32 v{x+d}, v{x+d}, v{t+d}' for x, t in z for d in (0, 1)]
    return L

def phi_l(x0, n, T):
    r = range(n); L = []
    L += [f'v_mul_f32 v{T+i}, {f32(LOG2E)}, v{x0+i}' for i in r]
    L += [f'v_exp_f32_e64 v{T+i}, v{T+i} clamp' for i in r]
    L += [f'v_max_f32 v{x0+i}, 0, v{x0+i}' for i in r]
    L += [f'v_add_f32 v{x0+i}, v{x0+i}, v{T+i}' for i in r]
    L += [f'v_add_f32 v{x0+i}, {f32(1e-6)}, v{x0+i}' for i in r]
    return L

def pack_l(dst, r0, r1):
    return [f'v_cvt_pk_bf16_f32 v{dst}, v{r0}, v{r0+1}', f'v_cvt_pk_bf16_f32 v{dst+1}, v{r0+2}, v{r0+3}',
            f'v_cvt_pk_bf16_f32 v{dst+2}, v{r1}, v{r1+1}', f'v_cvt_pk_bf16_f32 v{dst+3}, v{r1+2}, v{r1+3}']
def lines(t): return [x.strip() for x in t.strip().split('\n') if x.strip()]

MF = 'v_mfma_f32_16x16x32_bf16'

def gen():
    g = G(); a = g.a; e = g.e
    a.raw('.amdgcn_target "amdgcn-amd-amdhsa--gfx950"\n.text')
    a.raw(f'.globl {KNAME}\n.p2align 8\n.type {KNAME},@function\n{KNAME}:')
    if Opt.stamp:
        e('s_memrealtime s[98:99]\ns_memtime s[94:95]')
    if Opt.hold >= 0:
        e('s_memrealtime s[94:95]')
    e(f'''
    s_cmp_ge_u32 s2, 256
    s_cbranch_scc1 L_EXIT
    s_load_dwordx2 s[{SX}:{SX+1}], s[0:1], 0
    s_load_dwordx2 s[{SI}:{SI+1}], s[0:1], 32
    s_load_dwordx2 s[{SQ}:{SQ+1}], s[0:1], 8
    s_load_dwordx2 s[{SWS}:{SWS+1}], s[0:1], 80
    s_load_dwordx2 s[{SSP}:{SSP+1}], s[0:1], 40
    s_load_dwordx2 s[{SBS}:{SBS+1}], s[0:1], 48
    s_load_dwordx2 s[{SWO}:{SWO+1}], s[0:1], 16
    s_load_dwordx2 s[{SWT}:{SWT+1}], s[0:1], 56
    s_load_dwordx2 s[{SOUT}:{SOUT+1}], s[0:1], 64
    v_lshrrev_b32 v1, 6, v0
    v_and_b32 v0, 63, v0
    v_readfirstlane_b32 s{sW}, v1
    ''')
    for b, sz in ((SX, 2048*896), (SQ, 448*2688), (SI, 448*3584), (SWS, WS_SIZE), (SSP, 2048*4096), (SBS, 4096),
                  (SWO, 448*896), (SWT, 896*896), (SOUT, 2048*896)):
        e(f's_mov_b32 s{b+2}, {sz}\ns_mov_b32 s{b+3}, 0x20000')
    e(f'''
    s_and_b32 s60, s2, 3
    s_lshl_b32 s60, s60, 3
    s_bfe_u32 s61, s2, 0x30003
    s_add_u32 s{sRB}, s60, s61
    s_and_b32 s60, s2, 4
    s_lshr_b32 s61, s2, 6
    ''')
    if Opt.bal:
        e(f'''
        s_lshr_b32 s63, s2, 3
        s_and_b32 s63, s63, 4
        s_cmp_eq_u32 s61, 3
        s_cselect_b32 s63, s63, 0
        s_xor_b32 s60, s60, s63
        ''')
    e(f'''
    s_add_u32 s{sJ}, s60, s61
    ''')
    if Opt.cm:
        assert not Opt.bal
        e(f'''
        s_lshl_b32 s60, s60, 3
        s_lshr_b32 s61, s2, 3
        s_add_u32 s60, s60, s61
        s_mul_i32 s61, s60, 37
        s_lshr_b32 s61, s61, 8
        s_mul_i32 s63, s61, 7
        s_sub_u32 s{sJC}, s60, s63
        s_and_b32 s{sRC}, s{sRB}, 24
        s_add_u32 s{sRC}, s{sRC}, s61
        ''')
    else:
        e(f's_mov_b32 s{sRC}, s{sRB}\ns_mov_b32 s{sJC}, s{sJ}')
    e(f'''
    s_lshl_b32 s{sW1K}, s{sW}, 10
    v_lshrrev_b32 v12, 3, v0
    v_and_b32 v13, 7, v0
    v_lshlrev_b32 v5, 4, v0
    ''')
    if Opt.stamp:
        e('v_mov_b32 v15, 0')
    e(f'''
    s_cmp_eq_u32 s{sJ}, 7
    s_cbranch_scc1 L_ATT
    v_mul_u32_u24 v4, 896, v12
    v_lshl_add_u32 v4, v13, 4, v4
    s_lshl_b32 s60, s{sRB}, 3
    s_add_u32 s60, s60, s{sW}
    s_mul_i32 s60, s60, {8*896}
    s_and_b32 s{sCQ}, s{sW}, 3
    s_lshr_b32 s{sKH}, s{sW}, 2
    s_lshr_b32 s{sHB}, s{sCQ}, 1
    v_and_b32 v6, 3, v12
    v_lshrrev_b32 v7, 2, v12
    v_lshl_add_u32 v6, v7, 3, v6
    v_and_b32 v7, 6, v12
    v_xor_b32 v7, v7, v13
    v_lshlrev_b32 v7, 4, v7
    v_mul_u32_u24 v1, 3584, v6
    v_add_u32 v1, v1, v7
    v_mul_u32_u24 v2, 2688, v6
    v_add_u32 v2, v2, v7
    s_lshl_b32 s61, s{sKH}, 5
    s_lshl_b32 s63, s{sHB}, 4
    s_add_u32 s61, s61, s63
    s_and_b32 s63, s{sW}, 1
    s_lshl_b32 s63, s63, 2
    s_add_u32 s61, s61, s63
    s_mul_i32 s{sZB}, s61, 3584
    s_lshl_b32 s63, s{sJ}, 8
    s_add_u32 s{sZB}, s{sZB}, s63
    s_mul_i32 s{sQB}, s61, 2688
    s_lshl_b32 s63, s{sJ}, 7
    s_add_u32 s{sQB}, s{sQB}, s63
    s_waitcnt lgkmcnt(0)
    ''')
    XR = 16
    for i in range(7):
        g.v(f'buffer_load_dwordx4 {vr(XR+4*i,4)}, v4, {S(SX)}, s60 offen offset:{i*128}', f'x{i}')
    e(f's_load_dword s{sTAG}, s[{SWS}:{SWS+1}], {EPOCH_OFF}')
    blocks = []
    for s in range(7): blocks += [('z', 1792 + cb * 128, s) for cb in range(2)]
    for s in range(7): blocks += [('q', off, s) for off in (896, 1792, 0)]
    for s in range(7): blocks += [('z', cb * 128, s) for cb in range(2)]
    NW = len(blocks)
    blocks += [('s', i) for i in range(32)]
    N3 = len(blocks)
    blocks += [('y', yy) for yy in range(14)]
    free = list(range(XNS)); slot = {}; st = {'next': 0}
    def dma(n):
        b = blocks[n]; sl = free.pop(0); slot[n] = sl
        m0 = f's_add_u32 m0, s{sW1K}, {sl*SL}\n'
        if b[0] == 'z':
            t = f'{m0}s_add_u32 s61, s{sZB}, {b[1] + b[2]*64*3584}\nbuffer_load_dwordx4 v1, {S(SI)}, s61 offen lds'
        elif b[0] == 'q':
            t = f'{m0}s_add_u32 s61, s{sQB}, {b[1] + b[2]*64*2688}\nbuffer_load_dwordx4 v2, {S(SQ)}, s61 offen lds'
        elif b[0] == 's':
            t = (f'{m0}s_add_u32 s61, s{sROT}, {b[1]*128}\ns_and_b32 s61, s61, 0xfff\ns_add_u32 s61, s61, s{sSP}\n'
                 f'buffer_load_dwordx4 v3, {S(SSP)}, s61 offen lds')
        else:
            t = f'{m0}s_add_u32 s61, s{sU3}, {b[1]*64*896}\nbuffer_load_dwordx4 v1, {S(SWT)}, s61 offen lds'
        return (t, f'b{n}')
    def dmas(limit, maxn=99):
        L = []
        while free and st['next'] < limit and len(L) < maxn:
            L.append(dma(st['next'])); st['next'] += 1
        return L
    def bwait(n, extra=''):
        assert n < st['next'], n
        g.wait(f'b{n}', extra)
    assert Opt.sgc <= 13
    g.stamp(27)
    e('s_barrier')
    g.items(dmas(N3, Opt.w0))
    g.stamp(28)
    XF = 48; AC = 104; M = 108
    e(f's_mov_b32 s63, 0x3f803f80')
    for jx in range(4): e(f'v_mov_b32 v{AC+jx}, 0')
    e(f'''
    s_lshl_b32 s64, s{sKH}, 5
    s_lshl_b32 s65, s{sCQ}, 2
    s_add_u32 s64, s64, s65
    v_lshrrev_b32 v6, 5, v0
    v_lshlrev_b32 v6, 4, v6
    v_and_b32 v7, 3, v12
    v_add3_u32 v6, v6, v7, s64
    v_lshlrev_b32 v7, 7, v6
    v_bfe_u32 v6, v6, 1, 3
    v_xor_b32 v6, v6, v13
    v_lshl_add_u32 v7, v6, 4, v7
    v_add_u32 v112, {XNS*SL}, v7
    ''')
    e(f'''
    v_and_b32 v8, 15, v0
    v_lshrrev_b32 v6, 4, v0
    v_lshrrev_b32 v7, 1, v8
    v_xor_b32 v6, v6, v7
    v_lshlrev_b32 v6, 4, v6
    v_lshl_add_u32 v6, v8, 7, v6
    s_lshl_b32 s64, s{sKH}, 12
    s_add_u32 s64, s64, {XNS*SL}
    v_add_u32 v6, s64, v6
    v_xor_b32 v7, 64, v6
    ''')
    e(f'''
    v_bfe_u32 v9, v0, 2, 3
    v_lshrrev_b32 v10, 5, v0
    v_lshlrev_b32 v10, 11, v10
    v_lshl_add_u32 v10, v9, 7, v10
    v_and_b32 v8, 3, v0
    v_lshl_add_u32 v10, v8, 3, v10
    v_lshrrev_b32 v9, 1, v9
    v_lshlrev_b32 v9, 5, v9
    v_or_b32 v10, v10, v9
    s_and_b32 s64, s{sCQ}, 1
    s_lshl_b32 s64, s64, 6
    v_xor_b32 v8, s64, v10
    v_xor_b32 v9, 32, v8
    s_lshl_b32 s64, s{sCQ}, 5
    v_xor_b32 v10, s64, v10
    v_mov_b32 v{CON}, {f32(GC0)}
    v_mov_b32 v{CON+1}, {f32(GC0)}
    v_mov_b32 v{CON+2}, {f32(GC1)}
    v_mov_b32 v{CON+3}, {f32(GC1)}
    ''')
    e(f'''
    s_lshl_b32 s{sSP}, s{sRB}, 6
    s_lshl_b32 s64, s{sKH}, 5
    s_add_u32 s{sSP}, s{sSP}, s64
    s_lshl_b32 s64, s{sHB}, 2
    s_add_u32 s{sSP}, s{sSP}, s64
    s_and_b32 s64, s{sW}, 1
    s_lshl_b32 s65, s64, 4
    s_add_u32 s{sSP}, s{sSP}, s65
    s_and_b32 s{sXO}, s{sSP}, 63
    s_lshl_b32 s65, s{sRC}, 6
    s_add_u32 s{sXO}, s{sXO}, s65
    s_mul_i32 s{sXO}, s{sXO}, 896
    s_lshl_b32 s65, s{sJC}, 7
    s_add_u32 s{sXO}, s{sXO}, s65
    s_lshl_b32 s{sSP}, s{sSP}, 12
    s_lshl_b32 s64, s64, 2
    v_lshrrev_b32 v14, 4, v0
    v_add_u32 v14, s64, v14
    v_xor_b32 v14, v14, v0
    v_and_b32 v14, 7, v14
    v_lshlrev_b32 v14, 4, v14
    v_lshrrev_b32 v3, 5, v0
    v_lshl_add_u32 v14, v3, 15, v14
    v_bfe_u32 v3, v0, 3, 2
    v_lshl_add_u32 v3, v3, 12, v14
    s_lshl_b32 s{sKS}, s{sRB}, 1
    s_add_u32 s{sKS}, s{sKS}, s{sKH}
    s_lshl_b32 s{sP}, s{sJ}, 2
    s_add_u32 s{sP}, s{sP}, s{sCQ}
    ''')
    if Opt.rot: e(f's_and_b32 s{sROT}, s{sRB}, 7\ns_lshl_b32 s{sROT}, s{sROT}, 9')
    else: e(f's_mov_b32 s{sROT}, 0')
    for i in range(7):
        g.wait(f'x{i}')
        if i == 0: g.stamp(1)
        for jx in range(4):
            k = 4 * i + jx
            e(f'v_dot2c_f32_bf16 v{AC+(jx&1)}, s63, v{XR+k}')
            e(f'v_dot2c_f32_bf16 v{AC+2+(jx&1)}, v{XR+k}, v{XR+k}')
        if i < 6:
            for jx in range(4):
                k = 4 * i + jx
                e(f'v_lshlrev_b32 v{XF+2*k}, 16, v{XR+k}\nv_and_b32 v{XF+2*k+1}, 0xffff0000, v{XR+k}')
        if i >= 2: g.items(dmas(N3, 1))
    un = []
    for k in range(24, 28): un += [f'v_lshlrev_b32 v{XF+2*k}, 16, v{XR+k}', f'v_and_b32 v{XF+2*k+1}, 0xffff0000, v{XR+k}']
    e(un.pop(0)); e(un.pop(0))
    e(f'v_add_f32 v{AC}, v{AC}, v{AC+1}\nv_add_f32 v{AC+2}, v{AC+2}, v{AC+3}')
    for dp in ('quad_perm:[1,0,3,2]', 'quad_perm:[2,3,0,1]', 'row_half_mirror'):
        e(un.pop(0))
        e(f'v_add_f32_dpp v{AC}, v{AC}, v{AC} {dp} row_mask:0xf bank_mask:0xf')
        e(f'v_add_f32_dpp v{AC+2}, v{AC+2}, v{AC+2} {dp} row_mask:0xf bank_mask:0xf')
    e(f'''
    v_mul_f32 v{AC}, {f32(1.0/448)}, v{AC}
    v_mul_f32 v{AC+2}, {f32(1.0/448)}, v{AC+2}
    v_fma_f32 v{AC+2}, -v{AC}, v{AC}, v{AC+2}
    v_max_f32 v{AC+2}, 0, v{AC+2}
    v_add_f32 v{AC+2}, {f32(1e-5)}, v{AC+2}
    v_rsq_f32 v{M}, v{AC+2}
    ''')
    for u_ in un: e(u_)
    e(f'v_mul_f32 v{M+2}, -v{AC}, v{M}\nv_mov_b32 v{M+1}, v{M}\nv_mov_b32 v{M+3}, v{M+2}')
    for i in range(7):
        for jx in range(4):
            k = 4 * i + jx
            if Opt.pk: e(f'v_pk_fma_f32 {vr(XF+2*k,2)}, {vr(XF+2*k,2)}, {vr(M,2)}, {vr(M+2,2)}')
            else: e(f'v_fma_f32 v{XF+2*k}, v{XF+2*k}, v{M}, v{M+2}\nv_fma_f32 v{XF+2*k+1}, v{XF+2*k+1}, v{M}, v{M+2}')
        for jx in range(4):
            k = 4 * i + jx
            e(f'v_cvt_pk_bf16_f32 v{XR+k}, v{XF+2*k}, v{XF+2*k+1}')
        e(f'ds_write_b128 v112, {vr(XR+4*i,4)} offset:{i*SL}')
        g.items(dmas(N3, 1))
    fb = 1 if not Opt.bs else min(int(x) for x in Opt.bs.split(','))
    g.wait(f'b{2*fb+1}', 'lgkmcnt(0)')
    e(f's_add_u32 s{sTAG}, s{sTAG}, {TAGC}')
    g.stamp(2)
    e('s_barrier')
    g.stamp(3)
    AF = 16; BF = 128; Y = 176; A1 = 192; TM = 216
    def af(ks, Tl): return AF + (ks * 2 + Tl) * 4
    def kind(S_): return S_ // 7
    def sblocks(S_):
        p, s = divmod(S_, 7)
        return [2*s, 2*s+1] if p == 0 else ([14+3*s+i for i in range(3)] if p == 1 else [35+2*s, 36+2*s])
    def bf(S_, u, f): return BF + (S_ & 1) * 24 + (u * 3 + f) * 4
    def a_reads(s):
        return [f'ds_read_b128 {vr(af(2*s+u,Tl),4)}, v{6+u} offset:{s*SL + Tl*2048}' for u in range(2) for Tl in range(2)]
    def b_addr(S_):
        bl = sblocks(S_)
        if kind(S_) == 1:
            return [f'v_add_u32 v{11+f}, {slot[bl[f]]*SL}, v10' for f in range(3)]
        o0, o1 = slot[bl[0]] * SL, slot[bl[1]] * SL
        return [f's_mul_i32 s64, s{sHB}, {o1-o0}\ns_add_u32 s64, s64, {o0}\nv_add_u32 v11, s64, v8\nv_add_u32 v12, s64, v9']
    def b_reads(S_):
        L = []; nf = 3 if kind(S_) == 1 else 2
        for u in range(2):
            for f in range(nf):
                for h in range(2):
                    L.append(f'ds_read_b64_tr_b16 {vr(bf(S_,u,f)+2*h,2)}, v{11+f} offset:{u*4096 + h*1024}')
        return L
    def y(Tl, f): return Y + (Tl * 2 + f) * 4
    def mfmas(S_):
        p, s = divmod(S_, 7); L = []
        for u in range(2):
            for f in range(3 if p == 1 else 2):
                for Tl in range(2):
                    d = vr(A1 + f * 8 + Tl * 4, 4) if p == 1 else vr(y(Tl, f), 4)
                    xa = vr(af(2*s+u, Tl), 4); wb = vr(bf(S_, u, f), 4)
                    cc = '0' if (s == 0 and u == 0) else d
                    od = (p == 0) or (p == 1 and f < 2)
                    L.append(f'{MF} {d}, {xa}, {wb}, {cc}' if od else f'{MF} {d}, {wb}, {xa}, {cc}')
        return L
    pre = {}; post = {}; fill = {S_: [] for S_ in range(21)}
    def stats_pub():
        with only(g, 0):
            e(f'''
            v_lshlrev_b32 v14, 3, v0
            v_add_u32 v14, {MISC}, v14
            ds_read_b64 v[{TM}:{TM+1}], v14
            ds_read_b64 v[{TM+2}:{TM+3}], v14 offset:512
            ds_read_b64 v[{TM+4}:{TM+5}], v14 offset:1024
            ds_read_b64 v[{TM+6}:{TM+7}], v14 offset:1536
            s_lshl_b32 s64, s{sRB}, 3
            s_add_u32 s64, s64, s{sJ}
            s_lshl_b32 s64, s64, 10
            s_add_u32 s64, s64, {ST_OFF}
            s_waitcnt lgkmcnt(0)
            v_pk_add_f32 v[{TM}:{TM+1}], v[{TM}:{TM+1}], v[{TM+2}:{TM+3}]
            v_pk_add_f32 v[{TM+4}:{TM+5}], v[{TM+4}:{TM+5}], v[{TM+6}:{TM+7}]
            v_mov_b32 v{TM+2}, s{sTAG}
            v_mov_b32 v{TM+3}, s{sTAG}
            v_pk_add_f32 v[{TM}:{TM+1}], v[{TM}:{TM+1}], v[{TM+4}:{TM+5}]
            buffer_store_dwordx4 v[{TM}:{TM+3}], v5, {S(SWS)}, s64 offen sc1
            ''')
    post[7] = [stats_pub]
    def stat_loads():
        e(f's_lshl_b32 s66, s{sRB}, 13\ns_add_u32 s66, s66, {ST_OFF}\ns_add_u32 s67, s66, 4096')
        for n in range(7):
            e(f'buffer_load_dwordx4 {vr(TM+4*n,4)}, v5, {S(SWS)}, s{66 if n < 4 else 67} offen offset:{(n%4)*1024} sc1')
    def stats_issue():
        with only(g, 1): stat_loads()
        g.mark('sl')
    post.setdefault(Opt.sgi, []).append(stats_issue)
    def stats_check():
        with only(g, 1):
            LR = g.lab('SR'); LD = g.lab('SK')
            e('s_movk_i32 s62, 0x1000')
            g.wait('sl', keep=True)
            a.label(LR)
            tg = [TM + 4 * n + d for n in range(7) for d in (2, 3)]
            for op, dst in (('max', 244), ('min', 245)):
                e(f'v_{op}3_u32 v{dst}, v{tg[0]}, v{tg[1]}, v{tg[2]}')
                for i in range(3, 13, 2): e(f'v_{op}3_u32 v{dst}, v{dst}, v{tg[i]}, v{tg[i+1]}')
                e(f'v_{op}_u32 v{dst}, v{dst}, v{tg[13]}')
            e(f'''
            v_xor_b32 v244, s{sTAG}, v244
            v_xor_b32 v245, s{sTAG}, v245
            v_or_b32 v244, v244, v245
            v_cmp_ne_u32 vcc, 0, v244
            s_nop 1
            s_cbranch_vccz {LD}
            s_sub_u32 s62, s62, 1
            s_cbranch_scc1 {LD}
            s_sleep 1
            ''')
            stat_loads()
            e(f's_waitcnt vmcnt(0)\ns_branch {LR}')
            a.label(LD)
            for d in (0, 1):
                r = TM + d
                e(f'''
                v_add_f32 v{r}, v{r}, v{r+4}
                v_add_f32 v{r+8}, v{r+8}, v{r+12}
                v_add_f32 v{r+16}, v{r+16}, v{r+20}
                v_add_f32 v{r}, v{r}, v{r+24}
                v_add_f32 v{r+8}, v{r+8}, v{r+16}
                v_add_f32 v{r}, v{r}, v{r+8}
                ''')
            e(f'''
            v_mul_f32 v{TM}, {f32(1.0/896)}, v{TM}
            v_mul_f32 v{TM+1}, {f32(1.0/896)}, v{TM+1}
            v_fma_f32 v{TM+1}, -v{TM}, v{TM}, v{TM+1}
            v_max_f32 v{TM+1}, 0, v{TM+1}
            v_add_f32 v{TM+1}, {f32(1e-5)}, v{TM+1}
            v_rsq_f32 v{TM+1}, v{TM+1}
            v_lshlrev_b32 v14, 2, v0
            v_add_u32 v14, {MISC + 2048}, v14
            v_mul_f32 v{TM}, -v{TM}, v{TM+1}
            ds_write2_b32 v14, v{TM+1}, v{TM} offset1:64
            s_waitcnt lgkmcnt(0)
            ''')
        g.stamp(6)
    pre.setdefault(Opt.sgc, []).append(stats_check)
    def norm_reads():
        e(f'''
        v_lshrrev_b32 v14, 4, v0
        v_lshlrev_b32 v14, 5, v14
        s_lshl_b32 s64, s{sKH}, 7
        s_add_u32 s64, s64, {MISC + 2048}
        v_add_u32 v14, s64, v14
        ds_read_b128 {vr(TM,4)}, v14
        ds_read_b128 {vr(TM+4,4)}, v14 offset:16
        ds_read_b128 {vr(TM+8,4)}, v14 offset:256
        ds_read_b128 {vr(TM+12,4)}, v14 offset:272
        s_lshl_b32 s{sZ2B}, s{sP}, 17
        s_add_u32 s{sZ2B}, s{sZ2B}, {Z2_OFF}
        s_lshl_b32 s66, s{sKS}, 11
        s_add_u32 s66, s66, s{sZ2B}
        s_lshl_b32 s64, s{sKH}, 11
        s_add_u32 s{sZ2B}, s{sZ2B}, s64
        ''')
    post.setdefault(Opt.sgc, []).append(norm_reads)
    nl = []
    for f in range(2):
        for Tl in range(2):
            nl += [f'v_fma_f32 v{y(Tl,f)+d}, v{y(Tl,f)+d}, v{TM+4*Tl+d}, v{TM+8+4*Tl+d}' for d in range(4)]
        nl += pack_l(TM + 16 + 4 * f, y(0, f), y(1, f))
        nl.append((f'buffer_store_dwordx4 {vr(TM+16+4*f,4)}, v5, {S(SWS)}, s66 offen offset:{f*1024} sc1', 'z2'))
    first = {Opt.sgc: nl}
    pre.setdefault(Opt.sfz, []).append(lambda: g.wait('z2'))
    def zflag():
        with only(g, 2):
            e(f's_lshl_b32 s64, s{sJ}, 5\ns_add_u32 s64, s64, s{sRB}\ns_lshl_b32 s64, s64, 7\ns_add_u32 s64, s64, {FZ_OFF}')
            flag_store(g, 64)
        g.stamp(8)
    post.setdefault(Opt.sfz, []).append(zflag)
    ep = lines(f'''
    s_lshl_b32 s68, s{sP}, 16
    s_lshl_b32 s69, s{sKS}, 10
    s_add_u32 s68, s68, s69
    s_add_u32 s68, s68, {VD_OFF}
    ''')
    ep += pack_l(TM + 8, A1 + 8, A1 + 12)
    ep.append((f'buffer_store_dwordx4 {vr(TM+8,4)}, v5, {S(SWS)}, s68 offen sc1', 'kv'))
    ep += phi_l(A1, 8, TM) + pack_l(TM + 12, A1, A1 + 4)
    ep.append((f's_sub_u32 s68, s68, {VD_OFF - KD_OFF}\nbuffer_store_dwordx4 {vr(TM+12,4)}, v5, {S(SWS)}, s68 offen sc1', 'kv'))
    ep += phi_l(A1 + 16, 8, TM) + pack_l(TM + 8, A1 + 16, A1 + 20)
    ep += lines(f'''
    v_bfe_u32 v4, v0, 4, 1
    v_mul_u32_u24 v4, 14336, v4
    v_lshrrev_b32 v14, 5, v0
    v_lshl_add_u32 v4, v14, 8, v4
    v_and_b32 v14, 15, v0
    v_lshl_add_u32 v4, v14, 4, v4
    v_permlane16_swap_b32 v{TM+8}, v{TM+10}
    v_permlane16_swap_b32 v{TM+9}, v{TM+11}
    ''')
    ep.append((f's_mul_i32 s68, s{sKS}, 56\ns_add_u32 s68, s68, s{sP}\ns_lshl_b32 s68, s68, 9\ns_add_u32 s68, s68, {PQ_OFF}\n'
               f'buffer_store_dwordx4 {vr(TM+8,4)}, v4, {S(SWS)}, s68 offen sc1', 'kv'))
    nst = 5
    per = -(-len(ep) // nst)
    for i in range(nst): fill[14 + i] += ep[i * per:(i + 1) * per]
    BS = 240
    fill[19] += lines(f'''
    v_bfe_u32 v14, v0, 2, 2
    v_lshlrev_b32 v14, 4, v14
    v_and_b32 v4, 3, v0
    v_lshl_add_u32 v14, v4, 1, v14
    s_lshl_b32 s68, s{sKS}, 6
    ''')
    fill[19] += [(f'buffer_load_ushort v{BS+2*Tl}, v14, {S(SBS)}, s68 offen offset:{Tl*8}', 'bs') for Tl in range(2)]
    PB = 246
    fill[20] += lines(f'''
    s_lshl_b32 s68, s{sKH}, 6
    v_xor_b32 v{PB}, s68, v6
    v_subrev_u32 v{PB}, {XNS*SL}, v{PB}
    v_xor_b32 v{PB+1}, 4096, v{PB}
    v_add_u32 v{PB+2}, {7*SL}, v{PB}
    v_add_u32 v{PB+3}, {7*SL}, v{PB+1}
    v_add_u32 v{PB+4}, {14*SL}, v{PB}
    v_add_u32 v{PB+5}, {14*SL}, v{PB+1}
    s_lshl_b32 s69, s{sROT}, 5
    ''')
    def zpoll_issue():
        with only(g, 3):
            e(f'''
            v_and_b32 v244, 31, v0
            v_lshlrev_b32 v244, 7, v244
            s_lshl_b32 s59, s{sJ}, 12
            s_add_u32 s59, s59, {FZ_OFF}
            buffer_load_dword v245, v244, {S(SWS)}, s59 offen sc1
            ''')
        g.mark('zp')
    g.items(b_addr(0) + a_reads(0) + b_reads(0) + b_addr(1))
    BS_ = set(range(1, 21)) if not Opt.bs else set(int(x) for x in Opt.bs.split(','))
    assert {7, Opt.sgc, Opt.sfz} <= BS_
    lastb = -1
    for S_ in range(21):
        nbs = min([b for b in BS_ if b > S_] + [20])
        if S_ not in BS_:
            e('s_waitcnt lgkmcnt(0)')
            assert S_ not in pre
            g.items(post.get(S_, []))
        else:
            nb = sblocks(nbs)[-1]
            fine = Opt.fs >= 0 and Opt.fs <= S_ < Opt.fs + 10
            if fine: g.stamp(34 + 3 * (S_ - Opt.fs))
            bwait(nb, 'lgkmcnt(0)')
            g.items(pre.get(S_, []))
            if fine: g.stamp(35 + 3 * (S_ - Opt.fs))
            e('s_barrier')
            if fine: g.stamp(36 + 3 * (S_ - Opt.fs))
            for t in range(lastb + 1, S_ + 1):
                free.extend(slot[n] for n in sblocks(t))
                if t < 7: free.append(XNS + t)
            lastb = S_
            g.items(post.get(S_, []))
        if S_ in (7, 14): g.stamp(5 if S_ == 7 else 7)
        M_ = mfmas(S_)
        rd = []
        if S_ < 20: rd = b_reads(S_ + 1)
        if S_ < 6: rd += a_reads(S_ + 1)
        dm = dmas(N3, -(-len(free) // max(1, min([b for b in BS_ if b > S_] + [21]) - S_)))
        ad = b_addr(S_ + 2) if S_ < 19 else []
        if Opt.dbg & 1: rd = [r for r in rd if 'b128' not in r]
        if Opt.dbg & 2: rd = []
        if Opt.dbg & 4:
            for t in dm: g.mark(t[1])
            dm = []
        fl = list(fill[S_])
        hd = []
        if Opt.ord == 5:
            pass
        elif S_ in first:
            hd = M_[:1] + rd[:4] + M_[1:2] + rd[4:8] + [f's_waitcnt lgkmcnt({min(len(rd), 8)})']
            M_ = M_[2:]; rd = rd[8:]; fl = first[S_] + fl
        while rd and Opt.ord != 5:
            hd += M_[:1] + rd[:Opt.rpg]; M_ = M_[1:]; rd = rd[Opt.rpg:]
        def grp(cond, L):
            if not L: return
            K = g.lab('AS')
            e(f's_bitcmp1_b32 s{sW}, 2\ns_cbranch_scc{cond} {K}')
            h = list(a.hist)
            for t in L: e(t if isinstance(t, str) else t[0])
            a.label(K); a.hist = h
        if Opt.ord == 1:
            tp = []
            def T(nm):
                if Opt.ft == S_ and len(tp) < 11:
                    e(f's_memtime s[{72+2*len(tp)}:{73+2*len(tp)}]'); tp.append(nm)
            T('start')
            g.items(hd)
            T('hd')
            k = -(-len(fl) // len(M_)); sec = []
            for i, m_ in enumerate(M_):
                g.item(m_)
                if dm and (i < len(M_) - 1):
                    T('m'); g.item(dm.pop(0)); T('d')
                g.items(fl[:k]); fl = fl[k:]
            g.items(dm + ad)
            T('end')
            if tp:
                print(tp)
                e('s_waitcnt lgkmcnt(0)')
                T('lg')
                e('s_waitcnt lgkmcnt(0)')
                for i in range(len(tp)): e(f'v_writelane_b32 v15, s{72+2*i}, {34+i}')
        elif Opt.ord == 2:
            g.sg = S_
            g.items(hd)
            grp(0, dm)
            spread(g, M_, fl)
            grp(1, dm)
            for t in dm: g.vm.append((t[1], 1, S_, True))
            g.items(ad)
            g.sg = None
        elif Opt.ord == 3:
            out = []
            for it in hd:
                if isinstance(it, str) and it.startswith('v_mfma') and dm: out.append(dm.pop(0))
                out.append(it)
            g.items(out)
            spread(g, M_, dm + fl)
            g.items(ad)
        elif Opt.ord == 5:
            tp = []
            def T(nm):
                if Opt.ft == S_ and len(tp) < 11:
                    e(f's_memtime s[{72+2*len(tp)}:{73+2*len(tp)}]'); tp.append(nm)
            T('start')
            if S_ in first:
                g.items(M_[:2]); M_ = M_[2:]
                e('s_waitcnt lgkmcnt(0)')
                fl = first[S_] + fl
            grp(1 - Opt.eg, rd)
            T('r0')
            n = len(M_); nd = len(dm)
            dpos = [min(n - 1, Opt.d0 + (i * (n - Opt.d0)) // nd) for i in range(nd)]
            k = -(-len(fl) // n)
            for i, m_ in enumerate(M_):
                if i == n - Opt.rt:
                    T('m'); grp(Opt.eg, rd); T('r1')
                g.item(m_)
                for p in dpos:
                    if p == i:
                        T('m'); g.item(dm.pop(0)); T('d')
                g.items(fl[:k]); fl = fl[k:]
            if Opt.rt == 0:
                T('m'); grp(Opt.eg, rd); T('r1')
            g.items(ad)
            if tp:
                print(tp)
                e('s_waitcnt lgkmcnt(0)')
                T('lg')
                e('s_waitcnt lgkmcnt(0)')
                for i in range(len(tp)): e(f'v_writelane_b32 v15, s{72+2*i}, {34+i}')
        elif Opt.ord == 4:
            g.items(hd)
            spread(g, M_, fl)
            g.items(dm + ad)
        if S_ == Opt.spi: zpoll_issue()
        if S_ == 6:
            g.stamp(4)
            g.items(gelu_l([Y + 2 * i for i in range(8)], TM, Opt.pk))
            SS = TM + 16; QQ = TM + 24 - 0
            SS = 232; QQ = 240
            for Tl in range(2):
                for pr in range(2):
                    s_ = SS + 4 * Tl + 2 * pr; q_ = QQ + 4 * Tl + 2 * pr
                    y0 = y(Tl, 0) + 2 * pr; y1 = y(Tl, 1) + 2 * pr
                    if Opt.pk:
                        e(f'''
                        v_pk_add_f32 {vr(s_,2)}, {vr(y0,2)}, {vr(y1,2)}
                        v_pk_mul_f32 {vr(q_,2)}, {vr(y0,2)}, {vr(y0,2)}
                        v_pk_fma_f32 {vr(q_,2)}, {vr(y1,2)}, {vr(y1,2)}, {vr(q_,2)}
                        ''')
                    else:
                        for d in (0, 1):
                            e(f'v_add_f32 v{s_+d}, v{y0+d}, v{y1+d}\nv_mul_f32 v{q_+d}, v{y0+d}, v{y0+d}\nv_fmac_f32 v{q_+d}, v{y1+d}, v{y1+d}')
            O1 = TM; O2 = TM + 8
            for k, base in enumerate((SS, QQ)):
                for i in range(4):
                    e(f'v_add_f32_dpp v{O1+4*k+i}, v{base+i}, v{base+i} row_ror:8 row_mask:0xf bank_mask:0x3')
                for i in range(4):
                    e(f'v_add_f32_dpp v{O1+4*k+i}, v{base+4+i}, v{base+4+i} row_ror:8 row_mask:0xf bank_mask:0xc')
            for k in range(2):
                for i in range(2):
                    e(f'v_add_f32_dpp v{O2+2*k+i}, v{O1+4*k+i}, v{O1+4*k+i} row_ror:12 row_mask:0xf bank_mask:0x5')
                for i in range(2):
                    e(f'v_add_f32_dpp v{O2+2*k+i}, v{O1+4*k+2+i}, v{O1+4*k+2+i} row_ror:4 row_mask:0xf bank_mask:0xa')
            e(f'''
            v_lshrrev_b32 v{O1+4}, 2, v0
            v_lshlrev_b32 v{O1+4}, 4, v{O1+4}
            v_and_b32 v{O1+5}, 1, v0
            ''')
            for i in range(4):
                e(f'v_add_f32_dpp v{O2+i}, v{O2+i}, v{O2+i} quad_perm:[1,0,3,2] row_mask:0xf bank_mask:0xf')
            e(f'''
            v_lshl_add_u32 v{O1+4}, v{O1+5}, 3, v{O1+4}
            v_bfe_u32 v{O1+5}, v0, 1, 1
            ''')
            for i in range(4):
                e(f'v_add_f32_dpp v{O2+i}, v{O2+i}, v{O2+i} quad_perm:[2,3,0,1] row_mask:0xf bank_mask:0xf')
            e(f'''
            s_mov_b32 s66, 0xaaaaaaaa
            s_mov_b32 s67, 0xaaaaaaaa
            s_mov_b32 vcc_lo, 0xcccccccc
            s_mov_b32 vcc_hi, 0xcccccccc
            s_lshl_b32 s64, s{sCQ}, 9
            s_lshl_b32 s65, s{sKH}, 8
            s_add_u32 s64, s64, s65
            s_add_u32 s64, s64, {MISC}
            v_lshl_add_u32 v{O1+4}, v{O1+5}, 2, v{O1+4}
            v_cndmask_b32_e64 v{O1}, v{O2}, v{O2+1}, s[66:67]
            v_cndmask_b32_e64 v{O1+2}, v{O2+2}, v{O2+3}, s[66:67]
            v_add_u32 v{O1+4}, s64, v{O1+4}
            v_cndmask_b32 v{O1}, v{O1}, v{O1+2}, vcc
            ds_write_b32 v{O1+4}, v{O1}
            ''')
    g.stamp(9)
    ZD = Opt.zd
    ZB = 16; BA = 144; BACC = 192; PQR = 112
    assert ZB + 8 * ZD <= PQR
    with only(g, 3):
        g.wait('zp', keep=True)
        poll_loop(g, 244, 59, reg=245, first=False)
    g.wait('kv')
    bwait(NW + 4)
    g.stamp(10)
    e('s_barrier')
    for t in range(lastb + 1, 21): free.extend(slot[n] for n in sblocks(t))
    g.stamp(11)
    with only(g, 2):
        e(f's_lshl_b32 s64, s{sJ}, 5\ns_add_u32 s64, s64, s{sRB}\ns_lshl_b32 s64, s64, 7\ns_add_u32 s64, s64, {FK_OFF}')
        flag_store(g, 64)
    def z_loads(i):
        r = ZB + (i % ZD) * 8
        return [(f's_add_u32 s60, s69, {i*4096}\ns_and_b32 s60, s60, 0x1ffff\ns_add_u32 s60, s60, s{sZ2B}\n'
                 f'buffer_load_dwordx4 {vr(r,4)}, v5, {S(SWS)}, s60 offen sc1', f'z{i}'),
                (f'buffer_load_dwordx4 {vr(r+4,4)}, v5, {S(SWS)}, s60 offen offset:1024 sc1', f'z{i}')]
    def ba_reads(i):
        s = BA + 16 * (i & 1); sl = slot[NW + i]
        return [f'ds_read_b128 {vr(s+4*Tl,4)}, v{PB + (sl//7)*2 + (Tl>>1)} offset:{(sl%7)*SL + (Tl&1)*2048}' for Tl in range(4)]
    def bacc(ft, Tl): return BACC + (Tl * 2 + ft) * 4
    for i in range(4): g.items(z_loads(i))
    g.items(ba_reads(0))
    zl = []
    for i in range(4, ZD): zl += z_loads(i)
    spread(g, gelu_l([Y + 2 * i for i in range(8)], 224, Opt.pk), zl)
    e(f"""
    s_movk_i32 s60, 896
    v_lshrrev_b32 v12, 3, v0
    v_and_b32 v4, 6, v12
    v_xor_b32 v4, v4, v0
    v_and_b32 v4, 7, v4
    v_lshlrev_b32 v4, 4, v4
    v_mad_u32_u24 v1, v12, s60, v4
    s_mul_i32 s{sU3}, s{sW}, {8*896}
    s_lshl_b32 s64, s{sJC}, 7
    s_add_u32 s{sU3}, s{sU3}, s64
    s_lshl_b32 s{sO3}, s{sRC}, 2
    s_add_u32 s{sO3}, s{sO3}, s{sCQ}
    s_mul_i32 s{sACT}, s{sO3}, 28
    s_add_u32 s{sACT}, s{sACT}, s{sKH}
    s_lshl_b32 s{sACT}, s{sACT}, 10
    s_add_u32 s{sACT}, s{sACT}, {ACT_OFF}
    s_mul_i32 s{sO3}, s{sO3}, 14336
    s_mul_i32 s64, s{sKH}, 768
    s_add_u32 s{sO3}, s{sO3}, s64
    s_add_u32 s{sO3}, s{sO3}, {PQ_OFF}
    s_lshl_b32 s66, s{sJC}, 16
    s_add_u32 s66, s66, s{sW1K}
    s_add_u32 s66, s66, {M_OFF}
    v_add_u32 v6, s{sW1K}, v5
    v_xor_b32 v7, 4096, v6
    v_add_u32 v2, {7*SL}, v6
    v_add_u32 v4, {14*SL}, v6
    """)
    MWB = (6, 2, 4)
    CF = 16; MS = 80; CACC = 176; TT = 192; DN = 224; XRES = 240; CB = 80; MR = 246; ZR = 249; ZS = 228
    assert ZB + 8 * ZD <= MS
    ml = [(f'buffer_load_dwordx4 {vr(MS+4*yy,4)}, v5, {S(SWS)}, s66 offen sc1\ns_add_u32 s66, s66, 8192', f'm{yy}') for yy in range(8)]
    def z_issue():
        with only(g, 1):
            e(f"""
            v_lshrrev_b32 v12, 1, v0
            v_lshlrev_b32 v12, 7, v12
            v_and_b32 v13, 1, v0
            v_lshl_add_u32 v12, v13, 4, v12
            s_mov_b32 s64, {ZT_OFF}
            buffer_load_dwordx4 {vr(ZS,4)}, v12, {S(SWS)}, s64 offen sc1
            """)
    ml.insert(0, z_issue)
    g.stamp(12)
    pql = []
    for yy in range(8):
        pre_ = f's_add_u32 s65, s{sO3}, {yy*1792}\n' if yy % 2 == 0 else ''
        pql.append((pre_ + f'buffer_load_dwordx4 {vr(PQR+4*yy,4)}, v5, {S(SWS)}, s65 offen offset:{(yy%2)*1792} sc1', 'pq'))
    ex = None
    pend = []
    def poll_issue(setup, tag):
        with only(g, 3):
            e(setup + f'\nbuffer_load_dword v245, v244, {S(SWS)}, s59 offen sc1')
        g.mark(tag)
    def poll_check(tag):
        with only(g, 3):
            g.wait(tag, keep=True)
            poll_loop(g, 244, 59, reg=245, first=False)
    msl = []; mw = []
    def m_write(yy):
        def f():
            g.wait(f'm{yy}')
            e(f'ds_write_b128 v{MWB[msl[yy]//7]}, {vr(MS+4*yy,4)} offset:{(msl[yy]%7)*SL}')
            if yy == 0:
                with only(g, 1):
                    e(f'v_add_u32 v12, {MISC + 4096}, v5\nds_write_b128 v12, {vr(ZS,4)}')
        return f
    for i in range(32):
        g.wait(f'z{i}', 'lgkmcnt(0)')
        if i % 4 == 0 and i > 0:
            bwait(NW + min(i + 4, 31))
            if i == Opt.im: poll_check('mp')
            e('s_barrier')
            fr = [slot[NW + k] for k in range(i - 3 - (1 if i == 4 else 0), i + 1)]
            if i == 28: ex = fr
            else: free.extend(fr)
            if i == 24:
                msl = [free.pop() for _ in range(8)]
                mw = [m_write(yy) for yy in range(8)]
            g.stamp(12 + i // 4)
        s = BA + 16 * (i & 1); zr = ZB + (i % ZD) * 8
        order = (2, 3, 0, 1) if i == 31 else (0, 1, 2, 3)
        M_ = [f'{MF} {vr(bacc(ft,Tl),4)}, {vr(zr+4*ft,4)}, {vr(s+4*Tl,4)}, {"0" if i == 0 else vr(bacc(ft,Tl),4)}'
              for Tl in order for ft in range(2)]
        nxt = ba_reads(i + 1) if i < 31 else []
        dm = dmas(N3, 1 + (i == 4))
        if i >= Opt.iw3 and st['next'] >= N3: dm += dmas(len(blocks), min(Opt.n3, N3 + 4 - st['next']))
        if i >= Opt.ipq:
            k = -(-len(pql) // max(1, 31 - i))
            dm = pql[:k] + dm; pql = pql[k:]
        if i >= Opt.im:
            dm = ml[:Opt.nm] + dm; ml = ml[Opt.nm:]
        if i >= Opt.iwm:
            k = -(-len(mw) // (32 - i))
            dm = mw[:k] + dm; mw = mw[k:]
        spread(g, M_[:4], nxt)
        spread(g, M_[4:], pend + dm)
        pend = z_loads(i + ZD) if i + ZD < 32 else []
        if i == Opt.im - 3:
            poll_issue(f"""v_subrev_u32 v244, 32, v0
            v_min_u32 v244, 6, v244
            v_lshlrev_b32 v244, 12, v244
            s_lshl_b32 s59, s{sRC}, 7
            v_add_u32 v244, s59, v244
            v_lshlrev_b32 v245, 7, v0
            s_lshl_b32 s59, s{sRB}, 12
            s_add_u32 s59, s59, {FM_OFF - FK_OFF}
            v_add_u32 v245, s59, v245
            v_cmp_gt_u32 vcc, 32, v0
            v_cndmask_b32 v244, v244, v245, vcc
            s_mov_b32 s59, {FK_OFF}""", 'mp')
    assert not pql and not ml and Opt.ipq >= Opt.im
    g.stamp(20)
    for i in range(4):
        e(f'v_add_u32 v{8+i}, {ex[i]*SL}, v6')
        e(f'ds_write_b128 v{8+i}, {vr(BACC+16+4*i,4)}')
    g.items(mw)
    g.wait('bs')
    for Tl in range(2):
        e(f'v_lshlrev_b32 v{BS+2*Tl}, 16, v{BS+2*Tl}\nv_mov_b32 v{BS+2*Tl+1}, v{BS+2*Tl}')
    for i in range(4):
        e(f'v_add_u32 v{8+i}, {ex[i]*SL}, v7')
    for Tl in range(2):
        for jx in range(4):
            r = BACC + 8 * Tl + 2 * jx
            e(f'v_pk_add_f32 {vr(r,2)}, {vr(r,2)}, {vr(BS+2*Tl,2)}')
    e(f"""
    s_mul_i32 s64, s{sKS}, 56
    s_add_u32 s64, s64, s{sP}
    s_lshl_b32 s64, s64, 10
    s_add_u32 s64, s64, {ACT_OFF}
    s_add_u32 s65, s64, {28*1024}
    s_lshl_b32 s66, s{sKH}, 12
    v_lshlrev_b32 v{MR}, 3, v0
    v_add_u32 v{MR}, s66, v{MR}
    v_add_u32 v{MR+1}, {7*SL}, v{MR}
    v_add_u32 v{MR+2}, {14*SL}, v{MR}
    v_lshrrev_b32 v{ZR}, 4, v0
    v_lshlrev_b32 v{ZR}, 1, v{ZR}
    v_subrev_u32 v{ZR}, s{sKH}, v{ZR}
    v_add_u32 v{ZR+1}, 1, v{ZR}
    v_and_b32 v{ZR}, 7, v{ZR}
    s_lshl_b32 s66, s{sKH}, 6
    s_add_u32 s66, s66, {MISC + 4096}
    v_lshl_add_u32 v{ZR}, v{ZR}, 3, s66
    v_lshl_add_u32 v{ZR+1}, v{ZR+1}, 3, s66
    s_lshl_b32 s67, s{sRB}, 10
    s_lshl_b32 s66, s{sJ}, 7
    s_add_u32 s67, s67, s66
    s_add_u32 s67, s67, {FU_OFF}
    s_waitcnt lgkmcnt(0)
    s_barrier
    """)
    g.stamp(21)
    free.extend([slot[NW + k] for k in range(29, 32)])
    for i in range(4):
        e(f'ds_read_b128 {vr(BACC+16+4*i,4)}, v{8+i}')
    OD = 3
    def oent(yy): return (144, 160, 92)[yy % OD]
    def zent(yy): return (72, 76, 108)[yy % OD]
    def m_reads(yy):
        s = oent(yy); sl = msl[yy]
        return ([f'ds_read_b64 {vr(zent(yy)+2*h,2)}, v{ZR+h} offset:{yy*128}' for h in range(2)] +
                [f'ds_read_b64 {vr(s+4*t+2*h,2)}, v{MR + sl//7} offset:{(sl%7)*SL + h*2048 + t*512}' for t in range(4) for h in range(2)])
    g.items(m_reads(0))
    UP = 232
    for Tl in range(2):
        e(f's_waitcnt lgkmcnt({12 - 2*Tl})')
        for jx in range(4):
            r = BACC + 8 * Tl + 2 * jx
            e(f'v_pk_add_f32 {vr(r,2)}, {vr(r,2)}, {vr(r+16,2)}')
        for jx in range(4):
            r = BACC + 8 * Tl + 2 * jx
            e(f'v_pk_mul_f32 {vr(r,2)}, {vr(r,2)}, {vr(Y+8*Tl+2*jx,2)}')
        g.items(pack_l(UP + 4 * Tl, BACC + 8 * Tl, BACC + 8 * Tl + 4))
        g.v(f'buffer_store_dwordx4 {vr(UP+4*Tl,4)}, v5, {S(SWS)}, s{64+Tl} offen sc1', 'U')
    g.stamp(22)
    def o_fin(yy):
        d = DN + 4 * (yy & 1); t = TT + 16 * (yy & 1)
        L = [f'v_add_f32 v{d}, {f32(1e-6)}, v{d}', f'v_rcp_f32 v{d}, v{d}']
        for p in range(8):
            if yy == 0: L.append(f'v_pk_mul_f32 {vr(CACC+2*p,2)}, {vr(t+2*p,2)}, {vr(d,2)} op_sel_hi:[1,0]')
            else: L.append(f'v_pk_fma_f32 {vr(CACC+2*p,2)}, {vr(t+2*p,2)}, {vr(d,2)}, {vr(CACC+2*p,2)} op_sel_hi:[1,0,1]')
        return L
    g.items(m_reads(1))
    e(f"""
    v_bfe_u32 v12, v0, 2, 3
    v_lshrrev_b32 v7, 5, v0
    v_lshlrev_b32 v7, 10, v7
    v_lshl_add_u32 v7, v12, 7, v7
    v_and_b32 v13, 3, v0
    v_lshl_add_u32 v7, v13, 3, v7
    s_lshl_b32 s64, s{sKH}, 12
    v_add_u32 v7, s64, v7
    v_lshrrev_b32 v12, 1, v12
    v_lshl_or_b32 v{CB}, v12, 5, v7
    """)
    for t in range(1, 4): e(f'v_xor_b32 v{CB+t}, {t*32}, v{CB}')
    for b in (1, 2):
        for t in range(4): e(f'v_add_u32 v{CB+4*b+t}, {7*SL*b}, v{CB+t}')
    e(f"""
    v_lshrrev_b32 v6, 5, v0
    v_lshlrev_b32 v6, 3, v6
    v_bfe_u32 v7, v0, 3, 2
    v_add_u32 v6, v6, v7
    v_mul_u32_u24 v6, 896, v6
    v_and_b32 v7, 7, v0
    v_lshl_add_u32 v6, v7, 4, v6
    """)
    g.wait('pq')
    def act_load(yy):
        pre_ = f's_add_u32 s60, s{sACT}, {yy*2048}\n' if yy % 2 == 0 else ''
        return (pre_ + f'buffer_load_dwordx4 {vr(CF+4*yy,4)}, v5, {S(SWS)}, s60 offen offset:{(yy%2)*2048} sc1', f'a{yy}')
    WE = [112, 128, 144, 92, 160, 192, 208]; WD = len(WE)
    for yy in range(8):
        if yy == Opt.uw:
            g.wait('U')
            g.stamp(23)
            e('s_barrier')
            with only(g, 2): flag_store(g, 67)
            assert Opt.uw >= 3
            free.extend(ex + msl[:3])
            g.stamp(24)
        e(f's_waitcnt lgkmcnt({10 if yy < 7 else 0})')
        s = oent(yy); q = vr(PQR + 4 * yy, 4)
        M_ = [f'{MF} {vr(DN+4*(yy&1),4)}, {vr(zent(yy),4)}, {q}, 0']
        M_ += [f'{MF} {vr(TT+16*(yy&1)+4*nt,4)}, {vr(s+4*nt,4)}, {q}, 0' for nt in range(4)]
        spread(g, M_, (m_reads(yy + 2) if yy < 6 else []) + (o_fin(yy - 1) if yy else []))
        if yy >= Opt.od0: g.items(dmas(len(blocks), Opt.odn))
    g.items(dmas(len(blocks)))
    assert st['next'] == len(blocks)
    g.v(f'buffer_load_dwordx4 {vr(XRES,4)}, v6, {S(SX)}, s{sXO} offen', 'xr')
    g.items(o_fin(7))
    g.wait(f'b{N3 + WD - 1}')
    e('s_barrier')
    g.stamp(25)
    frs = msl[4:]
    def cw_reads(yy):
        s = WE[yy % WD]; sl = slot[N3 + yy]
        return [f'ds_read_b64_tr_b16 {vr(s+4*t+2*h,2)}, v{CB + (sl//7)*4 + t} offset:{(sl%7)*SL + h*2048}' for t in range(4) for h in range(2)]
    for yy in range(Opt.wpre):
        if yy == Opt.upi:
            poll_issue(f"""v_min_u32 v244, 6, v0
            v_lshlrev_b32 v244, 7, v244
            s_lshl_b32 s59, s{sRC}, 10
            s_add_u32 s59, s59, {FU_OFF}""", 'up')
        g.items(cw_reads(yy))
    poll_check('up')
    g.wait(f'b{len(blocks)-1}')
    e('s_barrier')
    g.stamp(26)
    g.items([act_load(yy) for yy in range(Opt.ad)])
    for yy in range(Opt.wpre, WD): g.items(cw_reads(yy))
    def c_part():
        for yy in range(14):
            nl_ = 8 * (min(13, yy - 1 + WD - 1) - yy)
            g.wait(f'a{yy}', f'lgkmcnt({max(0, min(15, nl_))})')
            if Opt.fc: g.stamp(34 + yy)
            s = WE[yy % WD]
            M_ = [f'{MF} {vr(CACC+4*nt,4)}, {vr(s+4*nt,4)}, {vr(CF+4*yy,4)}, {vr(CACC+4*nt,4)}' for nt in range(4)]
            if yy + Opt.ad < 14: g.item(act_load(yy + Opt.ad))
            spread(g, M_, cw_reads(yy - 1 + WD) if yy >= 1 and yy - 1 + WD < 14 else [])
    def sel4(dst, idx):
        e(f'v_mov_b32 v{dst}, {frs[0]*SL}')
        for k in (1, 2, 3):
            e(f'v_cmp_eq_u32 vcc, {k}, v{idx}\nv_mov_b32 v14, {frs[k]*SL}\nv_cndmask_b32 v{dst}, v{dst}, v14, vcc')
    e('v_bfe_u32 v13, v0, 2, 2')
    sel4(12, 13)
    e(f'''
    v_and_b32 v2, 15, v0
    v_lshrrev_b32 v3, 4, v0
    v_xor_b32 v3, v3, v2
    v_lshl_add_u32 v3, v3, 4, v12
    v_and_b32 v2, 3, v0
    v_lshl_add_u32 v3, v2, 8, v3
    v_add_u32 v8, s{sW1K}, v3
    ''')
    for nt in range(1, 4): e(f'v_xor_b32 v{8+nt}, {nt*64}, v8')
    e(f'''
    s_and_b32 s64, s{sW}, 1
    s_lshl_b32 s64, s64, 3
    v_lshrrev_b32 v2, 3, v0
    v_add_u32 v2, s64, v2
    v_lshrrev_b32 v13, 2, v2
    ''')
    sel4(12, 13)
    e(f'''
    v_and_b32 v3, 7, v0
    v_lshlrev_b32 v3, 1, v3
    v_xor_b32 v3, v3, v2
    v_lshl_add_u32 v3, v3, 4, v12
    v_and_b32 v2, 3, v2
    v_lshl_add_u32 v3, v2, 8, v3
    s_lshr_b32 s64, s{sW}, 1
    s_lshl_b32 s64, s64, 10
    v_add_u32 v3, s64, v3
    v_xor_b32 v4, 16, v3
    ''')
    FX = 232
    g.wait('xr')
    for jx in range(4):
        e(f'v_lshlrev_b32 v{FX+2*jx}, 16, v{XRES+jx}\nv_and_b32 v{FX+1+2*jx}, 0xffff0000, v{XRES+jx}')
    c_part()
    g.stamp(29)
    for nt in range(4):
        e(f'ds_write_b128 v{8+nt}, {vr(CACC+4*nt,4)}')
    e(f'''
    s_waitcnt lgkmcnt(0)
    s_barrier
    ds_read_b128 v[24:27], v3
    ds_read_b128 v[28:31], v4
    ds_read_b128 v[32:35], v3 offset:4096
    ds_read_b128 v[36:39], v4 offset:4096
    s_waitcnt lgkmcnt(2)
    ''')
    for jx in range(4):
        e(f'v_pk_add_f32 {vr(FX+2*jx,2)}, {vr(FX+2*jx,2)}, {vr(24+2*jx,2)}')
    e('s_waitcnt lgkmcnt(0)')
    for jx in range(4):
        e(f'v_pk_add_f32 {vr(FX+2*jx,2)}, {vr(FX+2*jx,2)}, {vr(32+2*jx,2)}')
    g.items(pack_l(24, FX, FX + 4))
    g.v(f'buffer_store_dwordx4 v[24:27], v6, {S(SOUT)}, s{sXO} offen', 'out')
    e('s_branch L_END')
    a.label('L_ATT'); a.fence(2)
    g.vm = []
    sH, sOFF, sT0, sDH = 47, 48, 49, 45
    WOL = 65536
    e(f'''
    s_waitcnt lgkmcnt(0)
    s_load_dword s{sTAG}, s[{SWS}:{SWS+1}], {EPOCH_OFF}
    s_lshr_b32 s{sH}, s{sRB}, 1
    s_and_b32 s{sDH}, s{sRB}, 1
    s_mul_i32 s50, s{sH}, 7
    s_and_b32 s{sOFF}, s50, 3
    s_lshr_b32 s{sT0}, s50, 2
    v_and_b32 v4, 6, v12
    v_xor_b32 v4, v4, v13
    v_lshlrev_b32 v4, 4, v4
    v_lshrrev_b32 v2, 5, v0
    v_and_b32 v3, 3, v12
    s_min_u32 s51, s{sW}, 6
    s_lshl_b32 s51, s51, 7
    s_mul_i32 s52, s{sH}, {28*896}
    s_add_u32 s51, s51, s52
    s_lshl_b32 s52, s{sW}, 12
    s_add_u32 s52, s52, {WOL}
    s_movk_i32 s53, 896
    ''')
    for p in range(4):
        e(f'''
        v_add_u32 v6, {2*(p&1)}, v2
        v_subrev_u32 v6, s{sOFF}, v6
        v_and_b32 v6, 3, v6
        v_lshl_add_u32 v6, v6, 2, v3
        v_add_u32 v6, {16*(p>>1)}, v6
        v_min_u32 v6, 27, v6
        v_mad_u32_u24 v6, v6, s53, v4
        s_add_u32 m0, s52, {p*1024}
        buffer_load_dwordx4 v6, {S(SWO)}, s51 offen lds
        ''')
    if Opt.pf:
        e(f'''
        s_lshl_b32 s51, s{sRB}, 3
        s_add_u32 s51, s51, s{sW}
        s_mul_i32 s53, s51, 3136
        s_lshl_b32 s51, s51, 15
        ''')
        for rep in range(2 if Opt.bal else 1):
            if rep: e(f's_sub_u32 s51, s51, 32768\ns_xor_b32 s51, s51, {4<<18}\ns_waitcnt vmcnt(16)')
            for i in range(32):
                e(f'buffer_load_dwordx4 {vr(16+4*i,4)}, v5, {S(SSP)}, s51 offen offset:{(i%4)*1024}')
                if i % 4 == 3: e('s_add_u32 s51, s51, 4096')
        for i in range(4): e(f'buffer_load_dwordx4 {vr(144+4*i,4)}, v5, {S(SWT)}, s53 offen offset:{i*1024 - (960 if i == 3 else 0)}')
    e(f'''
    v_bfe_u32 v2, v0, 2, 2
    v_cmp_gt_u32 vcc, s{sOFF}, v2
    v_cndmask_b32_e64 v3, 0, 1, vcc
    v_add_u32 v3, s{sT0}, v3
    v_lshl_add_u32 v8, v3, 16, v5
    v_add_u32 v9, 0x10000, v8
    s_mul_i32 s50, s{sH}, 28
    s_lshr_b32 s51, s50, 6
    s_add_u32 s53, s50, 27
    s_lshr_b32 s53, s53, 6
    s_sub_u32 s53, s53, s51
    v_lshrrev_b32 v3, 5, v0
    v_mul_u32_u24 v3, s53, v3
    v_add_u32 v3, s51, v3
    v_lshlrev_b32 v4, 5, v3
    v_and_b32 v7, 31, v0
    v_add_u32 v6, v4, v7
    v_lshlrev_b32 v6, 7, v6
    s_mov_b32 s54, {FK_OFF}
    s_lshl_b32 s56, s{sW}, 13
    s_add_u32 s57, s56, {VD_OFF}
    s_lshl_b32 s50, s{sDH}, 16
    s_add_u32 s56, s56, s50
    s_add_u32 s56, s56, {KD_OFF}
    v_lshrrev_b32 v7, 4, v0
    s_add_u32 s50, s{sOFF}, 3
    s_and_b32 s50, s50, 3
    v_cmp_eq_u32 s[58:59], s50, v7
    v_cmp_eq_u32 s[60:61], s50, v2
    v_subrev_u32 v3, s{sOFF}, v7
    v_and_b32 v3, 3, v3
    v_lshlrev_b32 v11, 3, v3
    s_lshl_b32 s50, s{sDH}, 2
    s_and_b32 s53, s{sH}, 1
    s_add_u32 s50, s50, s53
    v_add_u32 v3, s50, v3
    v_and_b32 v4, 1, v3
    v_bfe_u32 v3, v3, 1, 2
    v_lshlrev_b32 v3, 7, v3
    v_lshl_add_u32 v3, v4, 11, v3
    v_and_b32 v4, 15, v0
    v_lshl_add_u32 v10, v4, 3, v3
    s_cmp_eq_u32 s{sDH}, 1
    s_cselect_b64 s[60:61], s[60:61], 0
    s_cselect_b64 s[64:65], s[58:59], 0
    v_bfe_u32 v12, v0, 2, 3
    v_lshrrev_b32 v7, 5, v0
    v_lshlrev_b32 v7, 10, v7
    v_lshl_add_u32 v7, v12, 7, v7
    v_and_b32 v13, 3, v0
    v_lshl_add_u32 v7, v13, 3, v7
    v_add_u32 v7, s52, v7
    v_lshrrev_b32 v12, 1, v12
    v_lshl_or_b32 v7, v12, 5, v7
    s_lshl_b32 s52, s{sW}, 16
    s_lshl_b32 s50, s{sH}, 12
    s_add_u32 s52, s52, s50
    s_add_u32 s52, s52, {M_OFF}
    s_waitcnt vmcnt(0) lgkmcnt(0)
    s_add_u32 s{sTAG}, s{sTAG}, {TAGC}
    ''')
    WF = 208
    for t in range(4):
        e(f'v_xor_b32 v12, {t*32}, v7')
        for h in range(2): e(f'ds_read_b64_tr_b16 {vr(WF+4*t+2*h,2)}, v12 offset:{h*2048}')
    g.stamp(1)
    with only(g, 0): poll_loop(g, 6, 54)
    e('s_barrier')
    g.stamp(2)
    KB = 16; VB = 80; KA = 176; ONE = 200
    for kk in range(8):
        if kk == 4: e('s_add_u32 s56, s56, 4096\ns_add_u32 s57, s57, 4096')
        g.v(f'buffer_load_dwordx4 {vr(KB+kk*4,4)}, v8, {S(SWS)}, s56 offen offset:{(kk%4)*1024} sc1', f'k{kk}')
        for X in range(2):
            g.v(f'buffer_load_dwordx4 {vr(VB+(kk*2+X)*4,4)}, v{8+X}, {S(SWS)}, s57 offen offset:{(kk%4)*1024} sc1', f'k{kk}')
    for jx in range(4): e(f'v_mov_b32 v{ONE+jx}, 0x3f803f80')
    e(f'''
    s_mul_i32 s50, s{sW}, 3072
    v_add_u32 v2, s50, v5
    s_cmp_eq_u32 s{sW}, 7
    s_cselect_b32 s50, 2048, 0
    v_add_u32 v3, s50, v5
    ''')
    for kk in range(8):
        g.wait(f'k{kk}')
        for Xe in range(3):
            d = vr(KA + Xe * 4, 4); kf = vr(KB + kk * 4, 4)
            ops = f'{vr(VB+(kk*2+Xe)*4,4)}, {kf}' if Xe < 2 else f'{kf}, {vr(ONE,4)}'
            e(f'{MF} {d}, {ops}, {"0" if kk == 0 else d}')
    for i in range(3):
        e(f'ds_write_b128 v2, {vr(KA+4*i,4)} offset:{i*1024}')
    g.stamp(3)
    e('s_waitcnt lgkmcnt(0)\ns_barrier')
    R = 16
    for w in range(8):
        for t in range(2): e(f'ds_read_b128 {vr(R+8*w+4*t,4)}, v3 offset:{w*3072 + t*1024}')
    for st_, n_ in ((32, 4), (16, 2), (8, 1)):
        for i in range(n_):
            if st_ == 32: e(f's_waitcnt lgkmcnt({6 - 2*i})')
            for p in (0, 2, 4, 6):
                e(f'v_pk_add_f32 {vr(R+8*i+p,2)}, {vr(R+8*i+p,2)}, {vr(R+8*i+p+st_,2)}')
    KF = 32
    g.items(pack_l(KF, R, R + 4))
    g.stamp(5)
    e(f's_cmp_eq_u32 s{sW}, 7\ns_cbranch_scc1 L_AZ')
    for jx in (2, 3): e(f'v_cndmask_b32_e64 v{KF+jx}, v{KF+jx}, 0, s[58:59]')
    for jx in range(4): e(f'v_cndmask_b32_e64 v{KF+jx}, v{KF+jx}, 0, s[60:61]')
    for nt in range(4): e(f'{MF} {vr(48+4*nt,4)}, {vr(KF,4)}, {vr(WF+4*nt,4)}, 0')
    for nt in range(4):
        r = 48 + 4 * nt
        e(f'v_cvt_pk_bf16_f32 v{r}, v{r}, v{r+1}\nv_cvt_pk_bf16_f32 v{r+1}, v{r+2}, v{r+3}')
        e(f'buffer_store_dwordx2 {vr(r,2)}, v10, {S(SWS)}, s52 offen offset:{nt*512} sc1')
    e('s_branch L_AF')
    a.label('L_AZ'); a.fence(2)
    e(f'''
    v_cndmask_b32_e64 v{KF}, v{KF}, 0, s[64:65]
    v_cndmask_b32_e64 v{KF+1}, v{KF+1}, 0, s[64:65]
    s_lshl_b32 s50, s{sRB}, 7
    s_add_u32 s50, s50, {ZT_OFF}
    s_mov_b32 exec_lo, 0x00010001
    s_mov_b32 exec_hi, 0x00010001
    buffer_store_dwordx2 {vr(KF,2)}, v11, {S(SWS)}, s50 offen sc1
    s_mov_b64 exec, -1
    ''')
    a.label('L_AF'); a.fence(2)
    e(f'''
    s_waitcnt vmcnt(0)
    s_barrier
    s_cmp_lg_u32 s{sW}, 0
    s_cbranch_scc1 L_END
    v_lshlrev_b32 v2, 12, v0
    v_mov_b32 v14, s{sTAG}
    s_lshl_b32 s53, s{sRB}, 7
    s_add_u32 s53, s53, {FM_OFF}
    s_mov_b32 exec_hi, 0
    buffer_store_dword v14, v2, {S(SWS)}, s53 offen sc1
    s_mov_b64 exec, -1
    ''')
    g.stamp(6)
    e(f'''
    s_cmp_lg_u32 s{sRB}, 0
    s_cbranch_scc1 L_END
    v_and_b32 v2, 31, v0
    v_lshlrev_b32 v2, 7, v2
    s_mov_b32 s57, {FM_OFF}
    ''')
    poll_loop(g, 2, 57)
    e(f's_mov_b32 s57, {EPOCH_OFF}')
    flag_store(g, 57)
    a.label('L_END')
    if Opt.hold >= 0:
        g.stamp(30)
        e('''
        L_HOLD:
        s_sleep 4
        s_memrealtime s[96:97]
        s_waitcnt lgkmcnt(0)
        s_sub_u32 s96, s96, s94
        s_cmp_lt_u32 s96, 6000
        s_cbranch_scc1 L_HOLD
        ''')
    if Opt.stamp:
        g.stamp(30)
        e('s_waitcnt vmcnt(0)')
        g.stamp(31)
        e(f'''
        s_memrealtime s[96:97]
        s_waitcnt lgkmcnt(0)
        v_writelane_b32 v15, s94, 0
        v_writelane_b32 v15, s98, 32
        v_writelane_b32 v15, s96, 33
        s_lshl_b32 s96, s2, 3
        s_add_u32 s96, s96, s{sW}
        s_lshl_b32 s96, s96, 8
        s_add_u32 s96, s96, {DBG_OFF}
        v_lshlrev_b32 v14, 2, v0
        buffer_store_dword v15, v14, {S(SWS)}, s96 offen
        ''')
    a.label('L_EXIT')
    e('s_endpgm')
    head = '; @launch grid=(256,1,1) block=(512,1,1) lds=163840\n'
    tail = f'''.section .rodata,"a"
.p2align 6
.amdhsa_kernel {KNAME}
  .amdhsa_next_free_vgpr 256
  .amdhsa_next_free_sgpr 102
  .amdhsa_accum_offset 256
  .amdhsa_group_segment_fixed_size 0
  .amdhsa_kernarg_size 88
  .amdhsa_user_sgpr_count 2
  .amdhsa_user_sgpr_kernarg_segment_ptr 1
  .amdhsa_system_sgpr_workgroup_id_x 1
.end_amdhsa_kernel
'''
    return head + a.text() + tail

if __name__ == '__main__':
    for o in sys.argv[2:]:
        k, _, v = o.partition('=')
        assert hasattr(Opt, k), k
        setattr(Opt, k, v if isinstance(getattr(Opt, k), str) else (int(v) if v else 1))
    open(sys.argv[1], 'w').write(gen())
```
